```python
import torch

def _softmax(x, axis=-1):
    return torch.softmax(x, dim=axis)
def _gelu(x):
    return torch.nn.functional.gelu(x, approximate="tanh")
def _silu(x):
    return torch.nn.functional.silu(x)
def _sigmoid(x):
    return torch.sigmoid(x)
def _layernorm(x, axis=-1, eps=1e-5):
    m = x.mean(dim=axis, keepdim=True)
    v = x.var(dim=axis, keepdim=True, unbiased=False)
    return (x - m) / torch.sqrt(v + eps)
def _scatter_add(tgt, idx, src, axis=0):
    return tgt.clone().index_add_(axis, idx, src)
def _segment_sum(src, seg, n):
    out = torch.zeros((n,) + src.shape[1:], dtype=src.dtype)
    return out.index_add_(0, seg, src)
def _pad(x, pw):
    flat = tuple(v for pair in reversed(pw) for v in pair)
    return torch.nn.functional.pad(x, flat)

kernel_name = 'standalone__cross_network_dcn_v2__recsys'

def setup_inputs():

    _w = (lambda a: (lambda t: t.to(torch.bfloat16) if t.is_floating_point() else t)(torch.as_tensor(a)))
    B, F, D, L = 16384, 26, 16, 6
    Din = min(F * D, 512)
    R = max(Din // 4, 2)
    sc = Din ** -0.5
    return {
        "x0": _w((lambda *s: torch.randn(*s, dtype=torch.bfloat16) * 0.05)(B, Din)),
        "U":  _w((lambda *s: torch.randn(*s, dtype=torch.bfloat16) * 1.6)(L, Din, R) * sc),
        "V":  _w((lambda *s: torch.randn(*s, dtype=torch.bfloat16) * 1.6)(L, R, Din) * sc),
        "bs": _w((lambda *s: torch.randn(*s, dtype=torch.bfloat16) * 0.05)(L, Din)),
    }

def reference(x0, U, V, bs):
    x = x0
    for l in range(U.shape[0]):
        h = torch.einsum('rd,bd->br', V[l], x)
        h = torch.einsum('dr,br->bd', U[l], h)
        x = x0 * (h + bs[l]) + x
    return x
```

```python
import sys, json

KN = "standalone__cross_network_dcn_v2__recsys_kernel"
NL = 6
SLOT = 6656
WIN = 7 * SLOT
Z = 87040
T6 = Z + 6 * SLOT + 4032
LDS = 138240
LSTR = 86528
C0, X0, H0, XF = 0, 104, 208, 236
TMP, PV, PV6, PU, PT, DV, DU, D1 = 248, 249, 250, 251, 252, 253, 254, 255
S_X, S_U, S_V, S_B, S_O, S_M = 8, 12, 16, 20, 24, 28
(sW, sVb, sVs0, sVs1, sVs2, sWAs, sWAm, sWBs, sWBm, sT6s, sT6m, sMXs, sMXm, sUm, sLm, sCnt,
 sXo, sT0, sT1, sT2, sT3) = range(32, 53)
sMask = 54
sDbg = 56


class Cfg:
    LA = 12
    RING = 13
    NW = 4
    SWV = 8
    headint = True
    bars = [2, 20, 34, 54, 68, 91, 111, 131, 147, 163, 179]
    dma = {
        "V5": ([3, 7, 11], 54),
        "G0": ([21, 25, 29, 33], 68),
        "G1": ([37, 41, 45, 49], 91),
        "G2": ([55, 59, 63, 67], 111),
        "G3": ([71, 75, 79, 83], 131),
        "G4": ([92, 96, 100, 104], 147),
        "L": ([108], 163),
        "MX": ([113], 163),
        "T6": ([117], 179),
        "WA": ([121], 179),
        "WB": ([125], 179),
        "V0": ([132, 136, 140], 179),
        "V1": ([144, 148, 152], 2),
        "V2": ([156, 160, 164], 2),
        "V3": ([168, 172, 176], 20),
        "V4": ([180, 184, 188], 34),
    }
    stamps = False
    nlayers = NL


class I:
    __slots__ = ("txt", "kind", "grp", "areg", "wait", "cmt")

    def __init__(s, txt, kind, grp=None, areg=None, cmt=None):
        s.txt, s.kind, s.grp, s.areg, s.cmt = txt, kind, grp, areg, cmt
        s.wait = None


def vr(a, n=1):
    return f"v{a}" if n == 1 else f"v[{a}:{a + n - 1}]"


def ar(a, n=1):
    return f"a{a}" if n == 1 else f"a[{a}:{a + n - 1}]"


def sr(a, n=1):
    return f"s{a}" if n == 1 else f"s[{a}:{a + n - 1}]"


def cpos(p, tau):
    return C0 + 8 * p + 4 * tau


def xe(p, q):
    return X0 + 8 * p + q


def xo(p, q):
    return X0 + 8 * p + 4 + q


def xbuf(f):
    return XF + 4 * (f % 3)


class Gen:
    def __init__(s, cfg):
        s.c = cfg
        s.TR0 = 4 * cfg.RING
        s.ST = s.TR0 + 24
        s.ST_XA, s.ST_D2 = s.ST, s.ST + 1
        s.NA = s.ST + 2

    def g1_order(s, ks):
        return [1, 3, 5, 0, 2, 4, 6] if ks == 0 else list(range(7))

    def g2_order(s):
        o = []
        p0 = 0
        if s.c.headint:
            for ks in range(4):
                for p in (0, 1):
                    for tau in (0, 1):
                        o.append((p, tau, ks))
            p0 = 2
        for p in range(p0, 13):
            for ks in range(4):
                for tau in (0, 1):
                    o.append((p, tau, ks))
        return o

    def ring(s, T):
        return 4 * (T % s.c.RING)

    def slot_desc(s, T, first=False):
        c = s.c
        if T < 91:
            st, pos = divmod(T, 7)
            t = s.g1_order(st)[pos]
            a = s.ring(T)
            if t < 6:
                ks, tau = t >> 1, t & 1
                if tau == 0:
                    if st < 12:
                        k = 2 * (st >> 1); ab = SLOT * (k + 1) + 2112 * ks + 64 * (st & 1); grp = f"V{k >> 1}"
                    else:
                        ab = Z + SLOT * ks + 4032; grp = "W"
                else:
                    if st == 0:
                        ab = Z + SLOT * ks + 4032 + 64; grp = "W"
                    else:
                        j = (st - 1) >> 1; k = 2 * j + 1
                        ab = SLOT * (k + 1) + 2112 * ks + 64 * ((st - 1) & 1); grp = f"V{j}"
                high = (st >= c.SWV) or (st == 0 and tau == 1)
                imm = ab - (WIN if high else 0)
                assert 0 <= imm < 65536, (T, imm)
                rd = I(f"ds_read_b128 {ar(a, 4)}, {vr(PV)} offset:{imm}", "dsr", areg=a)
            else:
                rd = I(f"ds_read_b128 {ar(a, 4)}, {vr(PV6)} offset:{64 * st}", "dsr", areg=a)
            D = H0 + 4 * t
            if first:
                B = xo(st, 0) if st < 10 else xbuf(st)
            else:
                B = xbuf(st)
            Cc = "0" if st == 0 else vr(D, 4)
            mf = I(f"v_mfma_f32_16x16x32_bf16 {vr(D, 4)}, {ar(a, 4)}, {vr(B, 4)}, {Cc}", "mfma", areg=a)
            return mf, rd
        p, tau, ks = s.g2_order()[T - 91]
        D = cpos(p, tau)
        if ks < 3:
            a = s.ring(T)
            imm = SLOT * (p % 7) + 208 * tau + 64 * ks
            rd = I(f"ds_read_b128 {ar(a, 4)}, {vr(PU)} offset:{imm}", "dsr", areg=a)
            B = H0 + 8 * ks
        else:
            a = s.TR0 + 4 * (2 * (p % 3) + tau)
            imm = SLOT * (p % 7) + 208 * tau
            rd = I(f"ds_read_b64 {ar(a, 2)}, {vr(PT)} offset:{imm}", "dsr", areg=a)
            B = H0 + 24
        mf = I(f"v_mfma_f32_16x16x32_bf16 {vr(D, 4)}, {ar(a, 4)}, {vr(B, 4)}, {vr(D, 4)}", "mfma", areg=a)
        return mf, rd

    def g2_slot_of(s, p, tau, ks):
        return 91 + s.g2_order().index((p, tau, ks))

    def g1_slot_of(s, st, t):
        return 7 * st + s.g1_order(st).index(t)

    def dma_items(s, g):
        V = lambda txt: I(txt, "dma", grp=g)
        S = lambda txt: I(txt, "salu")
        if g[0] == "V":
            j = int(g[1]); out = []
            for ks in range(3):
                out.append((S(f"s_add_u32 m0, {sr(sVb)}, {13184 * j + 2112 * ks + SLOT}"),
                            V(f"buffer_load_dwordx4 {vr(DV)}, {sr(S_V, 4)}, {sr(sVs0 + ks)} offen offset:{128 * j} lds")))
            return out
        if g[0] == "G":
            n = int(g[1]); out = []
            for i in range(4):
                sc = S(f"s_add_u32 m0, {sr(sUm)}, {16384 * n}") if i == 0 else None
                out.append((sc, V(f"buffer_load_dwordx4 {vr(DU)}, {sr(S_U, 4)}, m0 offen offset:{1024 * i} lds")))
            return out
        if g == "L":
            return [(S(f"s_mov_b32 m0, {sr(sLm)}"), V(f"buffer_load_dwordx4 {vr(DU)}, {sr(S_U, 4)}, m0 offen lds"))]
        if g == "MX":
            return [(S(f"s_mov_b32 m0, {sr(sMXm)}"), V(f"buffer_load_dwordx4 {vr(DU)}, {sr(S_M, 4)}, {sr(sMXs)} offen lds"))]
        if g == "T6":
            return [(S(f"s_mov_b32 m0, {sr(sT6m)}"), V(f"buffer_load_dwordx4 {vr(DU)}, {sr(S_V, 4)}, {sr(sT6s)} offen lds"))]
        if g == "WA":
            return [(S(f"s_mov_b32 m0, {sr(sWAm)}"), V(f"buffer_load_dwordx4 {vr(DV)}, {sr(S_V, 4)}, {sr(sWAs)} offen offset:768 lds"))]
        if g == "WB":
            return [(S(f"s_mov_b32 m0, {sr(sWBm)}"), V(f"buffer_load_dwordx4 {vr(DV)}, {sr(S_V, 4)}, {sr(sWBs)} offen offset:768 lds"))]
        raise KeyError(g)

    def xfrag_ops(s, f, dst=None):
        b = xbuf(f) if dst is None else dst
        o = []
        for q in range(4):
            o.append(I(f"v_mul_f32 {vr(b + q)}, {vr(xe(f, q))}, {vr(cpos(f, 0) + q)}", "valu"))
            o.append(I(f"v_mul_f32 {vr(TMP)}, {vr(xo(f, q))}, {vr(cpos(f, 1) + q)}", "valu"))
            o.append(I(f"v_cvt_pk_bf16_f32 {vr(b + q)}, {vr(b + q)}, {vr(TMP)}", "valu"))
        return o

    def unpack_ops(s, f):
        src = xo(f, 0) if f < 10 else xbuf(f)
        o = []
        for q in range(4):
            o.append(I(f"v_lshlrev_b32 {vr(xe(f, q))}, 16, {vr(src + q)}", "valu"))
            o.append(I(f"v_and_b32 {vr(xo(f, q))}, 0xffff0000, {vr(src + q)}", "valu"))
        return o

    def hcvt_ops(s, ks):
        if ks < 3:
            b = H0 + 8 * ks
            return [I(f"v_cvt_pk_bf16_f32 {vr(b + q)}, {vr(b + q)}, {vr(b + 4 + q)}", "valu") for q in range(4)]
        b = H0 + 24
        return [I(f"v_cvt_pk_bf16_f32 {vr(b)}, {vr(b)}, {vr(b + 1)}", "valu"),
                I(f"v_cvt_pk_bf16_f32 {vr(b + 1)}, {vr(b + 2)}, {vr(b + 3)}", "valu"),
                I(f"v_mov_b32 {vr(b + 2)}, 0", "valu"),
                I(f"v_mov_b32 {vr(b + 3)}, 0", "valu"),
                I(f"v_cndmask_b32_e64 {vr(b)}, {vr(b)}, 0.5, {sr(sMask, 2)}", "valu"),
                I(f"v_cndmask_b32_e64 {vr(b + 1)}, {vr(b + 1)}, 0, {sr(sMask, 2)}", "valu")]

    class Phase:
        def __init__(s, T0, n):
            s.T0, s.n = T0, n
            s.m = [None] * n; s.r = [None] * n
            s.sc = [[] for _ in range(n)]
            s.vx = [[] for _ in range(n)]

        def load(s, i):
            return len(s.vx[i])

    def spread(s, ph, ops, lo, hi, deadline_groups=None):
        n = hi - lo + 1
        base = [ph.load(i) for i in range(lo, hi + 1)]
        tot = sum(base) + len(ops)
        lvl = 0
        while sum(max(0, lvl - b) for b in base) < len(ops):
            lvl += 1
        cap = [max(0, lvl - b) for b in base]
        excess = sum(cap) - len(ops)
        idxs = [i for i in range(n) if cap[i] > 0]
        if excess > 0:
            step = len(idxs) / excess
            for e in range(excess):
                cap[idxs[int((e + 0.5) * step)]] -= 1
        k = 0
        for i in range(n):
            for _ in range(cap[i]):
                ph.vx[lo + i].append(ops[k]); k += 1
        assert k == len(ops)

    def build(s, kind):
        c = s.c
        LA = c.LA
        if kind == "g1first":
            Ts = list(range(0, 91))
        elif kind == "loop":
            Ts = list(range(91, 195)) + list(range(0, 91))
        else:
            Ts = list(range(91, 195))
        n = len(Ts)
        ph = s.Phase(Ts[0], n)
        ph.kind = kind
        ph.Ts = Ts
        pos = {T: i for i, T in enumerate(Ts)}
        first = kind == "g1first"
        last = kind == "g2last"
        for i, T in enumerate(Ts):
            ph.m[i] = s.slot_desc(T, first)[0]
            Tn = (T + LA) % 195
            if last and T + LA >= 195:
                ph.r[i] = None
            else:
                ph.r[i] = s.slot_desc(Tn, False)[1]

        def at(T):
            return pos.get(T % 195)

        groups = dict(c.dma)
        if last:
            for g in list(groups):
                if g not in ("G4", "L", "MX"):
                    del groups[g]
        m0_req = []
        dma_slots = []
        for g, (slots, arr) in groups.items():
            items = s.dma_items(g)
            assert len(items) == len(slots), g
            for (sc, v), T in zip(items, slots):
                i = at(T)
                if i is None:
                    continue
                ph.vx[i].append(v)
                dma_slots.append(i)
                if sc is not None:
                    m0_req.append((i, sc))
        dma_slots.sort()
        bars = [b for b in c.bars if at(b) is not None]
        if last:
            need = set()
            for g in ("G1", "G2", "G3", "G4", "L", "MX"):
                need.add(c.dma[g][1])
            bars = [b for b in bars if b in need or b == 91]
        fixed = {}
        for b in bars:
            i = at(b)
            ph.sc[i].append(I("s_barrier", "barrier"))
            arrivals = [g for g, (sl, arr) in c.dma.items() if arr == b]
            if last:
                arrivals = [g for g in arrivals if g in ("G1", "G2", "G3", "G4", "L", "MX")]
            if arrivals:
                w = I(None, "wait"); w.wait = dict(vm=arrivals, lg=True)
                j = i - 1
                if j < 0:
                    ph.pre_wait = w
                else:
                    ph.sc[j].append(w)
        if kind in ("g1first", "loop"):
            nb = (Ts[-1] + 1) % 195
            if nb in c.bars:
                arrivals = [g for g, (sl, arr) in c.dma.items() if arr == nb]
                if arrivals:
                    w = I(None, "wait"); w.wait = dict(vm=arrivals, lg=True)
                    ph.sc[n - 1].append(w)
        if first:
            for st in range(1, 13):
                fr = st if st < 10 else None
                if st == 9:
                    grp = ["X9", "X10", "X11", "X12"]
                elif st > 9:
                    continue
                else:
                    grp = [f"X{st}"]
                j = 7 * st - 1
                ex = [x for x in ph.sc[j] if x.kind == "wait"]
                if ex:
                    ex[0].wait["vm"] = ex[0].wait["vm"] + grp
                else:
                    w = I(None, "wait"); w.wait = dict(vm=grp, lg=True)
                    ph.sc[j].append(w)
        for i, sc in sorted(m0_req, key=lambda x: x[0]):
            prev = max([d for d in dma_slots if d < i], default=-1)
            placed = False
            for j in range(i, prev, -1):
                if j >= 0 and not ph.sc[j]:
                    ph.sc[j].append(sc); placed = True; break
            if not placed:
                ph.sc[i].append(sc)
        if kind == "loop":
            ph.loopctl = True
        def put(T, ins):
            i = at(T)
            if i is not None:
                ph.vx[i].append(ins)
        rdslot = lambda T: (T - LA) % 195
        put(rdslot(s.g1_slot_of(c.SWV - 1, 5)), I(f"v_add_u32 {vr(PV)}, {WIN}, {vr(PV)}", "valu"))
        if not last:
            if not first:
                put(rdslot(s.g1_slot_of(0, 5)), I(f"v_subrev_u32 {vr(PV)}, {WIN}, {vr(PV)}", "valu"))
        if not first:
            lastPU6 = max(s.g2_slot_of(6, t, k) for t in (0, 1) for k in range(3))
            put(rdslot(lastPU6), I(f"v_add_u32 {vr(PU)}, {WIN}, {vr(PU)}", "valu"))
            put(rdslot(s.g2_slot_of(6, 1, 3)), I(f"v_add_u32 {vr(PT)}, {vr(PT)}, {vr(D1)}", "valu"))
            if not last:
                put(rdslot(s.g2_slot_of(12, 1, 3)), I(f"v_subrev_u32 {vr(PU)}, {WIN}, {vr(PU)}", "valu"))
        if kind == "loop":
            put(0, I(f"v_accvgpr_read_b32 {vr(TMP)}, {ar(s.ST_D2)}", "valu"))
            put(1, I(f"v_add_u32 {vr(PT)}, {vr(PT)}, {vr(TMP)}", "valu"))
            put(2, I(f"v_add_u32 {vr(DU)}, {LSTR}, {vr(DU)}", "valu"))
        if kind in ("loop", "g1first"):
            put(86, I(f"v_add_u32 {vr(DV)}, {LSTR}, {vr(DV)}", "valu"))
        h0 = s.hcvt_ops(0); h1 = s.hcvt_ops(1); h2 = s.hcvt_ops(2); h3 = s.hcvt_ops(3)
        use = [s.g2_slot_of(0, 0, k) for k in range(4)]
        if kind in ("loop", "g1first"):
            for k, op in enumerate(h0):
                ph.vx[at(88 + k // 2)].append(op)
        if kind in ("loop", "g2last"):
            for ops, early, u in ((h1, 91, use[1]), (h2, 92, use[2]), (h3, 93, use[3])):
                lo = max(early, getattr(s, "_hlast", 91))
                hi = u - 2
                if lo > hi:
                    lo = early
                s.spread(ph, ops, at(lo), at(hi))
                s._hlast = hi + 1 if hi + 1 <= 195 else lo
            s._hlast = 91
        if kind == "loop":
            done = [max(s.g2_slot_of(f, t, 3) for t in (0, 1)) + 3 for f in range(3)]
            lo = max(done[1] if c.headint else done[0], use[3])
            ops = s.xfrag_ops(0) + s.xfrag_ops(1) + s.xfrag_ops(2)
            lo = max(lo, done[0])
            s.spread(ph, ops[:24], at(lo), at(lo + 39))
            s.spread(ph, ops[24:], at(max(lo + 40, done[2])), at(190))
            for f in range(3, 13):
                a0 = 7 + (76 * (f - 3) + 5) // 10
                a1 = 7 + (76 * (f - 2) + 5) // 10 - 1
                assert a0 >= 7 * (f - 2) and a1 <= 7 * f - 2, (f, a0, a1)
                s.spread(ph, s.xfrag_ops(f), at(a0), at(a1))
        if first:
            for f in range(0, 10):
                hi = min(7 * (f + 1) + 6, 83)
                lo = 7 * (f + 1)
                s.spread(ph, s.unpack_ops(f), at(lo), at(hi))
            s.spread(ph, s.unpack_ops(10) + s.unpack_ops(11) + s.unpack_ops(12), at(63), at(87))
        if last:
            put(92, I(f"v_accvgpr_read_b32 {vr(DV)}, {ar(s.ST_XA)}", "valu"))
            ph.tail = []
            prev = use[3] - 1
            for f in range(13):
                done = max(s.g2_slot_of(f, t, 3) for t in (0, 1)) + 3
                ops = s.xfrag_ops(f) + [I(f"buffer_store_dwordx4 {vr(xbuf(f), 4)}, {vr(DV)}, {sr(S_O, 4)}, {sr(sXo)} offen offset:{64 * f}", "store")]
                lo = max(done, prev + 1)
                hi = min(194, max(lo + 5, done + 7))
                if lo > 194 or f == 12:
                    if not ph.tail:
                        ph.tail.append(I("s_nop 5", "salu"))
                    ph.tail += ops
                    continue
                s.spread(ph, ops, at(lo), at(hi))
                prev = hi
        s.place_lg(ph)
        return ph

    def place_lg(s, ph):
        c = s.c
        n = ph.n
        has = [any(x.kind == "wait" for x in ph.sc[i]) for i in range(n)]
        i = 0
        lastw = -1
        j = -1
        while j < n - 1:
            cand = list(range(j + 1, min(j + c.NW, n - 1) + 1))
            nxt = None
            ex = [x for x in cand if has[x]]
            if ex:
                nxt = ex[0]
            else:
                fr = [x for x in cand if not ph.sc[x]]
                nxt = fr[-1] if fr else cand[-1]
                w = I(None, "wait"); w.wait = dict(vm=[], lg=True)
                ph.sc[nxt].insert(0, w) if not fr else ph.sc[nxt].append(w)
                has[nxt] = True
            j = nxt
            if j >= n - 1:
                break

    def lin(s, ph):
        out = []
        for i in range(ph.n):
            out.append(ph.m[i])
            sc = list(ph.sc[i])
            sc.sort(key=lambda x: {"wait": 0, "barrier": 1}.get(x.kind, 2))
            shadow = sc[:1]; rest = sc[1:]
            out += shadow
            pre = [x for x in rest if x.kind != "wait"]
            post = [x for x in rest if x.kind == "wait"]
            out += pre
            if getattr(ph, "loopctl", False) and i == ph.n - 1:
                out.append(I(f"s_sub_u32 {sr(sCnt)}, {sr(sCnt)}, 1", "salu"))
            if ph.r[i] is not None:
                out.append(ph.r[i])
            out += ph.vx[i]
            out += post
        out += getattr(ph, "tail", [])
        return out

    def prologue(s):
        c = s.c
        o = []
        S = lambda t: o.append(I(t, "salu"))
        V = lambda t: o.append(I(t, "valu"))
        t = [H0 + i for i in range(28)]
        S(f"s_cmp_ge_u32 s2, 256")
        S(f"s_cbranch_scc1 L_end")
        S(f"s_load_dwordx2 {sr(S_X, 2)}, s[0:1], 0")
        S(f"s_load_dwordx2 {sr(S_U, 2)}, s[0:1], 8")
        S(f"s_load_dwordx2 {sr(S_V, 2)}, s[0:1], 16")
        S(f"s_load_dwordx2 {sr(S_B, 2)}, s[0:1], 24")
        S(f"s_load_dwordx2 {sr(S_O, 2)}, s[0:1], 32")
        if c.stamps:
            S(f"s_load_dwordx2 {sr(sDbg, 2)}, s[0:1], 48")
            S(f"s_memtime s[60:61]")
        lane, w, g, m = t[0], t[1], t[2], t[3]
        V(f"v_lshrrev_b32 {vr(w)}, 6, v0")
        V(f"v_and_b32 {vr(lane)}, 63, v0")
        V(f"v_readfirstlane_b32 {sr(sW)}, {vr(w)}")
        V(f"v_lshrrev_b32 {vr(g)}, 4, {vr(lane)}")
        V(f"v_and_b32 {vr(m)}, 15, {vr(lane)}")
        j, q, x, y = t[4], t[5], t[6], t[7]
        V(f"v_lshrrev_b32 {vr(j)}, 3, {vr(lane)}")
        V(f"v_and_b32 {vr(q)}, 7, {vr(lane)}")
        V(f"v_lshrrev_b32 {vr(x)}, 2, {vr(j)}")
        V(f"v_and_b32 {vr(y)}, 3, {vr(j)}")
        V(f"v_lshlrev_b32 {vr(x)}, 2, {vr(x)}")
        V(f"v_add_u32 {vr(x)}, {vr(x)}, {vr(y)}")
        V(f"v_mul_u32_u24 {vr(x)}, {2 * 832}, {vr(x)}")
        V(f"v_lshrrev_b32 {vr(y)}, 1, {vr(j)}")
        V(f"v_xor_b32 {vr(y)}, {vr(y)}, {vr(q)}")
        V(f"v_lshl_add_u32 {vr(DV)}, {vr(y)}, 4, {vr(x)}")
        V(f"v_lshlrev_b32 {vr(DU)}, 4, {vr(lane)}")
        XA = t[8]
        V(f"v_mul_u32_u24 {vr(XA)}, 832, {vr(m)}")
        V(f"v_lshl_add_u32 {vr(XA)}, {vr(g)}, 4, {vr(XA)}")
        S(f"s_and_b32 {sr(sT0)}, {sr(sW)}, 1")
        S(f"s_lshr_b32 {sr(sT1)}, {sr(sW)}, 1")
        S(f"s_mul_i32 {sr(sVb)}, {sr(sT0)}, {SLOT}")
        S(f"s_mul_i32 {sr(sT2)}, {sr(sT1)}, 1088")
        S(f"s_add_u32 {sr(sVb)}, {sr(sVb)}, {sr(sT2)}")
        S(f"s_mul_i32 {sr(sVs0)}, {sr(sT0)}, {832 + 64}")
        S(f"s_mul_i32 {sr(sT2)}, {sr(sT1)}, {16 * 832}")
        S(f"s_add_u32 {sr(sVs0)}, {sr(sVs0)}, {sr(sT2)}")
        S(f"s_add_u32 {sr(sVs0 + 1)}, {sr(sVs0)}, {32 * 832}")
        S(f"s_add_u32 {sr(sVs0 + 2)}, {sr(sVs0)}, {64 * 832}")
        S(f"s_mul_i32 {sr(sWAs)}, {sr(sW)}, {16 * 832}")
        S(f"s_mul_i32 {sr(sWAm)}, {sr(sT1)}, {SLOT}")
        S(f"s_mul_i32 {sr(sT2)}, {sr(sT0)}, 1088")
        S(f"s_add_u32 {sr(sWAm)}, {sr(sWAm)}, {sr(sT2)}")
        S(f"s_add_u32 {sr(sWAm)}, {sr(sWAm)}, {Z + 4032 - 768}")
        S(f"s_mul_i32 {sr(sWBs)}, {sr(sT0)}, {16 * 832}")
        S(f"s_add_u32 {sr(sWBs)}, {sr(sWBs)}, {64 * 832}")
        S(f"s_add_u32 {sr(sWBm)}, {sr(sT2)}, {Z + 2 * SLOT + 4032 - 768}")
        S(f"s_lshl_b32 {sr(sT3)}, {sr(sW)}, 10")
        S(f"s_add_u32 {sr(sT6m)}, {sr(sT3)}, {T6}")
        S(f"s_add_u32 {sr(sT6s)}, {sr(sT3)}, {96 * 832 + LSTR}")
        S(f"s_add_u32 {sr(sLm)}, {sr(sT3)}, 81920")
        S(f"s_lshl_b32 {sr(sUm)}, {sr(sW)}, 12")
        S(f"s_add_u32 {sr(sMXs)}, {sr(sT3)}, {96 * 832 + LSTR + 4096}")
        S(f"s_add_u32 {sr(sMXm)}, {sr(sT3)}, {T6 + 4096}")
        S(f"s_cmp_eq_u32 {sr(sW)}, 3")
        S(f"s_cselect_b32 {sr(sMXs)}, 86016, {sr(sMXs)}")
        S(f"s_cselect_b32 {sr(sMXm)}, 86016, {sr(sMXm)}")
        S(f"s_lshl_b32 {sr(sXo)}, s2, 2")
        S(f"s_add_u32 {sr(sXo)}, {sr(sXo)}, {sr(sW)}")
        S(f"s_mul_i32 {sr(sXo)}, {sr(sXo)}, {16 * 832}")
        S(f"s_mov_b32 {sr(sMask)}, 0")
        S(f"s_mov_b32 {sr(sMask + 1)}, -1")
        S(f"s_mov_b32 {sr(sCnt)}, {c.nlayers - 2}")
        S(f"s_min_u32 {sr(sT2)}, {sr(sW)}, 2")
        S(f"s_lshl_b32 {sr(sT2)}, {sr(sT2)}, 10")
        S(f"s_add_u32 {sr(sT0)}, {sr(sT3)}, {96 * 832}")
        S(f"s_add_u32 {sr(sT1)}, {sr(sT2)}, {96 * 832 + 4096}")
        S(f"s_add_u32 {sr(sT2)}, {sr(sT2)}, {T6 + 4096}")
        bh, bt, bg, bl = t[9], t[10], t[11], t[12]
        V(f"v_min_u32 {vr(w)}, 2, {vr(w)}") if False else None
        S(f"s_min_u32 {sr(sT3)}, {sr(sW)}, 2")
        V(f"v_lshrrev_b32 {vr(bh)}, 5, {vr(lane)}")
        V(f"v_and_b32 {vr(bt)}, 1, {vr(g)}")
        V(f"v_lshl_add_u32 {vr(bh)}, {sr(sT3)}, 1, {vr(bh)}")
        rho = t[13]
        V(f"v_lshrrev_b32 {vr(x)}, 2, {vr(m)}")
        V(f"v_and_b32 {vr(y)}, 3, {vr(m)}")
        V(f"v_lshlrev_b32 {vr(x)}, 2, {vr(x)}")
        V(f"v_add_u32 {vr(x)}, {vr(x)}, {vr(y)}")
        V(f"v_lshlrev_b32 {vr(rho)}, 1, {vr(x)}")
        V(f"v_add_u32 {vr(x)}, {vr(rho)}, {vr(bt)}")
        V(f"v_mul_u32_u24 {vr(bg)}, 832, {vr(bh)}")
        V(f"v_lshl_add_u32 {vr(bg)}, {vr(x)}, 1, {vr(bg)}")
        V(f"v_mul_u32_u24 {vr(bl)}, 336, {vr(bh)}")
        V(f"v_mul_u32_u24 {vr(x)}, 208, {vr(bt)}")
        V(f"v_add_u32 {vr(bl)}, {vr(bl)}, {vr(x)}")
        V(f"v_lshl_add_u32 {vr(bl)}, {vr(m)}, 3, {vr(bl)}")
        V(f"v_add_u32 {vr(bl)}, {Z}, {vr(bl)}")
        V(f"v_mul_u32_u24 {vr(x)}, 208, {vr(rho)}")
        V(f"v_lshl_add_u32 {vr(PU)}, {vr(g)}, 4, {vr(x)}")
        V(f"v_lshl_add_u32 {vr(x)}, {vr(g)}, 3, {vr(x)}")
        V(f"v_add_u32 {vr(x)}, 192, {vr(x)}")
        V(f"v_lshlrev_b32 {vr(y)}, 3, {vr(m)}")
        V(f"v_add_u32 {vr(y)}, {Z}, {vr(y)}")
        V(f"v_cndmask_b32_e64 {vr(PT)}, {vr(x)}, {vr(y)}, {sr(sMask, 2)}")
        V(f"v_mov_b32 {vr(x)}, {WIN}")
        V(f"v_mov_b32 {vr(y)}, 2016")
        V(f"v_cndmask_b32_e64 {vr(D1)}, {vr(x)}, {vr(y)}, {sr(sMask, 2)}")
        V(f"v_mov_b32 {vr(x)}, {(-WIN) & 0xFFFFFFFF}")
        V(f"v_mov_b32 {vr(y)}, {(-1680) & 0xFFFFFFFF}")
        V(f"v_cndmask_b32_e64 {vr(x)}, {vr(x)}, {vr(y)}, {sr(sMask, 2)}")
        V(f"v_accvgpr_write_b32 {ar(s.ST_D2)}, {vr(x)}")
        V(f"v_accvgpr_write_b32 {ar(s.ST_XA)}, {vr(XA)}")
        V(f"v_and_b32 {vr(x)}, 7, {vr(m)}")
        V(f"v_lshrrev_b32 {vr(y)}, 1, {vr(x)}")
        V(f"v_xor_b32 {vr(y)}, {vr(y)}, {vr(g)}")
        V(f"v_lshlrev_b32 {vr(y)}, 4, {vr(y)}")
        V(f"v_lshl_add_u32 {vr(y)}, {vr(x)}, 7, {vr(y)}")
        V(f"v_lshrrev_b32 {vr(x)}, 3, {vr(m)}")
        V(f"v_mul_u32_u24 {vr(x)}, 1088, {vr(x)}")
        V(f"v_add_u32 {vr(y)}, {vr(y)}, {vr(x)}")
        V(f"v_add_u32 {vr(PV)}, {WIN}, {vr(y)}")
        V(f"v_lshrrev_b32 {vr(x)}, 3, {vr(m)}")
        V(f"v_mul_u32_u24 {vr(x)}, 12, {vr(x)}")
        V(f"v_xor_b32 {vr(x)}, {vr(x)}, {vr(m)}")
        V(f"v_mul_u32_u24 {vr(x)}, 832, {vr(x)}")
        V(f"v_lshl_add_u32 {vr(x)}, {vr(g)}, 4, {vr(x)}")
        V(f"v_add_u32 {vr(PV6)}, {T6}, {vr(x)}")
        XAk, bgk, blk = XF + 8, XF + 9, XF + 10
        XAk, bgk, blk = TMP, t[27], t[26]
        V(f"v_mov_b32 {vr(XAk)}, {vr(XA)}")
        V(f"v_mov_b32 {vr(bgk)}, {vr(bg)}")
        V(f"v_mov_b32 {vr(blk)}, {vr(bl)}")
        for i in range(26):
            V(f"v_mov_b32 {vr(H0 + i)}, 0")
        S("s_waitcnt lgkmcnt(0)")
        if c.stamps:
            S(f"s_memtime s[62:63]")
        for base, n in ((S_X, 16384 * 832), (S_U, NL * LSTR), (S_V, NL * LSTR), (S_B, NL * 832), (S_O, 16384 * 832)):
            S(f"s_mov_b32 {sr(base + 2)}, {n}")
            S(f"s_mov_b32 {sr(base + 3)}, 0x20000")
        S(f"s_cmp_eq_u32 {sr(sW)}, 3")
        S(f"s_cselect_b32 {sr(S_M)}, {sr(S_U)}, {sr(S_V)}")
        S(f"s_cselect_b32 {sr(S_M + 1)}, {sr(S_U + 1)}, {sr(S_V + 1)}")
        S(f"s_mov_b32 {sr(S_M + 2)}, {NL * LSTR}")
        S(f"s_mov_b32 {sr(S_M + 3)}, 0x20000")

        def dma(g):
            for sc, v in s.dma_items(g):
                if sc is not None:
                    o.append(sc)
                    o.append(I("s_nop 0", "salu"))
                o.append(v)

        def xload(f):
            dst = xo(f, 0) if f < 10 else xbuf(f)
            o.append(I(f"buffer_load_dwordx4 {vr(dst, 4)}, {vr(XAk)}, {sr(S_X, 4)}, {sr(sXo)} offen offset:{64 * f}", "vload", grp=f"X{f}"))

        dma("WA"); dma("WB"); dma("V0")
        S(f"s_mov_b32 m0, {sr(sT6m)}"); S("s_nop 0")
        o.append(I(f"buffer_load_dwordx4 {vr(DU)}, {sr(S_V, 4)}, {sr(sT0)} offen lds", "dma", grp="T6"))
        S(f"s_mov_b32 m0, {sr(sT2)}"); S("s_nop 0")
        o.append(I(f"buffer_load_dwordx4 {vr(DU)}, {sr(S_V, 4)}, {sr(sT1)} offen lds", "dma", grp="T6b"))
        xload(0); xload(1)
        for p in range(13):
            o.append(I(f"buffer_load_short_d16_hi {vr(H0 + 2 * p)}, {vr(bgk)}, {sr(S_B, 4)}, 0 offen offset:{64 * p}", "vload", grp="BI"))
        dma("V1"); xload(2); xload(3)
        dma("V2"); xload(4); xload(5)
        dma("V3"); xload(6); xload(7)
        dma("V4")
        for f in range(8, 13):
            xload(f)
        for i in range(104):
            V(f"v_mov_b32 {vr(C0 + i)}, 1.0")
        for e in range(6):
            V(f"v_accvgpr_write_b32 {ar(s.TR0 + 4 * e + 2)}, 0")
            V(f"v_accvgpr_write_b32 {ar(s.TR0 + 4 * e + 3)}, 0")
        w = I(None, "wait"); w.wait = dict(vm=["BI"], lg=False); o.append(w)
        for p in range(13):
            imm = SLOT * (p % 7) + (2016 if p >= 7 else 0)
            o.append(I(f"ds_write_b64 {vr(blk)}, {vr(H0 + 2 * p, 2)} offset:{imm}", "dsw"))
        w = I(None, "wait"); w.wait = dict(vm=["WA", "WB", "V0", "T6", "T6b", "X0"], lg=False, lg0=True); o.append(w)
        o.append(I("s_barrier", "barrier"))
        if c.stamps:
            S(f"s_memtime s[64:65]")
            S("s_waitcnt lgkmcnt(0)")
        for T in range(c.LA):
            o.append(s.slot_desc(T, True)[1])
            if T == s.g1_slot_of(0, 5):
                o.append(I(f"v_subrev_u32 {vr(PV)}, {WIN}, {vr(PV)}", "valu"))
        w = I(None, "wait"); w.wait = dict(vm=[], lg=True); o.append(w)
        return o

    def resolve(s, trace):
        res = {}
        vm_idx = []
        lastgrp = {}
        nvm = 0
        nds = 0
        areg_ds = {}
        inst = []
        for pos, x in enumerate(trace):
            if x.kind in ("dma", "vload", "store"):
                nvm += 1
                if x.grp:
                    lastgrp[x.grp] = nvm
            elif x.kind in ("dsr", "dsw"):
                if x.kind == "dsr":
                    areg_ds[x.areg] = nds
                nds += 1
            elif x.kind == "wait":
                vmN = None
                if x.wait["vm"]:
                    need = 0
                    for g in x.wait["vm"]:
                        if g not in lastgrp:
                            continue
                        need = max(need, lastgrp[g])
                    vmN = nvm - need
                inst.append((pos, x, vmN, nds))
            elif x.kind == "mfma":
                x_need = areg_ds.get(x.areg)
                assert x_need is not None, x.txt
                trace_need.append(x_need) if False else None
        need_at = [None] * len(trace)
        areg_ds = {}; nds = 0
        for pos, x in enumerate(trace):
            if x.kind in ("dsr", "dsw"):
                if x.kind == "dsr":
                    areg_ds[x.areg] = nds
                nds += 1
            elif x.kind == "mfma":
                need_at[pos] = areg_ds[x.areg]
        lgw = [(pos, x, vmN, nds_) for (pos, x, vmN, nds_) in inst if x.wait["lg"] or x.wait.get("lg0")]
        lgN = {}
        for k, (pos, x, vmN, nds_) in enumerate(lgw):
            end = lgw[k + 1][0] if k + 1 < len(lgw) else len(trace)
            need = [need_at[p] for p in range(pos, end) if need_at[p] is not None]
            if x.wait.get("lg0"):
                N = 0
            elif need:
                mx = max(need)
                assert mx < nds_, ("read issued after its wait", pos, x.wait)
                N = nds_ - 1 - mx
            else:
                N = None
            lgN[pos] = N
        for (pos, x, vmN, nds_) in inst:
            r = res.setdefault(id(x), dict(x=x, vm=None, lg=None))
            if vmN is not None:
                r["vm"] = vmN if r["vm"] is None else min(r["vm"], vmN)
            N = lgN.get(pos)
            if N is not None:
                r["lg"] = N if r["lg"] is None else min(r["lg"], N)
        for r in res.values():
            x = r["x"]; parts = []
            if r["vm"] is not None:
                assert r["vm"] <= 63
                parts.append(f"vmcnt({r['vm']})")
            if r["lg"] is not None:
                parts.append(f"lgkmcnt({min(r['lg'], 15)})")
            x.txt = ("s_waitcnt " + " ".join(parts)) if parts else None
            x.cmt = ",".join(x.wait["vm"])

    def kernel(s):
        c = s.c
        pro = s.prologue()
        g1f = s.lin(s.build("g1first"))
        loop = s.lin(s.build("loop"))
        g2l = s.lin(s.build("g2last"))
        trace = pro + g1f + loop * (c.nlayers - 1) + g2l
        s.resolve(trace)
        L = []
        A = L.append
        hdr = open("standalone__cross_network_dcn_v2__recsys.s.ref").read().split("\n")
        for ln in hdr:
            if ln.startswith("; @launch"):
                A(f"; @launch grid=(256,1,1) block=(256,1,1) lds={LDS}")
            elif ln.startswith(";"):
                A(ln)
            else:
                break
        A('.amdgcn_target "amdgcn-amd-amdhsa--gfx950"')
        A(".text"); A(f".globl {KN}"); A(".p2align 8"); A(f".type {KN},@function"); A(f"{KN}:")

        def emit(lst):
            for x in lst:
                if x.txt is None:
                    continue
                A("  " + x.txt + (f"   ; {x.cmt}" if x.cmt else ""))
        emit(pro)
        A("; ---- G1 first"); emit(g1f)
        A("; ---- loop"); A("L_loop:"); emit(loop)
        A("  s_cbranch_scc0 L_loop")
        A("; ---- G2 last"); emit(g2l)
        if c.stamps:
            A("  s_memtime s[66:67]")
            A("  s_waitcnt lgkmcnt(0)")
            for k, reg in enumerate((62, 64, 66)):
                A(f"  s_sub_u32 s{reg}, s{reg}, s60")
            A(f"  s_mov_b32 s{sDbg + 2}, 0x100000"); A(f"  s_mov_b32 s{sDbg + 3}, 0x20000")
            A(f"  s_lshl_b32 s68, s2, 2"); A(f"  s_add_u32 s68, s68, s{sW}"); A("  s_lshl_b32 s68, s68, 4")
            A("  v_mov_b32 v0, s62"); A("  v_mov_b32 v1, s64"); A("  v_mov_b32 v2, s66"); A("  v_mov_b32 v3, s60")
            A("  v_mov_b32 v4, 0")
            A(f"  buffer_store_dwordx4 v[0:3], v4, s[{sDbg}:{sDbg + 3}], s68 offen")
        A("L_end:"); A("  s_endpgm")
        A('.section .rodata,"a"'); A(".p2align 6"); A(f".amdhsa_kernel {KN}")
        nv = 256 + s.NA
        A(f"  .amdhsa_next_free_vgpr {nv}"); A("  .amdhsa_next_free_sgpr 102"); A("  .amdhsa_accum_offset 256")
        A("  .amdhsa_group_segment_fixed_size 0"); A("  .amdhsa_kernarg_size 56"); A("  .amdhsa_user_sgpr_count 2")
        A("  .amdhsa_user_sgpr_kernarg_segment_ptr 1"); A("  .amdhsa_system_sgpr_workgroup_id_x 1"); A(".end_amdhsa_kernel")
        s.sizes = dict(pro=len(pro), g1f=len(g1f), loop=len(loop), g2l=len(g2l))
        s.parts = dict(pro=pro, g1f=g1f, loop=loop, g2l=g2l)
        return "\n".join(L) + "\n"


def est_cycles(lst):
    cyc = 0; sc = 0; vc = 0; started = False
    for x in lst:
        if x.txt is None:
            continue
        if x.kind == "mfma":
            if started:
                cyc += 16 + 4 * (max(0, sc - 1) + max(0, vc - 2))
            started = True; sc = 0; vc = 0
        elif x.kind in ("salu", "wait", "barrier"):
            sc += 1
        else:
            vc += 1
    cyc += 16 + 4 * (max(0, sc - 1) + max(0, vc - 2))
    return cyc


if __name__ == "__main__":
    cfg = Cfg()
    out = "standalone__cross_network_dcn_v2__recsys.s"
    for a in sys.argv[1:]:
        if "=" in a:
            k, v = a.split("=", 1)
            if k == "out":
                out = v
            else:
                setattr(cfg, k, eval(v))
    g = Gen(cfg)
    txt = g.kernel()
    open(out, "w").write(txt)
    print("sizes", g.sizes, {k: est_cycles(v) for k, v in g.parts.items() if k != "pro"})
```

```python
import sys, json

KN = "standalone__cross_network_dcn_v2__recsys_kernel"
NL = 6
SLOT = 6656
WIN = 7 * SLOT
Z = 87040
T6 = Z + 6 * SLOT + 4032
LDS = 138240
ZR = 138240
LSTR = 86528
C0, X0, H0, XF = 0, 104, 208, 236
TMP, PV, PV6, PU, PT, DV, DU, D1 = 248, 249, 250, 251, 252, 253, 254, 255
S_X, S_U, S_V, S_B, S_O, S_M = 8, 12, 16, 20, 24, 28
(sW, sVb, sVs0, sVs1, sVs2, sWAs, sWAm, sWBs, sWBm, sT6s, sT6m, sMXs, sMXm, sUm, sLm, sCnt,
 sXo, sT0, sT1, sT2, sT3) = range(32, 53)
sMask = 54
sDbg = 56


class Cfg:
    LA = 12
    RING = 13
    NW = 4
    SWV = 8
    headint = True
    bars = [2, 20, 34, 54, 68, 91, 111, 131, 147, 163, 179]
    dma = {
        "V5": ([3, 7, 11], 54),
        "G0": ([21, 25, 29, 33], 68),
        "G1": ([37, 41, 45, 49], 91),
        "G2": ([55, 59, 63, 67], 111),
        "G3": ([71, 75, 79, 83], 131),
        "G4": ([92, 96, 100, 104], 147),
        "L": ([108], 163),
        "MX": ([113], 163),
        "T6": ([117], 179),
        "WA": ([121], 179),
        "WB": ([125], 179),
        "V0": ([132, 136, 140], 179),
        "V1": ([144, 148, 152], 2),
        "V2": ([156, 160, 164], 2),
        "V3": ([168, 172, 176], 20),
        "V4": ([180, 184, 188], 34),
    }
    stamps = False
    bars1 = [2, 14, 28, 42, 54, 68]
    dma1 = {
        "V1": ([], 2), "V2": ([], 14),
        "V3": ([0, 3, 6], 28), "V4": ([9, 12, 15], 42), "V5": ([18, 21, 24], 54),
        "G0": ([29, 32, 35, 38], 68), "G1": ([43, 46, 49, 52], 91),
        "G2": ([55, 59, 63, 67], 111), "G3": ([71, 75, 79, 83], 131),
    }
    p3order = "V0 WA WB T6 T6b X0 X1 BI PW V1 X2 X3 X4 V2 X5 X6 X7 X8 X9 X10 X11 X12"
    x0wait = 0
    delayb = 0
    tail16 = False
    zrow = False
    stwin = 0
    bias_in = False
    otmod = ""
    keep = ()
    keepmod = " sc1"
    keepld = False
    otouch = None
    xin = {}
    pl = ()
    pl1 = ()
    pw1 = ()
    p3start = 8
    p3k = 8
    pro = 2
    bi_early = True
    bias_at = (14, 60)
    pf_code = False
    delay = 0
    delay0 = 0
    delaym = 0
    lphase = "loop"
    wvloop = False
    wshift = (0, 1, 2, 3)
    lstamps = None
    dma_first = False
    dmamod = ""
    stmod = ""
    stsplit = 13
    stmod2 = ""
    stpat = ""
    xmod = ""
    pmod = ""
    dmamod0 = None
    dbg = False
    drop = ()
    pf_w = False
    nlayers = NL
    dly_bit = None
    alt = None
    alt_bit = 3
    dmaw = None
    g1mode = "k"
    headn = 2
    g2chain = False
    _hdr = False
    pf_slice = 0
    pf_bytes = 18432
    nost_bit = None
    drophalf = 0


class I:
    __slots__ = ("txt", "kind", "grp", "areg", "wait", "cmt")

    def __init__(s, txt, kind, grp=None, areg=None, cmt=None):
        s.txt, s.kind, s.grp, s.areg, s.cmt = txt, kind, grp, areg, cmt
        s.wait = None


def vr(a, n=1):
    return f"v{a}" if n == 1 else f"v[{a}:{a + n - 1}]"


def ar(a, n=1):
    return f"a{a}" if n == 1 else f"a[{a}:{a + n - 1}]"


def sr(a, n=1):
    return f"s{a}" if n == 1 else f"s[{a}:{a + n - 1}]"


def cpos(p, tau):
    return C0 + 8 * p + 4 * tau


def xe(p, q):
    return X0 + 8 * p + q


def xo(p, q):
    return X0 + 8 * p + 4 + q


def xbuf(f):
    return XF + 4 * (f % 3)


class Gen:
    def __init__(s, cfg):
        s.c = cfg
        s.TR0 = 4 * cfg.RING
        s.ST = s.TR0 + 24
        s.ST_XA, s.ST_D2 = s.ST, s.ST + 1
        s.NA = s.ST + 12

    def g1_order(s, ks):
        return [1, 3, 5, 0, 2, 4, 6] if ks == 0 else list(range(7))

    def g1_seq(s):
        if getattr(s, "_seq", None) is None:
            if s.c.g1mode == "k":
                q = [(st, t) for st in range(13) for t in s.g1_order(st)]
            else:
                q = [(0, 1), (0, 3), (0, 5)]
                for j in range(5):
                    for t in (0, 2, 4, 6):
                        q += [(2 * j, t), (2 * j + 1, t)]
                    for t in (1, 3, 5):
                        q += [(2 * j + 1, t), (2 * j + 2, t)]
                for t in (2, 4, 6, 0):
                    q += [(10, t), (11, t)]
                q += [(12, 0), (11, 1), (12, 1), (12, 2), (11, 3), (12, 3), (12, 4), (11, 5), (12, 5), (12, 6)]
            assert len(q) == 91 and len(set(q)) == 91
            s._seq = q
        return s._seq

    def fuse(s, f):
        u = [i for i, (st, t) in enumerate(s.g1_seq()) if st == f]
        return u[0], u[-1]

    def pv_switch(s):
        return s.g1_slot_of(s.c.SWV - 1, 5) if s.c.g1mode == "k" else s.g1_slot_of(8, 5)

    def g2_order(s):
        o = []
        p0 = 0
        if s.c.headint:
            for ks in range(4):
                for p in range(s.c.headn):
                    for tau in (0, 1):
                        o.append((p, tau, ks))
            p0 = s.c.headn
        for p in range(p0, 13):
            if s.c.g2chain:
                for tau in (0, 1):
                    for ks in range(4):
                        o.append((p, tau, ks))
                continue
            for ks in range(4):
                for tau in (0, 1):
                    o.append((p, tau, ks))
        return o

    def ring(s, T):
        return 4 * (T % s.c.RING)

    def slot_desc(s, T, first=False):
        c = s.c
        if T < 91:
            st, t = s.g1_seq()[T]
            a = s.ring(T)
            if t < 6:
                ks, tau = t >> 1, t & 1
                if tau == 0:
                    if st < 12:
                        k = 2 * (st >> 1); ab = SLOT * (k + 1) + 2112 * ks + 64 * (st & 1); grp = f"V{k >> 1}"
                    else:
                        ab = Z + SLOT * ks + 4032; grp = "W"
                else:
                    if st == 0:
                        ab = Z + SLOT * ks + 4032 + 64; grp = "W"
                    else:
                        j = (st - 1) >> 1; k = 2 * j + 1
                        ab = SLOT * (k + 1) + 2112 * ks + 64 * ((st - 1) & 1); grp = f"V{j}"
                high = T > s.pv_switch() or (st == 0 and tau == 1)
                imm = ab - (WIN if high else 0)
                assert 0 <= imm < 65536, (T, imm)
                rd = I(f"ds_read_b128 {ar(a, 4)}, {vr(PV)} offset:{imm}", "dsr", areg=a)
            else:
                rd = I(f"ds_read_b128 {ar(a, 4)}, {vr(PV6)} offset:{64 * st}", "dsr", areg=a)
            D = H0 + 4 * t
            if first:
                B = xo(st, 0) if st < 10 else xbuf(st)
            else:
                B = xbuf(st)
            Cc = "0" if st == 0 else vr(D, 4)
            mf = I(f"v_mfma_f32_16x16x32_bf16 {vr(D, 4)}, {ar(a, 4)}, {vr(B, 4)}, {Cc}", "mfma", areg=a)
            return mf, rd
        p, tau, ks = s.g2_order()[T - 91]
        D = cpos(p, tau)
        if ks < 3:
            a = s.ring(T)
            imm = SLOT * (p % 7) + 208 * tau + 64 * ks
            rd = I(f"ds_read_b128 {ar(a, 4)}, {vr(PU)} offset:{imm}", "dsr", areg=a)
            B = H0 + 8 * ks
        else:
            a = s.TR0 + 4 * (2 * (p % 3) + tau)
            imm = SLOT * (p % 7) + 208 * tau
            rd = I(f"ds_read_b64 {ar(a, 2)}, {vr(PT)} offset:{imm}", "dsr", areg=a)
            B = H0 + 24
        if ks == 3 and c.tail16:
            mf = I(f"v_mfma_f32_16x16x16_bf16 {vr(D, 4)}, {ar(a, 2)}, {vr(B, 2)}, {vr(D, 4)}", "mfma", areg=a)
        else:
            mf = I(f"v_mfma_f32_16x16x32_bf16 {vr(D, 4)}, {ar(a, 4)}, {vr(B, 4)}, {vr(D, 4)}", "mfma", areg=a)
        return mf, rd

    def g2_slot_of(s, p, tau, ks):
        return 91 + s.g2_order().index((p, tau, ks))

    def g1_slot_of(s, st, t):
        return s.g1_seq().index((st, t))

    def dma_items(s, g):
        V = lambda txt: I(txt.replace(" lds", getattr(s, "_dm", s.c.dmamod) + " lds"), "dma", grp=g)
        S = lambda txt: I(txt, "salu")
        if g[0] == "V":
            j = int(g[1]); out = []
            for ks in range(3):
                out.append((S(f"s_add_u32 m0, {sr(sVb)}, {13184 * j + 2112 * ks + SLOT}"),
                            V(f"buffer_load_dwordx4 {vr(DV)}, {sr(S_V, 4)}, {sr(sVs0 + ks)} offen offset:{128 * j} lds")))
            return out
        if g[0] == "G":
            n = int(g[1]); out = []
            for i in range(4):
                sc = S(f"s_add_u32 m0, {sr(sUm)}, {16384 * n}") if i == 0 else None
                out.append((sc, V(f"buffer_load_dwordx4 {vr(DU)}, {sr(S_U, 4)}, m0 offen offset:{1024 * i} lds")))
            return out
        if g == "L":
            return [(S(f"s_mov_b32 m0, {sr(sLm)}"), V(f"buffer_load_dwordx4 {vr(DU)}, {sr(S_U, 4)}, m0 offen lds"))]
        if g == "MX":
            return [(S(f"s_mov_b32 m0, {sr(sMXm)}"), V(f"buffer_load_dwordx4 {vr(DU)}, {sr(S_M, 4)}, {sr(sMXs)} offen lds"))]
        if g == "T6":
            return [(S(f"s_mov_b32 m0, {sr(sT6m)}"), V(f"buffer_load_dwordx4 {vr(DU)}, {sr(S_V, 4)}, {sr(sT6s)} offen lds"))]
        if g == "WA":
            return [(S(f"s_mov_b32 m0, {sr(sWAm)}"), V(f"buffer_load_dwordx4 {vr(DV)}, {sr(S_V, 4)}, {sr(sWAs)} offen offset:768 lds"))]
        if g == "WB":
            return [(S(f"s_mov_b32 m0, {sr(sWBm)}"), V(f"buffer_load_dwordx4 {vr(DV)}, {sr(S_V, 4)}, {sr(sWBs)} offen offset:768 lds"))]
        raise KeyError(g)

    def xfrag_ops(s, f, dst=None):
        b = xbuf(f) if dst is None else dst
        o = []
        for q in range(4):
            o.append(I(f"v_mul_f32 {vr(b + q)}, {vr(xe(f, q))}, {vr(cpos(f, 0) + q)}", "valu"))
            o.append(I(f"v_mul_f32 {vr(TMP)}, {vr(xo(f, q))}, {vr(cpos(f, 1) + q)}", "valu"))
            o.append(I(f"v_cvt_pk_bf16_f32 {vr(b + q)}, {vr(b + q)}, {vr(TMP)}", "valu"))
        return o

    def unpack_ops(s, f):
        src = xo(f, 0) if f < 10 else xbuf(f)
        o = []
        for q in range(4):
            o.append(I(f"v_lshlrev_b32 {vr(xe(f, q))}, 16, {vr(src + q)}", "valu"))
            o.append(I(f"v_and_b32 {vr(xo(f, q))}, 0xffff0000, {vr(src + q)}", "valu"))
        return o

    def hcvt_ops(s, ks):
        if ks < 3:
            b = H0 + 8 * ks
            return [I(f"v_cvt_pk_bf16_f32 {vr(b + q)}, {vr(b + q)}, {vr(b + 4 + q)}", "valu") for q in range(4)]
        b = H0 + 24
        o = [I(f"v_cvt_pk_bf16_f32 {vr(b)}, {vr(b)}, {vr(b + 1)}", "valu"),
             I(f"v_cvt_pk_bf16_f32 {vr(b + 1)}, {vr(b + 2)}, {vr(b + 3)}", "valu")]
        if not s.c.tail16:
            o += [I(f"v_mov_b32 {vr(b + 2)}, 0", "valu"), I(f"v_mov_b32 {vr(b + 3)}, 0", "valu")]
        o.append(I(f"v_cndmask_b32_e64 {vr(b)}, {vr(b)}, 0.5, {sr(sMask, 2)}", "valu"))
        if not s.c.zrow:
            o.append(I(f"v_cndmask_b32_e64 {vr(b + 1)}, {vr(b + 1)}, 0, {sr(sMask, 2)}", "valu"))
        return o

    class Phase:
        def __init__(s, T0, n):
            s.T0, s.n = T0, n
            s.m = [None] * n; s.r = [None] * n
            s.sc = [[] for _ in range(n)]
            s.vx = [[] for _ in range(n)]

        def load(s, i):
            return len(s.vx[i])

    def spread(s, ph, ops, lo, hi, deadline_groups=None):
        n = hi - lo + 1
        base = [ph.load(i) for i in range(lo, hi + 1)]
        tot = sum(base) + len(ops)
        lvl = 0
        while sum(max(0, lvl - b) for b in base) < len(ops):
            lvl += 1
        cap = [max(0, lvl - b) for b in base]
        excess = sum(cap) - len(ops)
        idxs = [i for i in range(n) if cap[i] > 0]
        if excess > 0:
            step = len(idxs) / excess
            for e in range(excess):
                cap[idxs[int((e + 0.5) * step)]] -= 1
        k = 0
        for i in range(n):
            for _ in range(cap[i]):
                ph.vx[lo + i].append(ops[k]); k += 1
        assert k == len(ops)

    def build(s, kind, wave=None):
        c = s.c
        LA = c.LA
        if kind == "g1first":
            Ts = list(range(0, 91))
        elif kind == "loop":
            Ts = list(range(91, 195)) + list(range(0, 91))
        else:
            Ts = list(range(91, 195))
        n = len(Ts)
        ph = s.Phase(Ts[0], n)
        ph.kind = kind
        ph.Ts = Ts
        pos = {T: i for i, T in enumerate(Ts)}
        first = kind == "g1first"
        last = kind == "g2last"
        for i, T in enumerate(Ts):
            ph.m[i] = s.slot_desc(T, first)[0]
            Tn = (T + LA) % 195
            if last and T + LA >= 195:
                ph.r[i] = None
            else:
                ph.r[i] = s.slot_desc(Tn, False)[1]

        def at(T):
            return pos.get(T % 195)

        p3 = first and c.pro == 3
        s._dm = c.dmamod0 if (first and c.dmamod0 is not None) else c.dmamod
        cdma = c.dma1 if p3 else c.dma
        cbars = c.bars1 if p3 else c.bars
        groups = dict(cdma)
        if last:
            for g in list(groups):
                if g not in ("G4", "L", "MX"):
                    del groups[g]
        m0_req = []
        dma_slots = []
        for g, (slots, arr) in groups.items():
            items = s.dma_items(g)
            if not slots:
                continue
            assert len(items) == len(slots), g
            ovr = wave is not None and c.dmaw and g in c.dmaw[wave]
            if ovr:
                slots = c.dmaw[wave][g]
            for (sc, v), T in zip(items, slots):
                if wave is not None and not ovr:
                    T = T + c.wshift[wave]
                i = at(T)
                if i is None:
                    continue
                ph.vx[i].append(v)
                dma_slots.append(i)
                if sc is not None:
                    m0_req.append((i, sc))
        dma_slots.sort()
        bars = [b for b in cbars if at(b) is not None]
        if last:
            need = set()
            for g in ("G1", "G2", "G3", "G4", "L", "MX"):
                need.add(c.dma[g][1])
            bars = [b for b in bars if b in need or b == 91]
        fixed = {}
        for b in bars:
            i = at(b)
            ph.sc[i].append(I("s_barrier", "barrier"))
            arrivals = [g for g, (sl, arr) in cdma.items() if arr == b]
            if last:
                arrivals = [g for g in arrivals if g in ("G1", "G2", "G3", "G4", "L", "MX")]
            if arrivals:
                w = I(None, "wait"); w.wait = dict(vm=arrivals, lg=True)
                j = i - 1
                if j < 0:
                    ph.pre_wait = w
                else:
                    ph.sc[j].append(w)
        if kind in ("g1first", "loop"):
            nb = (Ts[-1] + 1) % 195
            if nb in c.bars:
                arrivals = [g for g, (sl, arr) in c.dma.items() if arr == nb]
                if arrivals:
                    w = I(None, "wait"); w.wait = dict(vm=arrivals, lg=True)
                    ph.sc[n - 1].append(w)
        if first:
            for st in range(1, 13):
                fr = st if st < 10 else None
                if p3:
                    grp = [f"X{st}"]
                elif st == 9:
                    grp = ["X9", "X10", "X11", "X12"]
                elif st > 9:
                    continue
                else:
                    grp = [f"X{st}"]
                if (c.pro == 2 or (p3 and c.bias_in)) and s.fuse(st)[0] - 1 < c.bias_at[0] <= (s.fuse(st + 1)[0] if st < 12 else 91) - 1:
                    grp = grp + ["BI"]
                j = s.fuse(st)[0] - 1
                ex = [x for x in ph.sc[j] if x.kind == "wait"]
                if ex:
                    ex[0].wait["vm"] = ex[0].wait["vm"] + grp
                else:
                    w = I(None, "wait"); w.wait = dict(vm=grp, lg=True)
                    ph.sc[j].append(w)
        for i, sc in sorted(m0_req, key=lambda x: x[0]):
            prev = max([d for d in dma_slots if d < i], default=-1)
            placed = False
            for j in range(i, prev, -1):
                if j >= 0 and not ph.sc[j]:
                    ph.sc[j].append(sc); placed = True; break
            if not placed:
                ph.sc[i].append(sc)
        if kind == "loop":
            ph.loopctl = True
        def put(T, ins):
            i = at(T)
            if i is not None:
                ph.vx[i].append(ins)
        rdslot = lambda T: (T - LA) % 195
        put(rdslot(s.pv_switch()), I(f"v_add_u32 {vr(PV)}, {WIN}, {vr(PV)}", "valu"))
        if not last:
            if not first:
                put(rdslot(s.g1_slot_of(0, 5)), I(f"v_subrev_u32 {vr(PV)}, {WIN}, {vr(PV)}", "valu"))
        if not first:
            lastPU6 = max(s.g2_slot_of(6, t, k) for t in (0, 1) for k in range(3))
            put(rdslot(lastPU6), I(f"v_add_u32 {vr(PU)}, {WIN}, {vr(PU)}", "valu"))
            put(rdslot(s.g2_slot_of(6, 1, 3)), I(f"v_add_u32 {vr(PT)}, {vr(PT)}, {vr(D1)}", "valu"))
            if not last:
                put(rdslot(s.g2_slot_of(12, 1, 3)), I(f"v_subrev_u32 {vr(PU)}, {WIN}, {vr(PU)}", "valu"))
        if kind == "loop":
            put(0, I(f"v_accvgpr_read_b32 {vr(TMP)}, {ar(s.ST_D2)}", "valu"))
            put(1, I(f"v_add_u32 {vr(PT)}, {vr(PT)}, {vr(TMP)}", "valu"))
            put(2, I(f"v_add_u32 {vr(DU)}, {LSTR}, {vr(DU)}", "valu"))
        if kind == "loop":
            for T in c.keep:
                if c.keepld:
                    put(T, I(f"buffer_load_dword {ar(s.ST + 9)}, off, {sr(sDbg, 4)}, s7{c.keepmod}", "vload", grp="KP"))
                    put(T + 1, I(f"s_add_u32 s7, s7, 0x100000", "salu"))
                else:
                    put(T, I(f"buffer_store_dword {vr(D1)}, off, {sr(sDbg, 4)}, s7{c.keepmod}", "store", grp="KP"))
            for k_, (T, mat) in enumerate(c.pl):
                put(T, I(f"buffer_load_dword {ar(s.ST + 10 + k_)}, {vr(DU)}, {sr(S_V if mat == 'V' else S_U, 4)}, {'s6' if T >= 91 else 's5'} offen{c.pmod}", "vload", grp="PW"))
        if kind in ("loop", "g1first"):
            put(86, I(f"v_add_u32 {vr(DV)}, {LSTR}, {vr(DV)}", "valu"))
        h0 = s.hcvt_ops(0); h1 = s.hcvt_ops(1); h2 = s.hcvt_ops(2); h3 = s.hcvt_ops(3)
        use = [s.g2_slot_of(0, 0, k) for k in range(4)]
        ab = c.g1mode != "k"
        if kind in ("loop", "g1first"):
            for k, op in enumerate(h0):
                ph.vx[at((86 if ab else 88) + k // 2)].append(op)
            if ab:
                for k, op in enumerate(h1):
                    ph.vx[at(89 + k // 2)].append(op)
        if kind in ("loop", "g2last"):
            for ops, early, u in ((h1, 91, use[1]), (h2, 92, use[2]), (h3, 93, use[3]))[(1 if ab else 0):]:
                lo = max(early, getattr(s, "_hlast", 91))
                hi = u - 2
                if lo > hi:
                    lo = early
                s.spread(ph, ops, at(lo), at(hi))
                s._hlast = hi + 1 if hi + 1 <= 195 else lo
            s._hlast = 91
        if kind == "loop":
            done = [max(s.g2_slot_of(f, t, 3) for t in (0, 1)) + 3 for f in range(3)]
            if c.headint and c.headn == 2:
                lo = max(done[1], use[3])
                ops = s.xfrag_ops(0) + s.xfrag_ops(1) + s.xfrag_ops(2)
                lo = max(lo, done[0])
                s.spread(ph, ops[:24], at(lo), at(lo + 39))
                s.spread(ph, ops[24:], at(max(lo + 40, done[2])), at(190))
            else:
                lo = max(done[0], use[3])
                w_ = (190 - lo + 1) // 3
                for f in range(3):
                    a0 = lo + f * w_
                    assert a0 >= done[f]
                    s.spread(ph, s.xfrag_ops(f), at(a0), at(a0 + w_ - 1))
            for f in range(3, 13):
                if ab:
                    a0 = 10 + 7 * (f - 3); a1 = a0 + 6
                else:
                    a0 = 7 + (76 * (f - 3) + 5) // 10
                    a1 = 7 + (76 * (f - 2) + 5) // 10 - 1
                assert a0 > s.fuse(f - 3)[1] and a1 <= s.fuse(f)[0] - 2, (f, a0, a1)
                s.spread(ph, s.xfrag_ops(f), at(a0), at(a1))
        if first:
            for f in range(0, 10):
                lo = s.fuse(f)[1] + 1
                hi = min(lo + 6, 83)
                s.spread(ph, s.unpack_ops(f), at(lo), at(hi))
            if p3:
                for f in (10, 11, 12):
                    f0 = s.fuse(f)[0]
                    s.spread(ph, s.unpack_ops(f), at(f0), at(min(f0 + 6, 87) if f < 12 else 90))
            else:
                s.spread(ph, s.unpack_ops(10) + s.unpack_ops(11) + s.unpack_ops(12), at(63), at(87))
            if p3 and c.otouch is not None:
                put(c.otouch, I(f"buffer_store_dword {vr(D1)}, {vr(TMP)}, {sr(S_O, 4)}, {sr(sXo)} offen{c.otmod}", "store", grp="OT"))
            if p3:
                for f, T in c.xin.items():
                    dst = xo(f, 0) if f < 10 else xbuf(f)
                    put(T, I(f"buffer_load_dwordx4 {vr(dst, 4)}, {vr(TMP)}, {sr(S_X, 4)}, {sr(sXo)} offen offset:{64 * f}{c.xmod}", "vload", grp=f"X{f}"))
                for k_, (T, mat) in enumerate(c.pl1):
                    put(T, I(f"buffer_load_dword {ar(s.ST + 8 + k_)}, {vr(DU)}, {sr(S_V if mat == 'V' else S_U, 4)}, s5 offen{c.pmod}", "vload", grp="PW"))
                for k_, (T, mat) in enumerate(c.pw1):
                    put(T, I(f"buffer_load_dword {ar(s.ST + 6 + k_)}, {vr(TMP)}, {sr(S_V if mat == 'V' else S_U, 4)}, s98 offen{c.pmod}", "vload", grp="PW"))
            if c.pro == 2 or (p3 and c.bias_in):
                bo = s.bias_ops()
                if "biasw" in c.drop:
                    bo = [x for x in bo if x.kind != "dsw"]
                s.spread(ph, bo, at(c.bias_at[0]), at(c.bias_at[1]))
        if last:
            put(92, I(f"v_accvgpr_read_b32 {vr(DV)}, {ar(s.ST_XA)}", "valu"))
            ph.tail = []
            prev = use[3] - 1
            for f in range(13):
                done = max(s.g2_slot_of(f, t, 3) for t in (0, 1)) + 3
                ops = s.xfrag_ops(f)
                if c.stwin and f >= c.stwin:
                    w = I(None, "wait"); w.wait = dict(vm=[f"S{f - c.stwin}"], lg=False); ops.append(w)
                ops = ops + [I(f"buffer_store_dwordx4 {vr(xbuf(f), 4)}, {vr(DV)}, {sr(S_O, 4)}, {sr(sXo)} offen offset:{(128 if c.stpat == 'oct' else 64) * f}{c.stmod if f < c.stsplit else c.stmod2}", "store", grp=f"S{f}")]
                lo = max(done, prev + 1)
                hi = min(194, max(lo + 5, done + 7))
                if lo > 194 or f == 12:
                    if not ph.tail:
                        ph.tail.append(I("s_nop 5", "salu"))
                    ph.tail += ops
                    continue
                s.spread(ph, ops, at(lo), at(hi))
                prev = hi
        s.place_lg(ph)
        return ph

    def place_lg(s, ph):
        c = s.c
        n = ph.n
        has = [any(x.kind == "wait" for x in ph.sc[i]) for i in range(n)]
        i = 0
        lastw = -1
        j = -1
        while j < n - 1:
            cand = list(range(j + 1, min(j + c.NW, n - 1) + 1))
            nxt = None
            ex = [x for x in cand if has[x]]
            if ex:
                nxt = ex[0]
            else:
                fr = [x for x in cand if not ph.sc[x]]
                nxt = fr[-1] if fr else cand[-1]
                w = I(None, "wait"); w.wait = dict(vm=[], lg=True)
                ph.sc[nxt].insert(0, w) if not fr else ph.sc[nxt].append(w)
                has[nxt] = True
            j = nxt
            if j >= n - 1:
                break

    def lin(s, ph):
        out = []
        for i in range(ph.n):
            out.append(ph.m[i])
            if s.c.lstamps and ph.kind == s.c.lphase and ph.Ts[i] in s.c.lstamps:
                k = s.c.lstamps.index(ph.Ts[i])
                out.append(I(f"s_memtime s[{64 + 2 * k}:{65 + 2 * k}]", "salu"))
            sc = list(ph.sc[i])
            sc.sort(key=lambda x: {"wait": 0, "barrier": 1}.get(x.kind, 2))
            shadow = sc[:1]; rest = sc[1:]
            out += shadow
            pre = [x for x in rest if x.kind != "wait"]
            post = [x for x in rest if x.kind == "wait"]
            out += pre
            if getattr(ph, "loopctl", False) and i == ph.n - 1:
                out.append(I(f"s_sub_u32 {sr(sCnt)}, {sr(sCnt)}, 1", "salu"))
            vx = list(ph.vx[i])
            if s.c.dma_first:
                d = [x for x in vx if x.kind == "dma"]
                if d and (shadow and shadow[0].kind == "salu" and "m0" in shadow[0].txt):
                    pass
                elif d:
                    out += d; vx = [x for x in vx if x.kind != "dma"]
            if ph.r[i] is not None:
                out.append(ph.r[i])
            out += vx
            out += post
        out += getattr(ph, "tail", [])
        return out

    def prologue(s):
        c = s.c
        o = []
        S = lambda t: o.append(I(t, "salu"))
        V = lambda t: o.append(I(t, "valu"))
        t = [H0 + i for i in range(28)]
        S(f"s_cmp_ge_u32 s2, 256")
        S(f"s_cbranch_scc1 L_end")
        if c.pf_code:
            S(f"s_getpc_b64 {sr(S_M, 2)}")
            o.append(I("L_pc:", "label"))
            S(f"s_mov_b32 {sr(S_M + 2)}, L_end-L_pc")
            S(f"s_mov_b32 {sr(S_M + 3)}, 0x20000")
            V(f"v_lshlrev_b32 {vr(TMP)}, 6, v0")
            o.append(I(f"buffer_load_dword {ar(s.ST + 4)}, {vr(TMP)}, {sr(S_M, 4)}, 0 offen", "vload", grp="PC"))
        S(f"s_load_dwordx2 {sr(S_X, 2)}, s[0:1], 0")
        S(f"s_load_dwordx2 {sr(S_U, 2)}, s[0:1], 8")
        S(f"s_load_dwordx2 {sr(S_V, 2)}, s[0:1], 16")
        S(f"s_load_dwordx2 {sr(S_B, 2)}, s[0:1], 24")
        S(f"s_load_dwordx2 {sr(S_O, 2)}, s[0:1], 32")
        if c.stamps:
            S(f"s_load_dwordx2 {sr(sDbg, 2)}, s[0:1], {40 if c.dbg else 48}")
            S(f"s_memtime s[60:61]")
            S(f"s_memrealtime s[70:71]")
        lane, w, g, m = t[0], t[1], t[2], t[3]
        V(f"v_lshrrev_b32 {vr(w)}, 6, v0")
        V(f"v_and_b32 {vr(lane)}, 63, v0")
        V(f"v_readfirstlane_b32 {sr(sW)}, {vr(w)}")
        V(f"v_lshrrev_b32 {vr(g)}, 4, {vr(lane)}")
        V(f"v_and_b32 {vr(m)}, 15, {vr(lane)}")
        j, q, x, y = t[4], t[5], t[6], t[7]
        V(f"v_lshrrev_b32 {vr(j)}, 3, {vr(lane)}")
        V(f"v_and_b32 {vr(q)}, 7, {vr(lane)}")
        V(f"v_lshrrev_b32 {vr(x)}, 2, {vr(j)}")
        V(f"v_and_b32 {vr(y)}, 3, {vr(j)}")
        V(f"v_lshlrev_b32 {vr(x)}, 2, {vr(x)}")
        V(f"v_add_u32 {vr(x)}, {vr(x)}, {vr(y)}")
        V(f"v_mul_u32_u24 {vr(x)}, {2 * 832}, {vr(x)}")
        V(f"v_lshrrev_b32 {vr(y)}, 1, {vr(j)}")
        V(f"v_xor_b32 {vr(y)}, {vr(y)}, {vr(q)}")
        V(f"v_lshl_add_u32 {vr(DV)}, {vr(y)}, 4, {vr(x)}")
        V(f"v_lshlrev_b32 {vr(DU)}, 4, {vr(lane)}")
        XA = t[8]
        V(f"v_mul_u32_u24 {vr(XA)}, 832, {vr(m)}")
        V(f"v_lshl_add_u32 {vr(XA)}, {vr(g)}, 4, {vr(XA)}")
        S(f"s_and_b32 {sr(sT0)}, {sr(sW)}, 1")
        S(f"s_lshr_b32 {sr(sT1)}, {sr(sW)}, 1")
        S(f"s_mul_i32 {sr(sVb)}, {sr(sT0)}, {SLOT}")
        S(f"s_mul_i32 {sr(sT2)}, {sr(sT1)}, 1088")
        S(f"s_add_u32 {sr(sVb)}, {sr(sVb)}, {sr(sT2)}")
        S(f"s_mul_i32 {sr(sVs0)}, {sr(sT0)}, {832 + 64}")
        S(f"s_mul_i32 {sr(sT2)}, {sr(sT1)}, {16 * 832}")
        S(f"s_add_u32 {sr(sVs0)}, {sr(sVs0)}, {sr(sT2)}")
        S(f"s_add_u32 {sr(sVs0 + 1)}, {sr(sVs0)}, {32 * 832}")
        S(f"s_add_u32 {sr(sVs0 + 2)}, {sr(sVs0)}, {64 * 832}")
        S(f"s_mul_i32 {sr(sWAs)}, {sr(sW)}, {16 * 832}")
        S(f"s_mul_i32 {sr(sWAm)}, {sr(sT1)}, {SLOT}")
        S(f"s_mul_i32 {sr(sT2)}, {sr(sT0)}, 1088")
        S(f"s_add_u32 {sr(sWAm)}, {sr(sWAm)}, {sr(sT2)}")
        S(f"s_add_u32 {sr(sWAm)}, {sr(sWAm)}, {Z + 4032 - 768}")
        S(f"s_mul_i32 {sr(sWBs)}, {sr(sT0)}, {16 * 832}")
        S(f"s_add_u32 {sr(sWBs)}, {sr(sWBs)}, {64 * 832}")
        S(f"s_add_u32 {sr(sWBm)}, {sr(sT2)}, {Z + 2 * SLOT + 4032 - 768}")
        S(f"s_lshl_b32 {sr(sT3)}, {sr(sW)}, 10")
        S(f"s_add_u32 {sr(sT6m)}, {sr(sT3)}, {T6}")
        S(f"s_add_u32 {sr(sT6s)}, {sr(sT3)}, {96 * 832 + LSTR}")
        S(f"s_add_u32 {sr(sLm)}, {sr(sT3)}, 81920")
        S(f"s_lshl_b32 {sr(sUm)}, {sr(sW)}, 12")
        S(f"s_add_u32 {sr(sMXs)}, {sr(sT3)}, {96 * 832 + LSTR + 4096}")
        S(f"s_add_u32 {sr(sMXm)}, {sr(sT3)}, {T6 + 4096}")
        S(f"s_cmp_eq_u32 {sr(sW)}, 3")
        S(f"s_cselect_b32 {sr(sMXs)}, 86016, {sr(sMXs)}")
        S(f"s_cselect_b32 {sr(sMXm)}, 86016, {sr(sMXm)}")
        S(f"s_lshl_b32 {sr(sXo)}, s2, 2")
        S(f"s_add_u32 {sr(sXo)}, {sr(sXo)}, {sr(sW)}")
        S(f"s_mul_i32 {sr(sXo)}, {sr(sXo)}, {16 * 832}")
        S(f"s_mov_b32 {sr(sMask)}, 0")
        S(f"s_mov_b32 {sr(sMask + 1)}, -1")
        S(f"s_mov_b32 {sr(sCnt)}, {c.nlayers - 2}")
        S(f"s_min_u32 {sr(sT2)}, {sr(sW)}, 2")
        S(f"s_lshl_b32 {sr(sT2)}, {sr(sT2)}, 10")
        S(f"s_add_u32 {sr(sT0)}, {sr(sT3)}, {96 * 832}")
        S(f"s_add_u32 {sr(sT1)}, {sr(sT2)}, {96 * 832 + 4096}")
        S(f"s_add_u32 {sr(sT2)}, {sr(sT2)}, {T6 + 4096}")
        bh, bt, bg, bl = t[9], t[10], t[11], t[12]
        V(f"v_min_u32 {vr(w)}, 2, {vr(w)}") if False else None
        S(f"s_min_u32 {sr(sT3)}, {sr(sW)}, 2")
        V(f"v_lshrrev_b32 {vr(bh)}, 5, {vr(lane)}")
        V(f"v_and_b32 {vr(bt)}, 1, {vr(g)}")
        V(f"v_lshl_add_u32 {vr(bh)}, {sr(sT3)}, 1, {vr(bh)}")
        rho = t[13]
        V(f"v_lshrrev_b32 {vr(x)}, 2, {vr(m)}")
        V(f"v_and_b32 {vr(y)}, 3, {vr(m)}")
        V(f"v_lshlrev_b32 {vr(x)}, 2, {vr(x)}")
        V(f"v_add_u32 {vr(x)}, {vr(x)}, {vr(y)}")
        V(f"v_lshlrev_b32 {vr(rho)}, 1, {vr(x)}")
        V(f"v_add_u32 {vr(x)}, {vr(rho)}, {vr(bt)}")
        V(f"v_mul_u32_u24 {vr(bg)}, 832, {vr(bh)}")
        V(f"v_lshl_add_u32 {vr(bg)}, {vr(x)}, 1, {vr(bg)}")
        V(f"v_mul_u32_u24 {vr(bl)}, 336, {vr(bh)}")
        V(f"v_mul_u32_u24 {vr(x)}, 208, {vr(bt)}")
        V(f"v_add_u32 {vr(bl)}, {vr(bl)}, {vr(x)}")
        V(f"v_lshl_add_u32 {vr(bl)}, {vr(m)}, 3, {vr(bl)}")
        V(f"v_add_u32 {vr(bl)}, {Z}, {vr(bl)}")
        V(f"v_mul_u32_u24 {vr(x)}, 208, {vr(rho)}")
        V(f"v_lshl_add_u32 {vr(PU)}, {vr(g)}, 4, {vr(x)}")
        V(f"v_lshl_add_u32 {vr(x)}, {vr(g)}, 3, {vr(x)}")
        V(f"v_add_u32 {vr(x)}, 192, {vr(x)}")
        V(f"v_lshlrev_b32 {vr(y)}, 3, {vr(m)}")
        V(f"v_add_u32 {vr(y)}, {Z}, {vr(y)}")
        V(f"v_cndmask_b32_e64 {vr(PT)}, {vr(x)}, {vr(y)}, {sr(sMask, 2)}")
        V(f"v_mov_b32 {vr(x)}, {WIN}")
        V(f"v_mov_b32 {vr(y)}, 2016")
        V(f"v_cndmask_b32_e64 {vr(D1)}, {vr(x)}, {vr(y)}, {sr(sMask, 2)}")
        V(f"v_mov_b32 {vr(x)}, {(-WIN) & 0xFFFFFFFF}")
        V(f"v_mov_b32 {vr(y)}, {(-1680) & 0xFFFFFFFF}")
        V(f"v_cndmask_b32_e64 {vr(x)}, {vr(x)}, {vr(y)}, {sr(sMask, 2)}")
        V(f"v_accvgpr_write_b32 {ar(s.ST_D2)}, {vr(x)}")
        V(f"v_accvgpr_write_b32 {ar(s.ST_XA)}, {vr(XA)}")
        V(f"v_and_b32 {vr(x)}, 7, {vr(m)}")
        V(f"v_lshrrev_b32 {vr(y)}, 1, {vr(x)}")
        V(f"v_xor_b32 {vr(y)}, {vr(y)}, {vr(g)}")
        V(f"v_lshlrev_b32 {vr(y)}, 4, {vr(y)}")
        V(f"v_lshl_add_u32 {vr(y)}, {vr(x)}, 7, {vr(y)}")
        V(f"v_lshrrev_b32 {vr(x)}, 3, {vr(m)}")
        V(f"v_mul_u32_u24 {vr(x)}, 1088, {vr(x)}")
        V(f"v_add_u32 {vr(y)}, {vr(y)}, {vr(x)}")
        V(f"v_add_u32 {vr(PV)}, {WIN}, {vr(y)}")
        V(f"v_lshrrev_b32 {vr(x)}, 3, {vr(m)}")
        V(f"v_mul_u32_u24 {vr(x)}, 12, {vr(x)}")
        V(f"v_xor_b32 {vr(x)}, {vr(x)}, {vr(m)}")
        V(f"v_mul_u32_u24 {vr(x)}, 832, {vr(x)}")
        V(f"v_lshl_add_u32 {vr(x)}, {vr(g)}, 4, {vr(x)}")
        V(f"v_add_u32 {vr(PV6)}, {T6}, {vr(x)}")
        XAk, bgk, blk = XF + 8, XF + 9, XF + 10
        XAk, bgk, blk = TMP, t[27], t[26]
        V(f"v_mov_b32 {vr(XAk)}, {vr(XA)}")
        V(f"v_mov_b32 {vr(bgk)}, {vr(bg)}")
        V(f"v_mov_b32 {vr(blk)}, {vr(bl)}")
        for i in range(26):
            V(f"v_mov_b32 {vr(H0 + i)}, 0")
        S("s_waitcnt lgkmcnt(0)")
        if c.stamps:
            S(f"s_memtime s[62:63]")
        for base, n in ((S_X, 16384 * 832), (S_U, NL * LSTR), (S_V, NL * LSTR), (S_B, NL * 832), (S_O, 16384 * 832)):
            S(f"s_mov_b32 {sr(base + 2)}, {n}")
            S(f"s_mov_b32 {sr(base + 3)}, 0x20000")
        S(f"s_cmp_eq_u32 {sr(sW)}, 3")
        S(f"s_cselect_b32 {sr(S_M)}, {sr(S_U)}, {sr(S_V)}")
        S(f"s_cselect_b32 {sr(S_M + 1)}, {sr(S_U + 1)}, {sr(S_V + 1)}")
        S(f"s_mov_b32 {sr(S_M + 2)}, {NL * LSTR}")
        S(f"s_mov_b32 {sr(S_M + 3)}, 0x20000")

        def dma(g):
            for sc, v in s.dma_items(g):
                if sc is not None:
                    o.append(sc)
                    o.append(I("s_nop 0", "salu"))
                o.append(v)

        def xload(f):
            dst = xo(f, 0) if f < 10 else xbuf(f)
            o.append(I(f"buffer_load_dwordx4 {vr(dst, 4)}, {vr(XAk)}, {sr(S_X, 4)}, {sr(sXo)} offen offset:{64 * f}{c.xmod}", "vload", grp=f"X{f}"))

        def stamp(k):
            if c.stamps and c.stamps != "rt":
                S(f"s_memtime s[{80 + 2 * k}:{81 + 2 * k}]")
        stamp(0)
        dma("WA"); dma("WB"); dma("V0")
        S(f"s_mov_b32 m0, {sr(sT6m)}"); S("s_nop 0")
        o.append(I(f"buffer_load_dwordx4 {vr(DU)}, {sr(S_V, 4)}, {sr(sT0)} offen lds", "dma", grp="T6"))
        S(f"s_mov_b32 m0, {sr(sT2)}"); S("s_nop 0")
        o.append(I(f"buffer_load_dwordx4 {vr(DU)}, {sr(S_V, 4)}, {sr(sT1)} offen lds", "dma", grp="T6b"))
        xload(0); xload(1)
        for p in range(13):
            o.append(I(f"buffer_load_short_d16_hi {vr(H0 + 2 * p)}, {vr(bgk)}, {sr(S_B, 4)}, 0 offen offset:{64 * p}", "vload", grp="BI"))
        if c.pf_w:
            S(f"s_lshr_b32 {sr(sT3)}, s2, 3")
            S(f"s_and_b32 {sr(sT3)}, {sr(sT3)}, 31")
            S(f"s_mul_i32 {sr(sT3)}, {sr(sT3)}, {NL * LSTR // 32}")
            V(f"v_lshlrev_b32 {vr(1)}, 2, {vr(DU)}")
            S(f"s_lshl_b32 {sr(sCnt)}, {sr(sW)}, 12")
            S(f"s_add_u32 {sr(sT3)}, {sr(sT3)}, {sr(sCnt)}")
            S(f"s_mov_b32 {sr(sCnt)}, {c.nlayers - 2}")
            PFD = s.ST + 2
            o.append(I(f"buffer_load_dword {ar(PFD)}, {vr(1)}, {sr(S_V, 4)}, {sr(sT3)} offen", "vload", grp="PW"))
            o.append(I(f"buffer_load_dword {ar(PFD + 1)}, {vr(1)}, {sr(S_U, 4)}, {sr(sT3)} offen", "vload", grp="PW"))
        dma("V1"); xload(2); xload(3)
        dma("V2"); xload(4); xload(5)
        dma("V3"); xload(6); xload(7)
        dma("V4")
        for f in range(8, 13):
            xload(f)
        stamp(1)
        for i in range(104):
            V(f"v_mov_b32 {vr(C0 + i)}, 1.0")
        for e in range(6):
            V(f"v_accvgpr_write_b32 {ar(s.TR0 + 4 * e + 2)}, 0")
            V(f"v_accvgpr_write_b32 {ar(s.TR0 + 4 * e + 3)}, 0")
        stamp(2)
        w = I(None, "wait"); w.wait = dict(vm=["BI"], lg=False); o.append(w)
        stamp(3)
        if c.stamps:
            S("s_waitcnt lgkmcnt(0)")
        for p in range(13):
            imm = SLOT * (p % 7) + (2016 if p >= 7 else 0)
            o.append(I(f"ds_write_b64 {vr(blk)}, {vr(H0 + 2 * p, 2)} offset:{imm}", "dsw"))
        if c.stamps:
            S("s_waitcnt lgkmcnt(0)")
        stamp(4)
        w = I(None, "wait"); w.wait = dict(vm=["WA", "WB", "V0", "T6", "T6b", "X0"], lg=False, lg0=True); o.append(w)
        stamp(5)
        o.append(I("s_barrier", "barrier"))
        if c.stamps:
            S(f"s_memtime s[64:65]")
            if c.stamps == "rt":
                S(f"s_memrealtime s[80:81]")
            S("s_waitcnt lgkmcnt(0)")
        for T in range(c.LA):
            o.append(s.slot_desc(T, True)[1])
            if T == s.g1_slot_of(0, 5):
                o.append(I(f"v_subrev_u32 {vr(PV)}, {WIN}, {vr(PV)}", "valu"))
        w = I(None, "wait"); w.wait = dict(vm=[], lg=True); o.append(w)
        return o

    BI_R, BI_QA, BI_QB, BI_AD = 0, 8, 12, 16

    def prologue2(s):
        c = s.c
        o = []
        S = lambda t: o.append(I(t, "salu"))
        V = lambda t: o.append(I(t, "valu"))
        t = [H0 + i for i in range(28)]
        S(f"s_cmp_ge_u32 s2, 256")
        S(f"s_cbranch_scc1 L_end")
        S(f"s_load_dwordx2 {sr(S_X, 2)}, s[0:1], 0")
        S(f"s_load_dwordx2 {sr(S_V, 2)}, s[0:1], 16")
        S(f"s_load_dwordx2 {sr(S_U, 2)}, s[0:1], 8")
        S(f"s_load_dwordx2 {sr(S_B, 2)}, s[0:1], 24")
        S(f"s_load_dwordx2 {sr(S_O, 2)}, s[0:1], 32")
        if c.stamps:
            S(f"s_load_dwordx2 {sr(sDbg, 2)}, s[0:1], {40 if c.dbg else 48}")
            S(f"s_memtime s[60:61]")
            S(f"s_memrealtime s[70:71]")
        lane, w, g, m = t[0], t[1], t[2], t[3]
        V(f"v_lshrrev_b32 {vr(w)}, 6, v0")
        V(f"v_and_b32 {vr(lane)}, 63, v0")
        V(f"v_readfirstlane_b32 {sr(sW)}, {vr(w)}")
        if c.pf_code:
            S(f"s_getpc_b64 {sr(S_M, 2)}")
            o.append(I("L_pc:", "label"))
            S(f"s_mov_b32 {sr(S_M + 2)}, L_end-L_pc")
            S(f"s_mov_b32 {sr(S_M + 3)}, 0x20000")
            V(f"v_lshlrev_b32 {vr(t[20])}, 6, v0")
            o.append(I(f"buffer_load_dword {ar(s.ST + 4)}, {vr(t[20])}, {sr(S_M, 4)}, 0 offen", "vload", grp="PC"))
            if c.wvloop:
                V(f"v_add_u32 {vr(t[20])}, 16384, {vr(t[20])}")
                o.append(I(f"buffer_load_dword {ar(s.ST + 5)}, {vr(t[20])}, {sr(S_M, 4)}, 0 offen", "vload", grp="PC"))
        V(f"v_lshrrev_b32 {vr(g)}, 4, {vr(lane)}")
        V(f"v_and_b32 {vr(m)}, 15, {vr(lane)}")
        j, q, x, y = t[4], t[5], t[6], t[7]
        V(f"v_lshrrev_b32 {vr(j)}, 3, {vr(lane)}")
        V(f"v_and_b32 {vr(q)}, 7, {vr(lane)}")
        V(f"v_mul_u32_u24 {vr(x)}, {2 * 832}, {vr(j)}")
        V(f"v_lshrrev_b32 {vr(y)}, 1, {vr(j)}")
        V(f"v_xor_b32 {vr(y)}, {vr(y)}, {vr(q)}")
        V(f"v_lshl_add_u32 {vr(DV)}, {vr(y)}, 4, {vr(x)}")
        V(f"v_lshlrev_b32 {vr(DU)}, 4, {vr(lane)}")
        XA = TMP
        V(f"v_mul_u32_u24 {vr(XA)}, 832, {vr(m)}")
        V(f"v_lshl_add_u32 {vr(XA)}, {vr(g)}, 4, {vr(XA)}")
        S(f"s_and_b32 {sr(sT0)}, {sr(sW)}, 1")
        S(f"s_lshr_b32 {sr(sT1)}, {sr(sW)}, 1")
        S(f"s_mul_i32 {sr(sVb)}, {sr(sT0)}, {SLOT}")
        S(f"s_mul_i32 {sr(sT2)}, {sr(sT1)}, 1088")
        S(f"s_add_u32 {sr(sVb)}, {sr(sVb)}, {sr(sT2)}")
        S(f"s_mul_i32 {sr(sVs0)}, {sr(sT0)}, {832 + 64}")
        S(f"s_mul_i32 {sr(sT2)}, {sr(sT1)}, {16 * 832}")
        S(f"s_add_u32 {sr(sVs0)}, {sr(sVs0)}, {sr(sT2)}")
        S(f"s_add_u32 {sr(sVs0 + 1)}, {sr(sVs0)}, {32 * 832}")
        S(f"s_add_u32 {sr(sVs0 + 2)}, {sr(sVs0)}, {64 * 832}")
        S(f"s_mul_i32 {sr(sWAs)}, {sr(sW)}, {16 * 832}")
        S(f"s_mul_i32 {sr(sWAm)}, {sr(sT1)}, {SLOT}")
        S(f"s_mul_i32 {sr(sT2)}, {sr(sT0)}, 1088")
        S(f"s_add_u32 {sr(sWAm)}, {sr(sWAm)}, {sr(sT2)}")
        S(f"s_add_u32 {sr(sWAm)}, {sr(sWAm)}, {Z + 4032 - 768}")
        S(f"s_mul_i32 {sr(sWBs)}, {sr(sT0)}, {16 * 832}")
        S(f"s_add_u32 {sr(sWBs)}, {sr(sWBs)}, {64 * 832}")
        S(f"s_add_u32 {sr(sWBm)}, {sr(sT2)}, {Z + 2 * SLOT + 4032 - 768}")
        S(f"s_lshl_b32 {sr(sT3)}, {sr(sW)}, 10")
        S(f"s_add_u32 {sr(sT6m)}, {sr(sT3)}, {T6}")
        S(f"s_add_u32 {sr(sLm)}, {sr(sT3)}, 81920")
        S(f"s_add_u32 {sr(sT6s)}, {sr(sT3)}, {96 * 832 + LSTR}")
        S(f"s_add_u32 {sr(sMXs)}, {sr(sT3)}, {96 * 832 + LSTR + 4096}")
        S(f"s_add_u32 {sr(sMXm)}, {sr(sT3)}, {T6 + 4096}")
        S(f"s_add_u32 {sr(sT0)}, {sr(sT3)}, {96 * 832}")
        S(f"s_min_u32 {sr(sT2)}, {sr(sW)}, 2")
        S(f"s_lshl_b32 {sr(sT2)}, {sr(sT2)}, 10")
        S(f"s_add_u32 {sr(sT1)}, {sr(sT2)}, {96 * 832 + 4096}")
        S(f"s_add_u32 {sr(sT2)}, {sr(sT2)}, {T6 + 4096}")
        S(f"s_lshl_b32 {sr(sXo)}, s2, 2")
        S(f"s_add_u32 {sr(sXo)}, {sr(sXo)}, {sr(sW)}")
        S(f"s_mul_i32 {sr(sXo)}, {sr(sXo)}, {16 * 832}")
        for base, n in ((S_X, 16384 * 832), (S_V, NL * LSTR), (S_U, NL * LSTR), (S_B, NL * 832), (S_O, 16384 * 832)):
            S(f"s_mov_b32 {sr(base + 2)}, {n}")
            S(f"s_mov_b32 {sr(base + 3)}, 0x20000")
        S("s_waitcnt lgkmcnt(0)")
        if c.stamps:
            S(f"s_memtime s[62:63]")

        def stamp(k):
            if c.stamps and c.stamps != "rt":
                S(f"s_memtime s[{80 + 2 * k}:{81 + 2 * k}]")

        def dma(gname):
            for sc, v in s.dma_items(gname):
                if sc is not None:
                    o.append(sc)
                    o.append(I("s_nop 0", "salu"))
                o.append(v)

        def xload(f):
            dst = xo(f, 0) if f < 10 else xbuf(f)
            o.append(I(f"buffer_load_dwordx4 {vr(dst, 4)}, {vr(XA)}, {sr(S_X, 4)}, {sr(sXo)} offen offset:{64 * f}{c.xmod}", "vload", grp=f"X{f}"))

        stamp(0)
        dma("WA"); dma("WB"); dma("V0")
        S(f"s_mov_b32 m0, {sr(sT6m)}"); S("s_nop 0")
        o.append(I(f"buffer_load_dwordx4 {vr(DU)}, {sr(S_V, 4)}, {sr(sT0)} offen lds", "dma", grp="T6"))
        S(f"s_mov_b32 m0, {sr(sT2)}"); S("s_nop 0")
        o.append(I(f"buffer_load_dwordx4 {vr(DU)}, {sr(S_V, 4)}, {sr(sT1)} offen lds", "dma", grp="T6b"))
        xload(0); xload(1)

        def pfw():
            S(f"s_lshr_b32 {sr(sT3)}, s2, 3")
            S(f"s_and_b32 {sr(sT3)}, {sr(sT3)}, 31")
            S(f"s_mul_i32 {sr(sT3)}, {sr(sT3)}, {NL * LSTR // 32}")
            V(f"v_lshlrev_b32 {vr(t[21])}, 2, {vr(DU)}")
            S(f"s_lshl_b32 {sr(sT0)}, {sr(sW)}, 12")
            S(f"s_add_u32 {sr(sT3)}, {sr(sT3)}, {sr(sT0)}")
            PFD = s.ST + 2
            o.append(I(f"buffer_load_dword {ar(PFD)}, {vr(t[21])}, {sr(S_V, 4)}, {sr(sT3)} offen", "vload", grp="PW"))
            o.append(I(f"buffer_load_dword {ar(PFD + 1)}, {vr(t[21])}, {sr(S_U, 4)}, {sr(sT3)} offen", "vload", grp="PW"))
        bl, bm, bg = t[8], t[9], t[10]
        def biloads():
            V(f"v_lshrrev_b32 {vr(bl)}, 3, {vr(lane)}")
            V(f"v_min_u32 {vr(bl)}, 5, {vr(bl)}")
            V(f"v_and_b32 {vr(bm)}, 7, {vr(lane)}")
            V(f"v_mul_u32_u24 {vr(bg)}, 832, {vr(bl)}")
            V(f"v_lshl_add_u32 {vr(bg)}, {vr(bm)}, 3, {vr(bg)}")
            S(f"s_lshl_b32 {sr(sT0)}, {sr(sW)}, 6")
            for k in range(4):
                so = sr(sT0) if k < 3 else "0"
                o.append(I(f"buffer_load_dwordx2 {vr(s.BI_R + 2 * k, 2)}, {vr(bg)}, {sr(S_B, 4)}, {so} offen offset:{256 * k}", "vload", grp="BI"))
        if c.bi_early:
            biloads()
        if c.pf_w == 1:
            pfw()
        dma("V1"); xload(2); xload(3)
        dma("V2"); xload(4); xload(5)
        dma("V3"); xload(6); xload(7)
        dma("V4")
        for f in range(8, 13):
            xload(f)
        if c.pf_w == 2:
            pfw()
        if not c.bi_early:
            biloads()
        stamp(1)
        V(f"v_mul_u32_u24 {vr(bl)}, 336, {vr(bl)}")
        V(f"v_lshl_add_u32 {vr(bl)}, {vr(bm)}, 4, {vr(bl)}")
        V(f"v_add_u32 {vr(bl)}, {Z}, {vr(bl)}")
        S(f"s_mul_i32 {sr(sT0)}, {sr(sW)}, {SLOT}")
        V(f"v_add_u32 {vr(s.BI_AD)}, {sr(sT0)}, {vr(bl)}")
        S(f"s_add_u32 {sr(sT1)}, {sr(sT0)}, {4 * SLOT}")
        S(f"s_cmp_eq_u32 {sr(sW)}, 3")
        S(f"s_cselect_b32 {sr(sT1)}, 2016, {sr(sT1)}")
        V(f"v_add_u32 {vr(s.BI_AD + 1)}, {sr(sT1)}, {vr(bl)}")
        S(f"s_add_u32 {sr(sT1)}, {sr(sT0)}, {SLOT + 2016}")
        V(f"v_add_u32 {vr(s.BI_AD + 2)}, {sr(sT1)}, {vr(bl)}")
        V(f"v_add_u32 {vr(s.BI_AD + 3)}, {5 * SLOT + 2016}, {vr(bl)}")
        for r in (s.BI_QA + 1, s.BI_QA + 3, s.BI_QB + 1, s.BI_QB + 3):
            V(f"v_mov_b32 {vr(r)}, 0")
        S(f"s_lshl_b32 {sr(sUm)}, {sr(sW)}, 12")
        S(f"s_cmp_eq_u32 {sr(sW)}, 3")
        S(f"s_cselect_b32 {sr(sMXs)}, 86016, {sr(sMXs)}")
        S(f"s_cselect_b32 {sr(sMXm)}, 86016, {sr(sMXm)}")
        S(f"s_cselect_b32 {sr(S_M)}, {sr(S_U)}, {sr(S_V)}")
        S(f"s_cselect_b32 {sr(S_M + 1)}, {sr(S_U + 1)}, {sr(S_V + 1)}")
        S(f"s_mov_b32 {sr(S_M + 2)}, {NL * LSTR}")
        S(f"s_mov_b32 {sr(S_M + 3)}, 0x20000")
        S(f"s_mov_b32 {sr(sMask)}, 0")
        S(f"s_mov_b32 {sr(sMask + 1)}, -1")
        S(f"s_mov_b32 {sr(sCnt)}, {c.nlayers - 2}")
        rho = t[13]
        V(f"v_lshrrev_b32 {vr(x)}, 2, {vr(m)}")
        V(f"v_and_b32 {vr(y)}, 3, {vr(m)}")
        V(f"v_lshlrev_b32 {vr(x)}, 2, {vr(x)}")
        V(f"v_add_u32 {vr(x)}, {vr(x)}, {vr(y)}")
        V(f"v_lshlrev_b32 {vr(rho)}, 1, {vr(x)}")
        V(f"v_and_b32 {vr(x)}, 7, {vr(m)}")
        V(f"v_lshrrev_b32 {vr(y)}, 1, {vr(x)}")
        V(f"v_xor_b32 {vr(y)}, {vr(y)}, {vr(g)}")
        V(f"v_lshlrev_b32 {vr(y)}, 4, {vr(y)}")
        V(f"v_lshl_add_u32 {vr(y)}, {vr(x)}, 7, {vr(y)}")
        V(f"v_lshrrev_b32 {vr(x)}, 3, {vr(m)}")
        V(f"v_mul_u32_u24 {vr(x)}, 1088, {vr(x)}")
        V(f"v_add_u32 {vr(y)}, {vr(y)}, {vr(x)}")
        V(f"v_add_u32 {vr(PV)}, {WIN}, {vr(y)}")
        V(f"v_lshrrev_b32 {vr(x)}, 3, {vr(m)}")
        V(f"v_mul_u32_u24 {vr(x)}, 12, {vr(x)}")
        V(f"v_xor_b32 {vr(x)}, {vr(x)}, {vr(m)}")
        V(f"v_mul_u32_u24 {vr(x)}, 832, {vr(x)}")
        V(f"v_lshl_add_u32 {vr(x)}, {vr(g)}, 4, {vr(x)}")
        V(f"v_add_u32 {vr(PV6)}, {T6}, {vr(x)}")
        V(f"v_mul_u32_u24 {vr(x)}, 208, {vr(rho)}")
        V(f"v_lshl_add_u32 {vr(PU)}, {vr(g)}, 4, {vr(x)}")
        V(f"v_lshl_add_u32 {vr(x)}, {vr(g)}, 3, {vr(x)}")
        V(f"v_add_u32 {vr(x)}, 192, {vr(x)}")
        V(f"v_lshlrev_b32 {vr(y)}, 3, {vr(m)}")
        V(f"v_add_u32 {vr(y)}, {Z}, {vr(y)}")
        V(f"v_cndmask_b32_e64 {vr(PT)}, {vr(x)}, {vr(y)}, {sr(sMask, 2)}")
        V(f"v_mov_b32 {vr(x)}, {WIN}")
        V(f"v_mov_b32 {vr(y)}, 2016")
        V(f"v_cndmask_b32_e64 {vr(D1)}, {vr(x)}, {vr(y)}, {sr(sMask, 2)}")
        V(f"v_mov_b32 {vr(x)}, {(-WIN) & 0xFFFFFFFF}")
        V(f"v_mov_b32 {vr(y)}, {(-1680) & 0xFFFFFFFF}")
        V(f"v_cndmask_b32_e64 {vr(x)}, {vr(x)}, {vr(y)}, {sr(sMask, 2)}")
        V(f"v_accvgpr_write_b32 {ar(s.ST_D2)}, {vr(x)}")
        V(f"v_accvgpr_write_b32 {ar(s.ST_XA)}, {vr(XA)}")
        for e in range(6):
            V(f"v_accvgpr_write_b32 {ar(s.TR0 + 4 * e + 2)}, 0")
            V(f"v_accvgpr_write_b32 {ar(s.TR0 + 4 * e + 3)}, 0")
        for i in range(20, 104):
            V(f"v_mov_b32 {vr(C0 + i)}, 1.0")
        stamp(2)
        w_ = I(None, "wait"); w_.wait = dict(vm=["WA", "WB", "V0", "T6", "T6b", "X0"], lg=False); o.append(w_)
        stamp(3)
        if c.stamps and c.stamps != "rt":
            S("s_waitcnt lgkmcnt(0)")
        o.append(I("s_barrier", "barrier"))
        if c.stamps:
            S(f"s_memtime s[64:65]")
            if c.stamps == "rt":
                S(f"s_memrealtime s[80:81]")
            S("s_waitcnt lgkmcnt(0)")
        for T in range(c.LA):
            o.append(s.slot_desc(T, True)[1])
            if T == s.g1_slot_of(0, 5):
                o.append(I(f"v_subrev_u32 {vr(PV)}, {WIN}, {vr(PV)}", "valu"))
        w_ = I(None, "wait"); w_.wait = dict(vm=[], lg=True); o.append(w_)
        return o

    def prologue3(s):
        c = s.c
        o = []
        cur = [o]
        S = lambda t: cur[0].append(I(t, "salu"))
        V = lambda t: cur[0].append(I(t, "valu"))
        t = [H0 + i for i in range(28)]
        sP = list(range(92, 100))
        if not c._hdr:
            S(f"s_cmp_ge_u32 s2, 256")
            S(f"s_cbranch_scc1 L_end")
        S(f"s_load_dwordx2 {sr(S_V, 2)}, s[0:1], 16")
        S(f"s_load_dwordx2 {sr(S_X, 2)}, s[0:1], 0")
        S(f"s_load_dwordx2 {sr(S_U, 2)}, s[0:1], 8")
        S(f"s_load_dwordx2 {sr(S_B, 2)}, s[0:1], 24")
        S(f"s_load_dwordx2 {sr(S_O, 2)}, s[0:1], 32")
        if c.keep and not c.stamps:
            S(f"s_load_dwordx2 {sr(sDbg, 2)}, s[0:1], 48")
        if c.stamps:
            S(f"s_load_dwordx2 {sr(sDbg, 2)}, s[0:1], {40 if c.dbg else 48}")
            S(f"s_memtime s[60:61]")
            S(f"s_memrealtime s[70:71]")
        lane, w, g, m = t[0], t[1], t[2], t[3]
        V(f"v_lshrrev_b32 {vr(w)}, 6, v0")
        V(f"v_and_b32 {vr(lane)}, 63, v0")
        V(f"v_readfirstlane_b32 {sr(sW)}, {vr(w)}")
        if c.pf_code:
            if not c._hdr:
                S(f"s_getpc_b64 {sr(S_M, 2)}")
                o.append(I("L_pc:", "label"))
            S(f"s_mov_b32 {sr(S_M + 2)}, {'L_fin' if c._hdr else 'L_end'}-L_pc")
            S(f"s_mov_b32 {sr(S_M + 3)}, 0x20000")
            if c.pf_slice:
                pfl = -(-c.pf_bytes // (c.pf_slice * 256))
                assert pfl <= 31
                S(f"s_lshr_b32 s4, s2, 3")
                S(f"s_and_b32 s4, s4, {c.pf_slice - 1}")
                S(f"s_lshl_b32 s4, s4, 2")
                S(f"s_add_u32 s4, s4, {sr(sW)}")
                S(f"s_mul_i32 s4, s4, {64 * pfl}")
                V(f"v_lshlrev_b32 {vr(t[20])}, 6, {vr(lane)}")
                S(f"s_mov_b64 exec, {hex((1 << pfl) - 1)}")
                o.append(I(f"buffer_load_dword {ar(s.ST + 4)}, {vr(t[20])}, {sr(S_M, 4)}, s4 offen", "vload", grp="PC"))
                S(f"s_mov_b64 exec, -1")
            else:
                V(f"v_lshlrev_b32 {vr(t[20])}, 6, v0")
                o.append(I(f"buffer_load_dword {ar(s.ST + 4)}, {vr(t[20])}, {sr(S_M, 4)}, 0 offen", "vload", grp="PC"))
                for k in range(1, c.pf_code):
                    V(f"v_add_u32 {vr(t[20])}, 16384, {vr(t[20])}")
                    o.append(I(f"buffer_load_dword {ar(s.ST + 4 + k)}, {vr(t[20])}, {sr(S_M, 4)}, 0 offen", "vload", grp="PC"))
        V(f"v_lshrrev_b32 {vr(g)}, 4, {vr(lane)}")
        V(f"v_and_b32 {vr(m)}, 15, {vr(lane)}")
        j, q, x, y = t[4], t[5], t[6], t[7]
        V(f"v_lshrrev_b32 {vr(j)}, 3, {vr(lane)}")
        V(f"v_and_b32 {vr(q)}, 7, {vr(lane)}")
        V(f"v_mul_u32_u24 {vr(x)}, {2 * 832}, {vr(j)}")
        V(f"v_lshrrev_b32 {vr(y)}, 1, {vr(j)}")
        V(f"v_xor_b32 {vr(y)}, {vr(y)}, {vr(q)}")
        V(f"v_lshl_add_u32 {vr(DV)}, {vr(y)}, 4, {vr(x)}")
        V(f"v_lshlrev_b32 {vr(DU)}, 4, {vr(lane)}")
        XA = TMP
        V(f"v_mul_u32_u24 {vr(XA)}, 832, {vr(m)}")
        V(f"v_lshl_add_u32 {vr(XA)}, {vr(g)}, 4, {vr(XA)}")
        bl, bm, bg = t[8], t[9], t[10]
        V(f"v_min_u32 {vr(bl)}, 5, {vr(j)}")
        V(f"v_mul_u32_u24 {vr(bg)}, 832, {vr(bl)}")
        V(f"v_lshl_add_u32 {vr(bg)}, {vr(q)}, 3, {vr(bg)}")
        V(f"v_lshlrev_b32 {vr(t[21])}, 2, {vr(DU)}")
        V(f"v_mul_u32_u24 {vr(t[22])}, 373, {vr(lane)}")
        V(f"v_lshrrev_b32 {vr(t[22])}, 12, {vr(t[22])}")
        V(f"v_mul_u32_u24 {vr(t[23])}, 11, {vr(t[22])}")
        V(f"v_sub_u32 {vr(t[23])}, {vr(lane)}, {vr(t[23])}")
        V(f"v_mul_u32_u24 {vr(t[22])}, {LSTR}, {vr(t[22])}")
        V(f"v_lshl_add_u32 {vr(t[22])}, {vr(t[23])}, 6, {vr(t[22])}")
        S(f"s_and_b32 {sr(sT0)}, {sr(sW)}, 1")
        S(f"s_lshr_b32 {sr(sT1)}, {sr(sW)}, 1")
        S(f"s_mul_i32 {sr(sVb)}, {sr(sT0)}, {SLOT}")
        S(f"s_mul_i32 {sr(sT2)}, {sr(sT1)}, 1088")
        S(f"s_add_u32 {sr(sVb)}, {sr(sVb)}, {sr(sT2)}")
        S(f"s_mul_i32 {sr(sVs0)}, {sr(sT0)}, {832 + 64}")
        S(f"s_mul_i32 {sr(sT2)}, {sr(sT1)}, {16 * 832}")
        S(f"s_add_u32 {sr(sVs0)}, {sr(sVs0)}, {sr(sT2)}")
        S(f"s_add_u32 {sr(sVs0 + 1)}, {sr(sVs0)}, {32 * 832}")
        S(f"s_add_u32 {sr(sVs0 + 2)}, {sr(sVs0)}, {64 * 832}")
        S(f"s_mul_i32 {sr(sWAs)}, {sr(sW)}, {16 * 832}")
        S(f"s_mul_i32 {sr(sWAm)}, {sr(sT1)}, {SLOT}")
        S(f"s_mul_i32 {sr(sT2)}, {sr(sT0)}, 1088")
        S(f"s_add_u32 {sr(sWAm)}, {sr(sWAm)}, {sr(sT2)}")
        S(f"s_add_u32 {sr(sWAm)}, {sr(sWAm)}, {Z + 4032 - 768}")
        S(f"s_mul_i32 {sr(sWBs)}, {sr(sT0)}, {16 * 832}")
        S(f"s_add_u32 {sr(sWBs)}, {sr(sWBs)}, {64 * 832}")
        S(f"s_add_u32 {sr(sWBm)}, {sr(sT2)}, {Z + 2 * SLOT + 4032 - 768}")
        S(f"s_lshl_b32 {sr(sT3)}, {sr(sW)}, 10")
        S(f"s_add_u32 {sr(sT6m)}, {sr(sT3)}, {T6}")
        S(f"s_add_u32 {sr(sLm)}, {sr(sT3)}, 81920")
        S(f"s_add_u32 {sr(sT6s)}, {sr(sT3)}, {96 * 832 + LSTR}")
        S(f"s_add_u32 {sr(sMXs)}, {sr(sT3)}, {96 * 832 + LSTR + 4096}")
        S(f"s_add_u32 {sr(sMXm)}, {sr(sT3)}, {T6 + 4096}")
        S(f"s_add_u32 {sr(sP[0])}, {sr(sT3)}, {96 * 832}")
        S(f"s_min_u32 {sr(sP[2])}, {sr(sW)}, 2")
        S(f"s_lshl_b32 {sr(sP[2])}, {sr(sP[2])}, 10")
        S(f"s_add_u32 {sr(sP[1])}, {sr(sP[2])}, {96 * 832 + 4096}")
        S(f"s_add_u32 {sr(sP[2])}, {sr(sP[2])}, {T6 + 4096}")
        S(f"s_lshl_b32 {sr(sXo)}, s2, 2")
        S(f"s_add_u32 {sr(sXo)}, {sr(sXo)}, {sr(sW)}")
        S(f"s_mul_i32 {sr(sXo)}, {sr(sXo)}, {16 * 832}")
        S(f"s_lshl_b32 {sr(sP[3])}, {sr(sW)}, 6")
        S(f"s_lshr_b32 {sr(sP[4])}, s2, 3")
        S(f"s_and_b32 {sr(sP[4])}, {sr(sP[4])}, 31")
        S(f"s_mul_i32 {sr(sP[4])}, {sr(sP[4])}, {NL * LSTR // 32}")
        S(f"s_lshl_b32 {sr(sP[5])}, {sr(sW)}, 12")
        S(f"s_add_u32 {sr(sP[4])}, {sr(sP[4])}, {sr(sP[5])}")
        S(f"s_lshr_b32 {sr(sP[6])}, s2, 3")
        S(f"s_and_b32 {sr(sP[6])}, {sr(sP[6])}, 31")
        S(f"s_mul_i32 {sr(sP[6])}, {sr(sP[6])}, {LSTR // 32}")
        S(f"s_mul_i32 {sr(sP[5])}, {sr(sW)}, {LSTR // 128}")
        S(f"s_add_u32 {sr(sP[6])}, {sr(sP[6])}, {sr(sP[5])}")
        S(f"s_lshr_b32 s4, s2, 3")
        S(f"s_and_b32 s4, s4, 31")
        S(f"s_lshl_b32 s4, s4, 2")
        S(f"s_add_u32 s4, s4, {sr(sW)}")
        S(f"s_mul_i32 s4, s4, {LSTR // 128}")
        S(f"s_and_b32 s4, s4, 0xffffffc0")
        S(f"s_add_u32 s5, s4, {LSTR}")
        S(f"s_add_u32 s6, s4, {2 * LSTR}")
        if c.keep:
            S(f"s_lshl_b32 s7, s2, 2")
            S(f"s_add_u32 s7, s7, {sr(sW)}")
            S(f"s_lshl_b32 s7, s7, 7")
            S(f"s_add_u32 s7, s7, 0x10000")
            S(f"s_mov_b32 {sr(sDbg + 2)}, 0x8000000")
            S(f"s_mov_b32 {sr(sDbg + 3)}, 0x20000")
        for base, n in ((S_V, NL * LSTR), (S_X, 16384 * 832), (S_U, NL * LSTR), (S_B, NL * 832), (S_O, 16384 * 832)):
            S(f"s_mov_b32 {sr(base + 2)}, {n}")
            S(f"s_mov_b32 {sr(base + 3)}, 0x20000")
        S("s_waitcnt lgkmcnt(0)")
        if c.stamps:
            S(f"s_memtime s[62:63]")

        def stamp(k):
            if c.stamps and c.stamps != "rt":
                S(f"s_memtime s[{80 + 2 * k}:{81 + 2 * k}]")

        s._dm = c.dmamod0 if c.dmamod0 is not None else c.dmamod
        items = []
        M0 = lambda txt: [I(txt, "salu"), I("s_nop 0", "salu")]
        for tok in c.p3order.split():
            if tok == "T6":
                items.append(M0(f"s_mov_b32 m0, {sr(sT6m)}") + [I(f"buffer_load_dwordx4 {vr(DU)}, {sr(S_V, 4)}, {sr(sP[0])} offen{s._dm} lds", "dma", grp="T6")])
            elif tok == "T6b":
                items.append(M0(f"s_mov_b32 m0, {sr(sP[2])}") + [I(f"buffer_load_dwordx4 {vr(DU)}, {sr(S_V, 4)}, {sr(sP[1])} offen{s._dm} lds", "dma", grp="T6b")])
            elif tok[0] == "X":
                f = int(tok[1:])
                dst = xo(f, 0) if f < 10 else xbuf(f)
                items.append([I(f"buffer_load_dwordx4 {vr(dst, 4)}, {vr(XA)}, {sr(S_X, 4)}, {sr(sXo)} offen offset:{64 * f}{c.xmod}", "vload", grp=f"X{f}")])
            elif tok == "BI":
                for k in range(4):
                    so = sr(sP[3]) if k < 3 else "0"
                    items.append([I(f"buffer_load_dwordx2 {vr(s.BI_R + 2 * k, 2)}, {vr(bg)}, {sr(S_B, 4)}, {so} offen offset:{256 * k}", "vload", grp="BI")])
            elif tok == "PW":
                if c.pf_w:
                    PFD = s.ST + 2
                    items.append([I(f"buffer_load_dword {ar(PFD)}, {vr(t[21])}, {sr(S_V, 4)}, {sr(sP[4])} offen{c.pmod}", "vload", grp="PW")])
                    items.append([I(f"buffer_load_dword {ar(PFD + 1)}, {vr(t[21])}, {sr(S_U, 4)}, {sr(sP[4])} offen{c.pmod}", "vload", grp="PW")])
            elif tok[0] == "Q":
                ly = int(tok[1]); srd = S_V if tok[2] == "V" else S_U
                items.append([I(f"buffer_load_dword {ar(s.ST + 2 + 2 * ly + (tok[2] == 'U'))}, {vr(DU)}, {sr(srd, 4)}, s{4 + ly} offen{c.pmod}", "vload", grp="PW")])
            elif tok[:2] == "P0":
                nl = int(tok[3:] or 1)
                srd = S_V if tok[2] == "V" else S_U
                items.append([I(f"s_mov_b64 exec, {hex((1 << (11 * nl)) - 1)}", "salu"),
                              I(f"buffer_load_dword {ar(s.ST + (2 if tok[2] == 'V' else 3))}, {vr(t[22])}, {sr(srd, 4)}, {sr(sP[6])} offen{c.pmod}", "vload", grp="PW"),
                              I(f"s_mov_b64 exec, -1", "salu")])
            else:
                for sc, v in s.dma_items(tok):
                    items.append((M0(sc.txt) if sc is not None else []) + [v])
        fill = []
        cur[0] = fill
        V(f"v_mul_u32_u24 {vr(bl)}, 336, {vr(bl)}")
        V(f"v_lshl_add_u32 {vr(bl)}, {vr(q)}, 4, {vr(bl)}")
        V(f"v_add_u32 {vr(bl)}, {Z}, {vr(bl)}")
        S(f"s_mul_i32 {sr(sT0)}, {sr(sW)}, {SLOT}")
        V(f"v_add_u32 {vr(s.BI_AD)}, {sr(sT0)}, {vr(bl)}")
        S(f"s_add_u32 {sr(sT1)}, {sr(sT0)}, {4 * SLOT}")
        S(f"s_cmp_eq_u32 {sr(sW)}, 3")
        S(f"s_cselect_b32 {sr(sT1)}, 2016, {sr(sT1)}")
        V(f"v_add_u32 {vr(s.BI_AD + 1)}, {sr(sT1)}, {vr(bl)}")
        S(f"s_add_u32 {sr(sT1)}, {sr(sT0)}, {SLOT + 2016}")
        V(f"v_add_u32 {vr(s.BI_AD + 2)}, {sr(sT1)}, {vr(bl)}")
        V(f"v_add_u32 {vr(s.BI_AD + 3)}, {5 * SLOT + 2016}, {vr(bl)}")
        for r in (s.BI_QA + 1, s.BI_QA + 3, s.BI_QB + 1, s.BI_QB + 3):
            V(f"v_mov_b32 {vr(r)}, 0")
        S(f"s_lshl_b32 {sr(sUm)}, {sr(sW)}, 12")
        S(f"s_cmp_eq_u32 {sr(sW)}, 3")
        S(f"s_cselect_b32 {sr(sMXs)}, 86016, {sr(sMXs)}")
        S(f"s_cselect_b32 {sr(sMXm)}, 86016, {sr(sMXm)}")
        S(f"s_cselect_b32 {sr(S_M)}, {sr(S_U)}, {sr(S_V)}")
        S(f"s_cselect_b32 {sr(S_M + 1)}, {sr(S_U + 1)}, {sr(S_V + 1)}")
        S(f"s_mov_b32 {sr(S_M + 2)}, {NL * LSTR}")
        S(f"s_mov_b32 {sr(S_M + 3)}, 0x20000")
        S(f"s_mov_b32 {sr(sMask)}, 0")
        S(f"s_mov_b32 {sr(sMask + 1)}, -1")
        S(f"s_mov_b32 {sr(sCnt)}, {c.nlayers - 2}")
        rho = t[13]
        V(f"v_lshrrev_b32 {vr(x)}, 2, {vr(m)}")
        V(f"v_and_b32 {vr(y)}, 3, {vr(m)}")
        V(f"v_lshlrev_b32 {vr(x)}, 2, {vr(x)}")
        V(f"v_add_u32 {vr(x)}, {vr(x)}, {vr(y)}")
        V(f"v_lshlrev_b32 {vr(rho)}, 1, {vr(x)}")
        V(f"v_and_b32 {vr(x)}, 7, {vr(m)}")
        V(f"v_lshrrev_b32 {vr(y)}, 1, {vr(x)}")
        V(f"v_xor_b32 {vr(y)}, {vr(y)}, {vr(g)}")
        V(f"v_lshlrev_b32 {vr(y)}, 4, {vr(y)}")
        V(f"v_lshl_add_u32 {vr(y)}, {vr(x)}, 7, {vr(y)}")
        V(f"v_lshrrev_b32 {vr(x)}, 3, {vr(m)}")
        V(f"v_mul_u32_u24 {vr(x)}, 1088, {vr(x)}")
        V(f"v_add_u32 {vr(y)}, {vr(y)}, {vr(x)}")
        V(f"v_add_u32 {vr(PV)}, {WIN}, {vr(y)}")
        V(f"v_lshrrev_b32 {vr(x)}, 3, {vr(m)}")
        V(f"v_mul_u32_u24 {vr(x)}, 12, {vr(x)}")
        V(f"v_xor_b32 {vr(x)}, {vr(x)}, {vr(m)}")
        V(f"v_mul_u32_u24 {vr(x)}, 832, {vr(x)}")
        V(f"v_lshl_add_u32 {vr(x)}, {vr(g)}, 4, {vr(x)}")
        V(f"v_add_u32 {vr(PV6)}, {T6}, {vr(x)}")
        if c.zrow:
            V(f"v_add_u32 {vr(x)}, 2, {vr(g)}")
            V(f"v_and_b32 {vr(x)}, 3, {vr(x)}")
            V(f"v_lshlrev_b32 {vr(x)}, 4, {vr(x)}")
            V(f"v_add_u32 {vr(x)}, {ZR}, {vr(x)}")
            V(f"v_cmp_gt_u32 vcc, 8, {vr(m)}")
            V(f"v_lshlrev_b32 {vr(y)}, 2, {vr(lane)}")
            S(f"s_lshl_b32 {sr(sT0)}, {sr(sW)}, 8")
            V(f"v_cndmask_b32 {vr(PV6)}, {vr(x)}, {vr(PV6)}, vcc")
            S(f"s_add_u32 {sr(sT0)}, {sr(sT0)}, {ZR}")
            V(f"v_mov_b32 {vr(x)}, 0")
            V(f"v_add_u32 {vr(y)}, {sr(sT0)}, {vr(y)}")
            cur[0].append(I(f"ds_write_b32 {vr(y)}, {vr(x)}", "dsw"))
        V(f"v_mul_u32_u24 {vr(x)}, 208, {vr(rho)}")
        V(f"v_lshl_add_u32 {vr(PU)}, {vr(g)}, 4, {vr(x)}")
        V(f"v_lshl_add_u32 {vr(x)}, {vr(g)}, 3, {vr(x)}")
        V(f"v_add_u32 {vr(x)}, 192, {vr(x)}")
        V(f"v_lshlrev_b32 {vr(y)}, 3, {vr(m)}")
        V(f"v_add_u32 {vr(y)}, {Z}, {vr(y)}")
        V(f"v_cndmask_b32_e64 {vr(PT)}, {vr(x)}, {vr(y)}, {sr(sMask, 2)}")
        V(f"v_mov_b32 {vr(x)}, {WIN}")
        V(f"v_mov_b32 {vr(y)}, 2016")
        V(f"v_cndmask_b32_e64 {vr(D1)}, {vr(x)}, {vr(y)}, {sr(sMask, 2)}")
        V(f"v_mov_b32 {vr(x)}, {(-WIN) & 0xFFFFFFFF}")
        V(f"v_mov_b32 {vr(y)}, {(-1680) & 0xFFFFFFFF}")
        V(f"v_cndmask_b32_e64 {vr(x)}, {vr(x)}, {vr(y)}, {sr(sMask, 2)}")
        V(f"v_accvgpr_write_b32 {ar(s.ST_D2)}, {vr(x)}")
        if c.stpat == "oct":
            V(f"v_mul_u32_u24 {vr(x)}, 1664, {vr(j)}")
            V(f"v_lshl_add_u32 {vr(x)}, {vr(q)}, 4, {vr(x)}")
            V(f"v_accvgpr_write_b32 {ar(s.ST_XA)}, {vr(x)}")
        else:
            V(f"v_accvgpr_write_b32 {ar(s.ST_XA)}, {vr(XA)}")
        for e in range(0 if c.tail16 else 6):
            V(f"v_accvgpr_write_b32 {ar(s.TR0 + 4 * e + 2)}, 0")
            V(f"v_accvgpr_write_b32 {ar(s.TR0 + 4 * e + 3)}, 0")
        for i in range(20, 104):
            V(f"v_mov_b32 {vr(C0 + i)}, 1.0")
        cur[0] = o
        stamp(0)
        k = 0
        for n, it in enumerate(items):
            o.extend(it)
            if n + 1 >= c.p3start:
                o.extend(fill[k:k + c.p3k]); k += c.p3k
        stamp(1)
        o.extend(fill[k:])
        if c.pw1:
            V(f"v_add_u32 {vr(TMP)}, {LSTR}, {vr(t[22])}")
        stamp(2)
        if not c.bias_in:
            w_ = I(None, "wait"); w_.wait = dict(vm=["BI"], lg=False); o.append(w_)
            o.extend(s.bias_ops())
        stamp(3)
        w_ = I(None, "wait"); w_.wait = dict(vm=["WA", "WB", "V0", "T6", "T6b", "X0"] + [f"X{f}" for f in range(1, c.x0wait + 1)], lg=False, lg0=True); o.append(w_)
        stamp(4)
        o.append(I("s_barrier", "barrier"))
        if c.delayb:
            S(f"s_mov_b32 s69, {c.delayb}")
            o.append(I("L_dlyb:", "label"))
            for _ in range(8):
                S("s_nop 0")
            S("s_sub_u32 s69, s69, 1")
            S("s_cmp_lg_u32 s69, 0")
            S("s_cbranch_scc1 L_dlyb")
        if c.stamps:
            S(f"s_memtime s[64:65]")
            if c.stamps == "rt":
                S(f"s_memrealtime s[80:81]")
            S("s_waitcnt lgkmcnt(0)")
        for T in range(c.LA):
            o.append(s.slot_desc(T, True)[1])
            if T == s.g1_slot_of(0, 5):
                o.append(I(f"v_subrev_u32 {vr(PV)}, {WIN}, {vr(PV)}", "valu"))
        w_ = I(None, "wait"); w_.wait = dict(vm=[], lg=True); o.append(w_)
        return o

    def bias_ops(s):
        o = []
        for k in range(4):
            r = s.BI_R + 2 * k; A_, B_ = s.BI_QA, s.BI_QB; ad = s.BI_AD + k
            o.append(I(f"v_lshlrev_b32 {vr(A_)}, 16, {vr(r)}", "valu"))
            o.append(I(f"v_lshlrev_b32 {vr(A_ + 2)}, 16, {vr(r + 1)}", "valu"))
            o.append(I(f"v_and_b32 {vr(B_)}, 0xffff0000, {vr(r)}", "valu"))
            o.append(I(f"v_and_b32 {vr(B_ + 2)}, 0xffff0000, {vr(r + 1)}", "valu"))
            o.append(I(f"ds_write_b128 {vr(ad)}, {vr(A_, 4)}", "dsw"))
            o.append(I(f"ds_write_b128 {vr(ad)}, {vr(B_, 4)} offset:208", "dsw"))
        for i in range(20):
            o.append(I(f"v_mov_b32 {vr(C0 + i)}, 1.0", "valu"))
        return o

    def resolve(s, trace, res=None, final=True):
        if res is None:
            res = {}
        vm_idx = []
        lastgrp = {}
        nvm = 0
        nds = 0
        areg_ds = {}
        inst = []
        for pos, x in enumerate(trace):
            if x.kind in ("dma", "vload", "store"):
                nvm += 1
                if x.grp:
                    lastgrp[x.grp] = nvm
            elif x.kind in ("dsr", "dsw"):
                if x.kind == "dsr":
                    areg_ds[x.areg] = nds
                nds += 1
            elif x.kind == "wait":
                vmN = None
                if x.wait["vm"]:
                    need = 0
                    for g in x.wait["vm"]:
                        if g not in lastgrp:
                            continue
                        need = max(need, lastgrp[g])
                    vmN = nvm - need
                inst.append((pos, x, vmN, nds))
            elif x.kind == "mfma":
                x_need = areg_ds.get(x.areg)
                assert x_need is not None, x.txt
                trace_need.append(x_need) if False else None
        need_at = [None] * len(trace)
        areg_ds = {}; nds = 0
        for pos, x in enumerate(trace):
            if x.kind in ("dsr", "dsw"):
                if x.kind == "dsr":
                    areg_ds[x.areg] = nds
                nds += 1
            elif x.kind == "mfma":
                need_at[pos] = areg_ds[x.areg]
        lgw = [(pos, x, vmN, nds_) for (pos, x, vmN, nds_) in inst if x.wait["lg"] or x.wait.get("lg0")]
        lgN = {}
        for k, (pos, x, vmN, nds_) in enumerate(lgw):
            end = lgw[k + 1][0] if k + 1 < len(lgw) else len(trace)
            need = [need_at[p] for p in range(pos, end) if need_at[p] is not None]
            if x.wait.get("lg0"):
                N = 0
            elif need:
                mx = max(need)
                assert mx < nds_, ("read issued after its wait", pos, x.wait)
                N = nds_ - 1 - mx
            else:
                N = None
            lgN[pos] = N
        for (pos, x, vmN, nds_) in inst:
            r = res.setdefault(id(x), dict(x=x, vm=None, lg=None))
            if vmN is not None:
                r["vm"] = vmN if r["vm"] is None else min(r["vm"], vmN)
            N = lgN.get(pos)
            if N is not None:
                r["lg"] = N if r["lg"] is None else min(r["lg"], N)
        if not final:
            return
        for r in res.values():
            x = r["x"]; parts = []
            if r["vm"] is not None:
                assert r["vm"] <= 63
                parts.append(f"vmcnt({r['vm']})")
            if r["lg"] is not None:
                parts.append(f"lgkmcnt({min(r['lg'], 15)})")
            x.txt = ("s_waitcnt " + " ".join(parts)) if parts else None
            x.cmt = ",".join(x.wait["vm"])

    def kernel(s):
        c = s.c
        if c.alt is not None:
            c._hdr = True
        pro = {1: s.prologue, 2: s.prologue2, 3: s.prologue3}[c.pro]()
        g1f = s.lin(s.build("g1first"))
        g2l = s.lin(s.build("g2last"))
        proB = g1fB = None
        if c.alt is not None:
            import copy
            c2 = copy.copy(c)
            for k_, v_ in c.alt.items():
                assert hasattr(c, k_), k_
                setattr(c2, k_, v_)
            gB = Gen(c2)
            proB = gB.prologue3()
            g1fB = gB.lin(gB.build("g1first"))
            assert c.wvloop
        if c.wvloop:
            ncopy = len(c.wshift)
            loops = [s.lin(s.build("loop", wave=w)) for w in range(ncopy)]
            res = {}
            for w in range(ncopy):
                if proB is not None:
                    s.resolve(proB + g1fB + loops[w] * (c.nlayers - 1) + g2l, res, final=False)
                s.resolve(pro + g1f + loops[w] * (c.nlayers - 1) + g2l, res, final=(w == ncopy - 1))
            loop = loops[0]
        else:
            loop = s.lin(s.build("loop"))
            trace = pro + g1f + loop * (c.nlayers - 1) + g2l
            s.resolve(trace)
        L = []
        A = L.append
        hdr = open("standalone__cross_network_dcn_v2__recsys.s.ref").read().split("\n")
        for ln in hdr:
            if ln.startswith("; @launch"):
                A(f"; @launch grid=(256,1,1) block=(256,1,1) lds={LDS + (1024 if c.zrow else 0)}")
            elif ln.startswith(";"):
                A(ln)
            else:
                break
        A('.amdgcn_target "amdgcn-amd-amdhsa--gfx950"')
        A(".text"); A(f".globl {KN}"); A(".p2align 8"); A(f".type {KN},@function"); A(f"{KN}:")

        def emit(lst):
            for x in lst:
                if x.txt is None:
                    continue
                if x.kind == "label":
                    A(x.txt); continue
                A("  " + x.txt + (f"   ; {x.cmt}" if x.cmt else ""))
        if c.delay0:
            if c.dly_bit is not None:
                A(f"  s_bitcmp1_b32 s2, {c.dly_bit}")
                A("  s_cbranch_scc0 L_dly0e")
            A(f"  s_mov_b32 s69, {c.delay0}")
            A("L_dly0:")
            for _ in range(8):
                A("  v_mov_b32 v1, v0")
            A("  s_sub_u32 s69, s69, 1")
            A("  s_cmp_lg_u32 s69, 0")
            A("  s_cbranch_scc1 L_dly0")
            A("L_dly0e:")
        if c.alt is not None:
            A("  s_cmp_ge_u32 s2, 256")
            A("  s_cbranch_scc1 L_end")
            A(f"  s_getpc_b64 {sr(S_M, 2)}")
            A("L_pc:")
            A(f"  s_bitcmp1_b32 s2, {c.alt_bit}")
            A("  s_cbranch_scc1 L_alt")
        emit(pro)
        A("; ---- G1 first"); emit(g1f)
        if c.alt is not None:
            A("L_join:")
        if c.stamps:
            A("  s_memtime s[74:75]")
            if c.stamps == "rt":
                A("  s_memrealtime s[82:83]")
            A("  s_waitcnt lgkmcnt(0)")
        if "vmwait" in c.drop:
            import re
            for x in loop:
                if x.kind == "wait" and x.txt:
                    x.txt = re.sub(r"vmcnt\(\d+\) ?", "", x.txt)
                    if x.txt.strip() == "s_waitcnt":
                        x.txt = None
        def flt(lst):
            o_ = []; k_ = 0
            for x in lst:
                if x.kind in c.drop:
                    continue
                if c.drophalf and x.kind == "dsr":
                    k_ += 1
                    if k_ % c.drophalf:
                        continue
                o_.append(x)
            return o_
        if c.wvloop:
            if ncopy == 2:
                A(f"  s_and_b32 s3, s{sW}, 1"); A(f"  s_cbranch_scc1 L_loop1")
            else:
                for w in range(1, 4):
                    A(f"  s_cmp_eq_u32 s{sW}, {w}"); A(f"  s_cbranch_scc1 L_loop{w}")
            for w in range(ncopy):
                A(f"; ---- loop of wave {w}"); A(f"L_loop{w}:"); emit(flt(loops[w]))
                A(f"  s_cbranch_scc0 L_loop{w}")
                if w < ncopy - 1:
                    A("  s_branch L_g2l")
            A("L_g2l:")
        else:
            A("; ---- loop"); A("L_loop:"); emit([x for x in loop if x.kind not in c.drop])
            A("  s_cbranch_scc0 L_loop")
        if c.stamps:
            A("  s_memtime s[76:77]")
            if c.stamps == "rt":
                A("  s_memrealtime s[84:85]")
            A("  s_waitcnt lgkmcnt(0)")
        if c.delaym:
            A(f"  s_mov_b32 s69, {c.delaym}")
            A("L_dlym:")
            for _ in range(8):
                A("  s_nop 0")
            A("  s_sub_u32 s69, s69, 1")
            A("  s_cmp_lg_u32 s69, 0")
            A("  s_cbranch_scc1 L_dlym")
        if c.nost_bit == -1:
            A(f"  s_mov_b32 s{S_O + 2}, 0")
        elif c.nost_bit is not None:
            A(f"  s_bitcmp1_b32 s2, {c.nost_bit}")
            A(f"  s_cselect_b32 s{S_O + 2}, 0, s{S_O + 2}")
        A("; ---- G2 last"); emit(g2l)
        if c.delay:
            A(f"  s_mov_b32 s69, {c.delay}")
            A("L_dly:")
            for _ in range(8):
                A("  v_mov_b32 v0, v1")
            A("  s_sub_u32 s69, s69, 1")
            A("  s_cmp_lg_u32 s69, 0")
            A("  s_cbranch_scc1 L_dly")
        if c.stamps:
            A("  s_memtime s[66:67]")
            A("  s_waitcnt vmcnt(0) lgkmcnt(0)")
            A("  s_memtime s[78:79]")
            A("  s_memrealtime s[72:73]")
            A("  s_waitcnt lgkmcnt(0)")
            for k, reg in enumerate((62, 64, 74, 76, 66, 78, 80, 82, 84, 86, 88, 90)):
                A(f"  s_sub_u32 s{reg}, s{reg}, " + ("s70" if (c.stamps == "rt" and reg >= 80) else "s60"))
            A(f"  s_mov_b32 s{sDbg + 2}, 0x100000"); A(f"  s_mov_b32 s{sDbg + 3}, 0x20000")
            A(f"  s_lshl_b32 s68, s2, 2"); A(f"  s_add_u32 s68, s68, s{sW}"); A("  s_lshl_b32 s68, s68, 6")
            for k, reg in enumerate((62, 64, 74, 76, 66, 78, 70, 72, 80, 82, 84, 86, 88, 90, 60, 60)):
                A(f"  v_mov_b32 v{k}, s{reg}")
            A("  v_mov_b32 v16, 0")
            if c.dbg:
                A(f"  s_mov_b32 s{sDbg + 2}, 256")
                A("  v_mov_b32 v20, s72"); A("  s_sub_u32 s73, -1, s70"); A("  v_mov_b32 v21, s73")
                A("  s_mov_b64 exec, 1")
                A(f"  buffer_atomic_umax v20, v16, s[{sDbg}:{sDbg + 3}], 0 offen")
                A(f"  buffer_atomic_umax v21, v16, s[{sDbg}:{sDbg + 3}], 0 offen offset:4")
                A("  s_sub_u32 s73, s72, s70"); A("  v_mov_b32 v22, s73")
                A(f"  buffer_atomic_umax v22, v16, s[{sDbg}:{sDbg + 3}], 0 offen offset:8")
                for k, r in enumerate((62, 64, 74, 76, 66, 78, 80, 82, 84)):
                    A(f"  v_mov_b32 v23, s{r}")
                    A(f"  buffer_atomic_umax v23, v16, s[{sDbg}:{sDbg + 3}], 0 offen offset:{12 + 4 * k}")
                    A("  s_nop 1")
                A("  s_mov_b64 exec, -1")
            else:
              for k in range(4):
                A(f"  buffer_store_dwordx4 v[{4 * k}:{4 * k + 3}], v16, s[{sDbg}:{sDbg + 3}], s68 offen offset:{16 * k}")
        if c.lstamps:
            nls = len(c.lstamps)
            A(f"  s_memtime s[{64 + 2 * nls}:{65 + 2 * nls}]")
            A("  s_waitcnt vmcnt(0) lgkmcnt(0)")
            A(f"  s_memtime s[{66 + 2 * nls}:{67 + 2 * nls}]")
            A(f"  s_load_dwordx2 s[{sDbg}:{sDbg + 1}], s[0:1], 48")
            A("  s_waitcnt lgkmcnt(0)")
            A(f"  s_mov_b32 s{sDbg + 2}, 0x100000"); A(f"  s_mov_b32 s{sDbg + 3}, 0x20000")
            A(f"  s_lshl_b32 s61, s2, 2"); A(f"  s_add_u32 s61, s61, s{sW}"); A("  s_lshl_b32 s61, s61, 6")
            for k in range(16):
                A(f"  v_mov_b32 v{k}, s{64 + 2 * min(k, len(c.lstamps) + 1)}")
            A("  v_mov_b32 v16, 0")
            for k in range(4):
                A(f"  buffer_store_dwordx4 v[{4 * k}:{4 * k + 3}], v16, s[{sDbg}:{sDbg + 3}], s61 offen offset:{16 * k}")
        A("L_end:"); A("  s_endpgm")
        if c.alt is not None:
            A("; ---- second start-up path"); A("L_alt:"); emit(proB)
            A("; ---- G1 first, second path"); emit(g1fB)
            A("  s_branch L_join"); A("L_fin:")
        A('.section .rodata,"a"'); A(".p2align 6"); A(f".amdhsa_kernel {KN}")
        nv = 256 + s.NA
        A(f"  .amdhsa_next_free_vgpr {nv}"); A("  .amdhsa_next_free_sgpr 102"); A("  .amdhsa_accum_offset 256")
        A("  .amdhsa_group_segment_fixed_size 0"); A("  .amdhsa_kernarg_size 56"); A("  .amdhsa_user_sgpr_count 2")
        A("  .amdhsa_user_sgpr_kernarg_segment_ptr 1"); A("  .amdhsa_system_sgpr_workgroup_id_x 1"); A(".end_amdhsa_kernel")
        s.sizes = dict(pro=len(pro), g1f=len(g1f), loop=len(loop), g2l=len(g2l))
        s.parts = dict(pro=pro, g1f=g1f, loop=loop, g2l=g2l)
        return "\n".join(L) + "\n"


def est_cycles(lst):
    cyc = 0; sc = 0; vc = 0; started = False
    for x in lst:
        if x.txt is None:
            continue
        if x.kind == "mfma":
            if started:
                cyc += 16 + 4 * (max(0, sc - 1) + max(0, vc - 2))
            started = True; sc = 0; vc = 0
        elif x.kind in ("salu", "wait", "barrier"):
            sc += 1
        else:
            vc += 1
    cyc += 16 + 4 * (max(0, sc - 1) + max(0, vc - 2))
    return cyc


if __name__ == "__main__":
    cfg = Cfg()
    out = "standalone__cross_network_dcn_v2__recsys.s"
    for a in sys.argv[1:]:
        if "=" in a:
            k, v = a.split("=", 1)
            if k == "out":
                out = v
            else:
                setattr(cfg, k, eval(v))
    g = Gen(cfg)
    txt = g.kernel()
    open(out, "w").write(txt)
    print("sizes", g.sizes, {k: est_cycles(v) for k, v in g.parts.items() if k != "pro"})
```

```python
import sys, copy
sys.path.insert(0, "gen")
import gen
G = lambda a, b, c_, d: None
U_STD = {'G0': ([29, 32, 35, 38], 68), 'G1': ([43, 46, 49, 52], 91), 'G2': ([55, 59, 63, 67], 111), 'G3': ([71, 75, 79, 83], 131)}
def allV():
    d = {'V1': ([], 2), 'V2': ([], 14), 'V3': ([], 28), 'V4': ([], 42), 'V5': ([], 54)}; d.update(U_STD); return d
XS = lambda a, b: " ".join(f"X{i}" for i in range(a, b + 1))
PRE = {
 "mk": dict(p3order="V0 WA WB T6 T6b X0 X1 Q0V Q0U BI V1 X2 X3 X4 V2 X5 X6 X7 X8 X9 X10 X11 X12", xin={}, bias_in=False, bias_at=(14, 60),
            bars1=[2, 14, 28, 42, 54, 68], dma1=gen.Cfg.dma1),
 "mk2": dict(p3order="V0 WA WB T6 T6b X0 X1 Q0V Q0U BI V1 X2 X3 V2 X4 X5 V3 X6", xin={7: 0, 8: 7, 9: 8, 10: 13, 11: 14, 12: 15},
             dma1={"V1": ([], 2), "V2": ([], 14), "V3": ([], 28), "V4": ([3, 4, 5], 42), "V5": ([10, 11, 12], 54), "G0": ([29, 32, 35, 38], 78),
                   "G1": ([43, 46, 49, 52], 91), "G2": ([55, 59, 63, 67], 111), "G3": ([79, 82, 85, 88], 131)},
             bias_in=True, bias_at=(7, 20), bars1=[2, 14, 28, 42, 54, 78]),
 "LO": dict(p3order="Q0V Q0U V0 WA WB T6 T6b BI V1 V2 V3 V4 V5 " + XS(0, 12), xin={}, bias_in=False, bias_at=(14, 60), bars1=[2, 14, 28, 42, 54, 68], dma1=allV()),
 "LO2": dict(p3order="Q0V Q0U V0 WA WB T6 T6b BI V1 V2 V3 X0 X1 V4 X2 X3 V5 " + XS(4, 12), xin={}, bias_in=False, bias_at=(14, 60), bars1=[2, 14, 28, 42, 54, 68], dma1=allV()),
 "LO3": dict(p3order="Q0V Q0U V0 WA WB T6 T6b BI V1 X0 V2 X1 V3 X2 X3 V4 X4 X5 V5 " + XS(6, 12), xin={}, bias_in=False, bias_at=(14, 60), bars1=[2, 14, 28, 42, 54, 68], dma1=allV()),
 "LOP": dict(p3order="Q0V Q0U V0 WA WB T6 T6b PW BI V1 V2 V3 V4 V5 " + XS(0, 12), pf_w=True, xin={}, bias_in=False, bias_at=(14, 60), bars1=[2, 14, 28, 42, 54, 68], dma1=allV()),
 "LOP2": dict(p3order="PW V0 WA WB T6 T6b BI V1 V2 V3 V4 V5 " + XS(0, 12), pf_w=True, xin={}, bias_in=False, bias_at=(14, 60), bars1=[2, 14, 28, 42, 54, 68], dma1=allV()),
 "NEED": dict(p3order="V0 WA WB T6 T6b X0 Q0V Q0U BI V1 X1 X2 V2 X3 X4 V3 X5 X6 V4 X7 X8 V5 X9 X10 X11 X12", xin={}, bias_in=False, bias_at=(14, 60), bars1=[2, 14, 28, 42, 54, 68], dma1=allV()),
}
def make(out, E="mk", L=None, **opts):
    c = gen.Cfg()
    base = dict(pro=3, pf_code=1, pf_slice=16, pf_w=False, stmod=" sc1", pl=[(105, "V"), (68, "U")], pl1=[(53, "V"), (84, "U")],
                wvloop=True, wshift=(0, 2), zrow=True, g2chain=True)
    base.update(PRE[E])
    if L:
        base["alt"] = dict(PRE[L]); base["pf_bytes"] = 24576
    altx = opts.pop("altx", None)
    base.update(opts)
    if altx: base["alt"].update(altx)
    for k, v in base.items():
        assert hasattr(c, k), k
        setattr(c, k, v)
    g = gen.Gen(c); txt = g.kernel(); open(out, "w").write(txt)
    return g
if __name__ == "__main__":
    o = {}
    for a in sys.argv[2:]:
        k, v = a.split("=", 1)
        o[k] = v if k in ("E", "L") else eval(v)
    g = make(sys.argv[1], **o); print(sys.argv[1], g.sizes)
```

```python
import sys, json

KN = "standalone__cross_network_dcn_v2__recsys_kernel"
NL = 6
SLOT = 6656
WIN = 7 * SLOT
Z = 87040
T6 = Z + 6 * SLOT + 4032
LDS = 138240
ZR = 138240
LSTR = 86528
C0, X0, H0, XF = 0, 104, 208, 236
TMP, PV, PV6, PU, PT, DV, DU, D1 = 248, 249, 250, 251, 252, 253, 254, 255
S_X, S_U, S_V, S_B, S_O, S_M = 8, 12, 16, 20, 24, 28
(sW, sVb, sVs0, sVs1, sVs2, sWAs, sWAm, sWBs, sWBm, sT6s, sT6m, sMXs, sMXm, sUm, sLm, sCnt,
 sXo, sT0, sT1, sT2, sT3) = range(32, 53)
sMask = 54
sDbg = 56


class Cfg:
    LA = 12
    RING = 13
    NW = 4
    SWV = 8
    headint = True
    bars = [2, 20, 34, 54, 68, 91, 111, 131, 147, 163, 179]
    dma = {
        "V5": ([3, 7, 11], 54),
        "G0": ([21, 25, 29, 33], 68),
        "G1": ([37, 41, 45, 49], 91),
        "G2": ([55, 59, 63, 67], 111),
        "G3": ([71, 75, 79, 83], 131),
        "G4": ([92, 96, 100, 104], 147),
        "L": ([108], 163),
        "MX": ([113], 163),
        "T6": ([117], 179),
        "WA": ([121], 179),
        "WB": ([125], 179),
        "V0": ([132, 136, 140], 179),
        "V1": ([144, 148, 152], 2),
        "V2": ([156, 160, 164], 2),
        "V3": ([168, 172, 176], 20),
        "V4": ([180, 184, 188], 34),
    }
    stamps = False
    bars1 = [2, 14, 28, 42, 54, 68]
    dma1 = {
        "V1": ([], 2), "V2": ([], 14),
        "V3": ([0, 3, 6], 28), "V4": ([9, 12, 15], 42), "V5": ([18, 21, 24], 54),
        "G0": ([29, 32, 35, 38], 68), "G1": ([43, 46, 49, 52], 91),
        "G2": ([55, 59, 63, 67], 111), "G3": ([71, 75, 79, 83], 131),
    }
    p3order = "V0 WA WB T6 T6b X0 X1 BI PW V1 X2 X3 X4 V2 X5 X6 X7 X8 X9 X10 X11 X12"
    x0wait = 0
    delayb = 0
    tail16 = False
    zrow = False
    stwin = 0
    bias_in = False
    otmod = ""
    keep = ()
    keepmod = " sc1"
    keepld = False
    otld = None
    otouch = None
    xin = {}
    pl = ()
    pl1 = ()
    pw1 = ()
    p3start = 8
    p3k = 8
    pro = 2
    bi_early = True
    bias_at = (14, 60)
    pf_code = False
    delay = 0
    delay0 = 0
    delaym = 0
    lphase = "loop"
    wvloop = False
    wshift = (0, 1, 2, 3)
    lstamps = None
    dma_first = False
    dmamod = ""
    stmod = ""
    stsplit = 13
    stmod2 = ""
    stpat = ""
    xmod = ""
    pmod = ""
    dmamod0 = None
    dbg = False
    drop = ()
    pf_w = False
    nlayers = NL
    dly_bit = None
    alt = None
    alt_bit = 3
    alt_mask = None
    itst = False
    smix = 0
    dmaw = None
    g1mode = "k"
    headn = 2
    g2chain = False
    _hdr = False
    pf_slice = 0
    pf_bytes = 18432
    nost_bit = None
    drophalf = 0


class I:
    __slots__ = ("txt", "kind", "grp", "areg", "wait", "cmt")

    def __init__(s, txt, kind, grp=None, areg=None, cmt=None):
        s.txt, s.kind, s.grp, s.areg, s.cmt = txt, kind, grp, areg, cmt
        s.wait = None


def vr(a, n=1):
    return f"v{a}" if n == 1 else f"v[{a}:{a + n - 1}]"


def ar(a, n=1):
    return f"a{a}" if n == 1 else f"a[{a}:{a + n - 1}]"


def sr(a, n=1):
    return f"s{a}" if n == 1 else f"s[{a}:{a + n - 1}]"


def cpos(p, tau):
    return C0 + 8 * p + 4 * tau


def xe(p, q):
    return X0 + 8 * p + q


def xo(p, q):
    return X0 + 8 * p + 4 + q


def xbuf(f):
    return XF + 4 * (f % 3)


class Gen:
    def __init__(s, cfg):
        s.c = cfg
        s.TR0 = 4 * cfg.RING
        s.ST = s.TR0 + 24
        s.ST_XA, s.ST_D2 = s.ST, s.ST + 1
        s.NA = s.ST + 12
        if cfg.smix:
            s.NA = 128

    def g1_order(s, ks):
        return [1, 3, 5, 0, 2, 4, 6] if ks == 0 else list(range(7))

    def g1_seq(s):
        if getattr(s, "_seq", None) is None:
            if s.c.g1mode == "k":
                q = [(st, t) for st in range(13) for t in s.g1_order(st)]
            else:
                q = [(0, 1), (0, 3), (0, 5)]
                for j in range(5):
                    for t in (0, 2, 4, 6):
                        q += [(2 * j, t), (2 * j + 1, t)]
                    for t in (1, 3, 5):
                        q += [(2 * j + 1, t), (2 * j + 2, t)]
                for t in (2, 4, 6, 0):
                    q += [(10, t), (11, t)]
                q += [(12, 0), (11, 1), (12, 1), (12, 2), (11, 3), (12, 3), (12, 4), (11, 5), (12, 5), (12, 6)]
            assert len(q) == 91 and len(set(q)) == 91
            s._seq = q
        return s._seq

    def fuse(s, f):
        u = [i for i, (st, t) in enumerate(s.g1_seq()) if st == f]
        return u[0], u[-1]

    def pv_switch(s):
        return s.g1_slot_of(s.c.SWV - 1, 5) if s.c.g1mode == "k" else s.g1_slot_of(8, 5)

    def g2_order(s):
        o = []
        p0 = 0
        if s.c.headint:
            for ks in range(4):
                for p in range(s.c.headn):
                    for tau in (0, 1):
                        o.append((p, tau, ks))
            p0 = s.c.headn
        for p in range(p0, 13):
            if s.c.g2chain:
                for tau in (0, 1):
                    for ks in range(4):
                        o.append((p, tau, ks))
                continue
            for ks in range(4):
                for tau in (0, 1):
                    o.append((p, tau, ks))
        return o

    def ring(s, T):
        return 4 * (T % s.c.RING)

    def slot_desc(s, T, first=False):
        c = s.c
        if T < 91:
            st, t = s.g1_seq()[T]
            a = s.ring(T)
            if t < 6:
                ks, tau = t >> 1, t & 1
                if tau == 0:
                    if st < 12:
                        k = 2 * (st >> 1); ab = SLOT * (k + 1) + 2112 * ks + 64 * (st & 1); grp = f"V{k >> 1}"
                    else:
                        ab = Z + SLOT * ks + 4032; grp = "W"
                else:
                    if st == 0:
                        ab = Z + SLOT * ks + 4032 + 64; grp = "W"
                    else:
                        j = (st - 1) >> 1; k = 2 * j + 1
                        ab = SLOT * (k + 1) + 2112 * ks + 64 * ((st - 1) & 1); grp = f"V{j}"
                high = T > s.pv_switch() or (st == 0 and tau == 1)
                imm = ab - (WIN if high else 0)
                assert 0 <= imm < 65536, (T, imm)
                rd = I(f"ds_read_b128 {ar(a, 4)}, {vr(PV)} offset:{imm}", "dsr", areg=a)
            else:
                rd = I(f"ds_read_b128 {ar(a, 4)}, {vr(PV6)} offset:{64 * st}", "dsr", areg=a)
            D = H0 + 4 * t
            if first:
                B = xo(st, 0) if st < 10 else xbuf(st)
            else:
                B = xbuf(st)
            Cc = "0" if st == 0 else vr(D, 4)
            mf = I(f"v_mfma_f32_16x16x32_bf16 {vr(D, 4)}, {ar(a, 4)}, {vr(B, 4)}, {Cc}", "mfma", areg=a)
            return mf, rd
        p, tau, ks = s.g2_order()[T - 91]
        D = cpos(p, tau)
        if ks < 3:
            a = s.ring(T)
            imm = SLOT * (p % 7) + 208 * tau + 64 * ks
            rd = I(f"ds_read_b128 {ar(a, 4)}, {vr(PU)} offset:{imm}", "dsr", areg=a)
            B = H0 + 8 * ks
        else:
            a = s.TR0 + 4 * (2 * (p % 3) + tau)
            imm = SLOT * (p % 7) + 208 * tau
            rd = I(f"ds_read_b64 {ar(a, 2)}, {vr(PT)} offset:{imm}", "dsr", areg=a)
            B = H0 + 24
        if ks == 3 and c.tail16:
            mf = I(f"v_mfma_f32_16x16x16_bf16 {vr(D, 4)}, {ar(a, 2)}, {vr(B, 2)}, {vr(D, 4)}", "mfma", areg=a)
        else:
            mf = I(f"v_mfma_f32_16x16x32_bf16 {vr(D, 4)}, {ar(a, 4)}, {vr(B, 4)}, {vr(D, 4)}", "mfma", areg=a)
        return mf, rd

    def g2_slot_of(s, p, tau, ks):
        return 91 + s.g2_order().index((p, tau, ks))

    def g1_slot_of(s, st, t):
        return s.g1_seq().index((st, t))

    def dma_items(s, g):
        V = lambda txt: I(txt.replace(" lds", getattr(s, "_dm", s.c.dmamod) + " lds"), "dma", grp=g)
        S = lambda txt: I(txt, "salu")
        if g[0] == "V":
            j = int(g[1]); out = []
            for ks in range(3):
                out.append((S(f"s_add_u32 m0, {sr(sVb)}, {13184 * j + 2112 * ks + SLOT}"),
                            V(f"buffer_load_dwordx4 {vr(DV)}, {sr(S_V, 4)}, {sr(sVs0 + ks)} offen offset:{128 * j} lds")))
            return out
        if g[0] == "G":
            n = int(g[1]); out = []
            for i in range(4):
                sc = S(f"s_add_u32 m0, {sr(sUm)}, {16384 * n}") if i == 0 else None
                out.append((sc, V(f"buffer_load_dwordx4 {vr(DU)}, {sr(S_U, 4)}, m0 offen offset:{1024 * i} lds")))
            return out
        if g == "L":
            return [(S(f"s_mov_b32 m0, {sr(sLm)}"), V(f"buffer_load_dwordx4 {vr(DU)}, {sr(S_U, 4)}, m0 offen lds"))]
        if g == "MX":
            return [(S(f"s_mov_b32 m0, {sr(sMXm)}"), V(f"buffer_load_dwordx4 {vr(DU)}, {sr(S_M, 4)}, {sr(sMXs)} offen lds"))]
        if g == "T6":
            return [(S(f"s_mov_b32 m0, {sr(sT6m)}"), V(f"buffer_load_dwordx4 {vr(DU)}, {sr(S_V, 4)}, {sr(sT6s)} offen lds"))]
        if g == "WA":
            return [(S(f"s_mov_b32 m0, {sr(sWAm)}"), V(f"buffer_load_dwordx4 {vr(DV)}, {sr(S_V, 4)}, {sr(sWAs)} offen offset:768 lds"))]
        if g == "WB":
            return [(S(f"s_mov_b32 m0, {sr(sWBm)}"), V(f"buffer_load_dwordx4 {vr(DV)}, {sr(S_V, 4)}, {sr(sWBs)} offen offset:768 lds"))]
        raise KeyError(g)

    def xfrag_ops(s, f, dst=None):
        b = xbuf(f) if dst is None else dst
        o = []
        for q in range(4):
            o.append(I(f"v_mul_f32 {vr(b + q)}, {vr(xe(f, q))}, {vr(cpos(f, 0) + q)}", "valu"))
            o.append(I(f"v_mul_f32 {vr(TMP)}, {vr(xo(f, q))}, {vr(cpos(f, 1) + q)}", "valu"))
            o.append(I(f"v_cvt_pk_bf16_f32 {vr(b + q)}, {vr(b + q)}, {vr(TMP)}", "valu"))
        return o

    def unpack_ops(s, f):
        src = xo(f, 0) if f < 10 else xbuf(f)
        o = []
        for q in range(4):
            o.append(I(f"v_lshlrev_b32 {vr(xe(f, q))}, 16, {vr(src + q)}", "valu"))
            o.append(I(f"v_and_b32 {vr(xo(f, q))}, 0xffff0000, {vr(src + q)}", "valu"))
        return o

    def hcvt_ops(s, ks):
        if ks < 3:
            b = H0 + 8 * ks
            return [I(f"v_cvt_pk_bf16_f32 {vr(b + q)}, {vr(b + q)}, {vr(b + 4 + q)}", "valu") for q in range(4)]
        b = H0 + 24
        o = [I(f"v_cvt_pk_bf16_f32 {vr(b)}, {vr(b)}, {vr(b + 1)}", "valu"),
             I(f"v_cvt_pk_bf16_f32 {vr(b + 1)}, {vr(b + 2)}, {vr(b + 3)}", "valu")]
        if not s.c.tail16:
            o += [I(f"v_mov_b32 {vr(b + 2)}, 0", "valu"), I(f"v_mov_b32 {vr(b + 3)}, 0", "valu")]
        o.append(I(f"v_cndmask_b32_e64 {vr(b)}, {vr(b)}, 0.5, {sr(sMask, 2)}", "valu"))
        if not s.c.zrow:
            o.append(I(f"v_cndmask_b32_e64 {vr(b + 1)}, {vr(b + 1)}, 0, {sr(sMask, 2)}", "valu"))
        return o

    class Phase:
        def __init__(s, T0, n):
            s.T0, s.n = T0, n
            s.m = [None] * n; s.r = [None] * n
            s.sc = [[] for _ in range(n)]
            s.vx = [[] for _ in range(n)]

        def load(s, i):
            return len(s.vx[i])

    def spread(s, ph, ops, lo, hi, deadline_groups=None):
        n = hi - lo + 1
        base = [ph.load(i) for i in range(lo, hi + 1)]
        tot = sum(base) + len(ops)
        lvl = 0
        while sum(max(0, lvl - b) for b in base) < len(ops):
            lvl += 1
        cap = [max(0, lvl - b) for b in base]
        excess = sum(cap) - len(ops)
        idxs = [i for i in range(n) if cap[i] > 0]
        if excess > 0:
            step = len(idxs) / excess
            for e in range(excess):
                cap[idxs[int((e + 0.5) * step)]] -= 1
        k = 0
        for i in range(n):
            for _ in range(cap[i]):
                ph.vx[lo + i].append(ops[k]); k += 1
        assert k == len(ops)

    def build(s, kind, wave=None):
        c = s.c
        LA = c.LA
        if kind == "g1first":
            Ts = list(range(0, 91))
        elif kind == "loop":
            Ts = list(range(91, 195)) + list(range(0, 91))
        else:
            Ts = list(range(91, 195))
        n = len(Ts)
        ph = s.Phase(Ts[0], n)
        ph.kind = kind
        ph.Ts = Ts
        pos = {T: i for i, T in enumerate(Ts)}
        first = kind == "g1first"
        last = kind == "g2last"
        for i, T in enumerate(Ts):
            ph.m[i] = s.slot_desc(T, first)[0]
            Tn = (T + LA) % 195
            if last and T + LA >= 195:
                ph.r[i] = None
            else:
                ph.r[i] = s.slot_desc(Tn, False)[1]

        def at(T):
            return pos.get(T % 195)

        p3 = first and c.pro == 3
        s._dm = c.dmamod0 if (first and c.dmamod0 is not None) else c.dmamod
        cdma = c.dma1 if p3 else c.dma
        cbars = c.bars1 if p3 else c.bars
        groups = dict(cdma)
        if last:
            for g in list(groups):
                if g not in ("G4", "L", "MX"):
                    del groups[g]
        m0_req = []
        dma_slots = []
        for g, (slots, arr) in groups.items():
            items = s.dma_items(g)
            if not slots:
                continue
            assert len(items) == len(slots), g
            ovr = wave is not None and c.dmaw and g in c.dmaw[wave]
            if ovr:
                slots = c.dmaw[wave][g]
            for (sc, v), T in zip(items, slots):
                if wave is not None and not ovr:
                    T = T + c.wshift[wave]
                i = at(T)
                if i is None:
                    continue
                ph.vx[i].append(v)
                dma_slots.append(i)
                if sc is not None:
                    m0_req.append((i, sc))
        dma_slots.sort()
        bars = [b for b in cbars if at(b) is not None]
        if last:
            need = set()
            for g in ("G1", "G2", "G3", "G4", "L", "MX"):
                need.add(c.dma[g][1])
            bars = [b for b in bars if b in need or b == 91]
        fixed = {}
        for b in bars:
            i = at(b)
            ph.sc[i].append(I("s_barrier", "barrier"))
            arrivals = [g for g, (sl, arr) in cdma.items() if arr == b]
            if last:
                arrivals = [g for g in arrivals if g in ("G1", "G2", "G3", "G4", "L", "MX")]
            if arrivals:
                w = I(None, "wait"); w.wait = dict(vm=arrivals, lg=True)
                j = i - 1
                if j < 0:
                    ph.pre_wait = w
                else:
                    ph.sc[j].append(w)
        if kind in ("g1first", "loop"):
            nb = (Ts[-1] + 1) % 195
            if nb in c.bars:
                arrivals = [g for g, (sl, arr) in c.dma.items() if arr == nb]
                if arrivals:
                    w = I(None, "wait"); w.wait = dict(vm=arrivals, lg=True)
                    ph.sc[n - 1].append(w)
        if first:
            for st in range(1, 13):
                fr = st if st < 10 else None
                if p3:
                    grp = [f"X{st}"]
                elif st == 9:
                    grp = ["X9", "X10", "X11", "X12"]
                elif st > 9:
                    continue
                else:
                    grp = [f"X{st}"]
                if (c.pro == 2 or (p3 and c.bias_in)) and s.fuse(st)[0] - 1 < c.bias_at[0] <= (s.fuse(st + 1)[0] if st < 12 else 91) - 1:
                    grp = grp + ["BI"]
                j = s.fuse(st)[0] - 1
                ex = [x for x in ph.sc[j] if x.kind == "wait"]
                if ex:
                    ex[0].wait["vm"] = ex[0].wait["vm"] + grp
                else:
                    w = I(None, "wait"); w.wait = dict(vm=grp, lg=True)
                    ph.sc[j].append(w)
        for i, sc in sorted(m0_req, key=lambda x: x[0]):
            prev = max([d for d in dma_slots if d < i], default=-1)
            placed = False
            for j in range(i, prev, -1):
                if j >= 0 and not ph.sc[j]:
                    ph.sc[j].append(sc); placed = True; break
            if not placed:
                ph.sc[i].append(sc)
        if kind == "loop":
            ph.loopctl = True
        def put(T, ins):
            i = at(T)
            if i is not None:
                ph.vx[i].append(ins)
        rdslot = lambda T: (T - LA) % 195
        put(rdslot(s.pv_switch()), I(f"v_add_u32 {vr(PV)}, {WIN}, {vr(PV)}", "valu"))
        if not last:
            if not first:
                put(rdslot(s.g1_slot_of(0, 5)), I(f"v_subrev_u32 {vr(PV)}, {WIN}, {vr(PV)}", "valu"))
        if not first:
            lastPU6 = max(s.g2_slot_of(6, t, k) for t in (0, 1) for k in range(3))
            put(rdslot(lastPU6), I(f"v_add_u32 {vr(PU)}, {WIN}, {vr(PU)}", "valu"))
            put(rdslot(s.g2_slot_of(6, 1, 3)), I(f"v_add_u32 {vr(PT)}, {vr(PT)}, {vr(D1)}", "valu"))
            if not last:
                put(rdslot(s.g2_slot_of(12, 1, 3)), I(f"v_subrev_u32 {vr(PU)}, {WIN}, {vr(PU)}", "valu"))
        if kind == "loop":
            put(0, I(f"v_accvgpr_read_b32 {vr(TMP)}, {ar(s.ST_D2)}", "valu"))
            put(1, I(f"v_add_u32 {vr(PT)}, {vr(PT)}, {vr(TMP)}", "valu"))
            put(2, I(f"v_add_u32 {vr(DU)}, {LSTR}, {vr(DU)}", "valu"))
        if kind == "loop":
            for T in c.keep:
                if c.keepld:
                    put(T, I(f"buffer_load_dword {ar(s.ST + 9)}, off, {sr(sDbg, 4)}, s7{c.keepmod}", "vload", grp="KP"))
                    put(T + 1, I(f"s_add_u32 s7, s7, 0x100000", "salu"))
                else:
                    put(T, I(f"buffer_store_dword {vr(D1)}, off, {sr(sDbg, 4)}, s7{c.keepmod}", "store", grp="KP"))
            for k_, (T, mat) in enumerate(c.pl):
                put(T, I(f"buffer_load_dword {ar(s.ST + 10 + k_)}, {vr(DU)}, {sr(S_V if mat == 'V' else S_U, 4)}, {'s6' if T >= 91 else 's5'} offen{c.pmod}", "vload", grp="PW"))
        if kind in ("loop", "g1first"):
            put(86, I(f"v_add_u32 {vr(DV)}, {LSTR}, {vr(DV)}", "valu"))
        if c.smix and kind == "loop":
            F = c.smix
            put(84, I(f"v_accvgpr_read_b32 {vr(TMP)}, a88", "valu"))
            if "w" in F:
                for t_ in range(7):
                    put(87 + t_, I(f"ds_write_b128 {vr(TMP)}, {vr(H0 + 4 * t_, 4)} offset:{1024 * (t_ % 6)}", "dsw"))
                for t_ in range(6):
                    put(103 + t_, I(f"ds_write_b128 {vr(TMP)}, {vr(H0 + 8 * (t_ % 3), 4)} offset:{1024 * t_}", "dsw"))
            if "b" in F:
                ph.sc[at(94)].append(I("s_waitcnt lgkmcnt(0)", "salu"))
                ph.sc[at(95)].append(I("s_barrier", "barrier"))
                ph.sc[at(110)].append(I("s_waitcnt lgkmcnt(0)", "salu"))
            if "r" in F:
                for t_ in range(7):
                    put(96 + t_, I(f"ds_read_b128 {ar(92 + 4 * t_, 4)}, {vr(TMP)} offset:{1024 * (t_ % 6)}", "dsr", areg=92 + 4 * t_))
                for t_ in range(6):
                    put(112 + t_, I(f"ds_read_b128 {ar(92 + 4 * t_, 4)}, {vr(TMP)} offset:{1024 * t_}", "dsr", areg=92 + 4 * t_))
            if "2" in F:
                ph.sc[at(103)].append(I("s_waitcnt lgkmcnt(0)", "salu"))
                ph.sc[at(119)].append(I("s_waitcnt lgkmcnt(0)", "salu"))
            if "v" in F:
                fr = [H0 + 4 + (i & 3) + 8 * ((i >> 2) % 3) for i in range(39)]
                xo_ = [I(f"v_add_f32 {vr(fr[i])}, {vr(C0 + 2 * i)}, {vr(X0 + 2 * i)}", "valu") for i in range(39)]
                s.spread(ph, xo_, at(104), at(190))
        h0 = s.hcvt_ops(0); h1 = s.hcvt_ops(1); h2 = s.hcvt_ops(2); h3 = s.hcvt_ops(3)
        use = [s.g2_slot_of(0, 0, k) for k in range(4)]
        ab = c.g1mode != "k"
        if kind in ("loop", "g1first"):
            for k, op in enumerate(h0):
                ph.vx[at((86 if ab else 88) + k // 2)].append(op)
            if ab:
                for k, op in enumerate(h1):
                    ph.vx[at(89 + k // 2)].append(op)
        if kind in ("loop", "g2last"):
            for ops, early, u in ((h1, 91, use[1]), (h2, 92, use[2]), (h3, 93, use[3]))[(1 if ab else 0):]:
                lo = max(early, getattr(s, "_hlast", 91))
                hi = u - 2
                if lo > hi:
                    lo = early
                s.spread(ph, ops, at(lo), at(hi))
                s._hlast = hi + 1 if hi + 1 <= 195 else lo
            s._hlast = 91
        if kind == "loop":
            done = [max(s.g2_slot_of(f, t, 3) for t in (0, 1)) + 3 for f in range(3)]
            if c.headint and c.headn == 2:
                lo = max(done[1], use[3])
                ops = s.xfrag_ops(0) + s.xfrag_ops(1) + s.xfrag_ops(2)
                lo = max(lo, done[0])
                if c.smix:
                    lo = 120
                s.spread(ph, ops[:24], at(lo), at(lo + 39))
                s.spread(ph, ops[24:], at(max(lo + 40, done[2])), at(190))
            else:
                lo = max(done[0], use[3])
                w_ = (190 - lo + 1) // 3
                for f in range(3):
                    a0 = lo + f * w_
                    assert a0 >= done[f]
                    s.spread(ph, s.xfrag_ops(f), at(a0), at(a0 + w_ - 1))
            for f in range(3, 13):
                if ab:
                    a0 = 10 + 7 * (f - 3); a1 = a0 + 6
                else:
                    a0 = 7 + (76 * (f - 3) + 5) // 10
                    a1 = 7 + (76 * (f - 2) + 5) // 10 - 1
                assert a0 > s.fuse(f - 3)[1] and a1 <= s.fuse(f)[0] - 2, (f, a0, a1)
                s.spread(ph, s.xfrag_ops(f), at(a0), at(a1))
        if first:
            for f in range(0, 10):
                lo = s.fuse(f)[1] + 1
                hi = min(lo + 6, 83)
                s.spread(ph, s.unpack_ops(f), at(lo), at(hi))
            if p3:
                for f in (10, 11, 12):
                    f0 = s.fuse(f)[0]
                    s.spread(ph, s.unpack_ops(f), at(f0), at(min(f0 + 6, 87) if f < 12 else 90))
            else:
                s.spread(ph, s.unpack_ops(10) + s.unpack_ops(11) + s.unpack_ops(12), at(63), at(87))
            if p3 and c.otld is not None:
                put(c.otld, I(f"buffer_load_dword {ar(s.ST + 7)}, {vr(TMP)}, {sr(S_O, 4)}, {sr(sXo)} offen{c.otmod}", "vload", grp="OT"))
            if p3 and c.otouch is not None:
                put(c.otouch, I(f"buffer_store_dword {vr(D1)}, {vr(TMP)}, {sr(S_O, 4)}, {sr(sXo)} offen{c.otmod}", "store", grp="OT"))
            if p3:
                for f, T in c.xin.items():
                    dst = xo(f, 0) if f < 10 else xbuf(f)
                    put(T, I(f"buffer_load_dwordx4 {vr(dst, 4)}, {vr(TMP)}, {sr(S_X, 4)}, {sr(sXo)} offen offset:{64 * f}{c.xmod}", "vload", grp=f"X{f}"))
                for k_, (T, mat) in enumerate(c.pl1):
                    put(T, I(f"buffer_load_dword {ar(s.ST + 8 + k_)}, {vr(DU)}, {sr(S_V if mat == 'V' else S_U, 4)}, s5 offen{c.pmod}", "vload", grp="PW"))
                for k_, (T, mat) in enumerate(c.pw1):
                    put(T, I(f"buffer_load_dword {ar(s.ST + 6 + k_)}, {vr(TMP)}, {sr(S_V if mat == 'V' else S_U, 4)}, s98 offen{c.pmod}", "vload", grp="PW"))
            if c.pro == 2 or (p3 and c.bias_in):
                bo = s.bias_ops()
                if "biasw" in c.drop:
                    bo = [x for x in bo if x.kind != "dsw"]
                s.spread(ph, bo, at(c.bias_at[0]), at(c.bias_at[1]))
        if last:
            put(92, I(f"v_accvgpr_read_b32 {vr(DV)}, {ar(s.ST_XA)}", "valu"))
            ph.tail = []
            prev = use[3] - 1
            for f in range(13):
                done = max(s.g2_slot_of(f, t, 3) for t in (0, 1)) + 3
                ops = s.xfrag_ops(f)
                if c.stwin and f >= c.stwin:
                    w = I(None, "wait"); w.wait = dict(vm=[f"S{f - c.stwin}"], lg=False); ops.append(w)
                ops = ops + [I(f"buffer_store_dwordx4 {vr(xbuf(f), 4)}, {vr(DV)}, {sr(S_O, 4)}, {sr(sXo)} offen offset:{(128 if c.stpat == 'oct' else 64) * f}{c.stmod if f < c.stsplit else c.stmod2}", "store", grp=f"S{f}")]
                lo = max(done, prev + 1)
                hi = min(194, max(lo + 5, done + 7))
                if lo > 194 or f == 12:
                    if not ph.tail:
                        ph.tail.append(I("s_nop 5", "salu"))
                    ph.tail += ops
                    continue
                s.spread(ph, ops, at(lo), at(hi))
                prev = hi
        s.place_lg(ph)
        return ph

    def place_lg(s, ph):
        c = s.c
        n = ph.n
        has = [any(x.kind == "wait" for x in ph.sc[i]) for i in range(n)]
        i = 0
        lastw = -1
        j = -1
        while j < n - 1:
            cand = list(range(j + 1, min(j + c.NW, n - 1) + 1))
            nxt = None
            ex = [x for x in cand if has[x]]
            if ex:
                nxt = ex[0]
            else:
                fr = [x for x in cand if not ph.sc[x]]
                nxt = fr[-1] if fr else cand[-1]
                w = I(None, "wait"); w.wait = dict(vm=[], lg=True)
                ph.sc[nxt].insert(0, w) if not fr else ph.sc[nxt].append(w)
                has[nxt] = True
            j = nxt
            if j >= n - 1:
                break

    def lin(s, ph):
        out = []
        for i in range(ph.n):
            out.append(ph.m[i])
            if s.c.lstamps and ph.kind == s.c.lphase and ph.Ts[i] in s.c.lstamps:
                k = s.c.lstamps.index(ph.Ts[i])
                out.append(I(f"s_memtime s[{64 + 2 * k}:{65 + 2 * k}]", "salu"))
            sc = list(ph.sc[i])
            sc.sort(key=lambda x: {"wait": 0, "barrier": 1}.get(x.kind, 2))
            shadow = sc[:1]; rest = sc[1:]
            out += shadow
            pre = [x for x in rest if x.kind != "wait"]
            post = [x for x in rest if x.kind == "wait"]
            out += pre
            if getattr(ph, "loopctl", False) and i == ph.n - 1:
                out.append(I(f"s_sub_u32 {sr(sCnt)}, {sr(sCnt)}, 1", "salu"))
            vx = list(ph.vx[i])
            if s.c.dma_first:
                d = [x for x in vx if x.kind == "dma"]
                if d and (shadow and shadow[0].kind == "salu" and "m0" in shadow[0].txt):
                    pass
                elif d:
                    out += d; vx = [x for x in vx if x.kind != "dma"]
            if ph.r[i] is not None:
                out.append(ph.r[i])
            out += vx
            out += post
        out += getattr(ph, "tail", [])
        return out

    def prologue(s):
        c = s.c
        o = []
        S = lambda t: o.append(I(t, "salu"))
        V = lambda t: o.append(I(t, "valu"))
        t = [H0 + i for i in range(28)]
        S(f"s_cmp_ge_u32 s2, 256")
        S(f"s_cbranch_scc1 L_end")
        if c.pf_code:
            S(f"s_getpc_b64 {sr(S_M, 2)}")
            o.append(I("L_pc:", "label"))
            S(f"s_mov_b32 {sr(S_M + 2)}, L_end-L_pc")
            S(f"s_mov_b32 {sr(S_M + 3)}, 0x20000")
            V(f"v_lshlrev_b32 {vr(TMP)}, 6, v0")
            o.append(I(f"buffer_load_dword {ar(s.ST + 4)}, {vr(TMP)}, {sr(S_M, 4)}, 0 offen", "vload", grp="PC"))
        S(f"s_load_dwordx2 {sr(S_X, 2)}, s[0:1], 0")
        S(f"s_load_dwordx2 {sr(S_U, 2)}, s[0:1], 8")
        S(f"s_load_dwordx2 {sr(S_V, 2)}, s[0:1], 16")
        S(f"s_load_dwordx2 {sr(S_B, 2)}, s[0:1], 24")
        S(f"s_load_dwordx2 {sr(S_O, 2)}, s[0:1], 32")
        if c.stamps:
            S(f"s_load_dwordx2 {sr(sDbg, 2)}, s[0:1], {40 if c.dbg else 48}")
            S(f"s_memtime s[60:61]")
            S(f"s_memrealtime s[70:71]")
        lane, w, g, m = t[0], t[1], t[2], t[3]
        V(f"v_lshrrev_b32 {vr(w)}, 6, v0")
        V(f"v_and_b32 {vr(lane)}, 63, v0")
        V(f"v_readfirstlane_b32 {sr(sW)}, {vr(w)}")
        V(f"v_lshrrev_b32 {vr(g)}, 4, {vr(lane)}")
        V(f"v_and_b32 {vr(m)}, 15, {vr(lane)}")
        j, q, x, y = t[4], t[5], t[6], t[7]
        V(f"v_lshrrev_b32 {vr(j)}, 3, {vr(lane)}")
        V(f"v_and_b32 {vr(q)}, 7, {vr(lane)}")
        V(f"v_lshrrev_b32 {vr(x)}, 2, {vr(j)}")
        V(f"v_and_b32 {vr(y)}, 3, {vr(j)}")
        V(f"v_lshlrev_b32 {vr(x)}, 2, {vr(x)}")
        V(f"v_add_u32 {vr(x)}, {vr(x)}, {vr(y)}")
        V(f"v_mul_u32_u24 {vr(x)}, {2 * 832}, {vr(x)}")
        V(f"v_lshrrev_b32 {vr(y)}, 1, {vr(j)}")
        V(f"v_xor_b32 {vr(y)}, {vr(y)}, {vr(q)}")
        V(f"v_lshl_add_u32 {vr(DV)}, {vr(y)}, 4, {vr(x)}")
        V(f"v_lshlrev_b32 {vr(DU)}, 4, {vr(lane)}")
        XA = t[8]
        V(f"v_mul_u32_u24 {vr(XA)}, 832, {vr(m)}")
        V(f"v_lshl_add_u32 {vr(XA)}, {vr(g)}, 4, {vr(XA)}")
        S(f"s_and_b32 {sr(sT0)}, {sr(sW)}, 1")
        S(f"s_lshr_b32 {sr(sT1)}, {sr(sW)}, 1")
        S(f"s_mul_i32 {sr(sVb)}, {sr(sT0)}, {SLOT}")
        S(f"s_mul_i32 {sr(sT2)}, {sr(sT1)}, 1088")
        S(f"s_add_u32 {sr(sVb)}, {sr(sVb)}, {sr(sT2)}")
        S(f"s_mul_i32 {sr(sVs0)}, {sr(sT0)}, {832 + 64}")
        S(f"s_mul_i32 {sr(sT2)}, {sr(sT1)}, {16 * 832}")
        S(f"s_add_u32 {sr(sVs0)}, {sr(sVs0)}, {sr(sT2)}")
        S(f"s_add_u32 {sr(sVs0 + 1)}, {sr(sVs0)}, {32 * 832}")
        S(f"s_add_u32 {sr(sVs0 + 2)}, {sr(sVs0)}, {64 * 832}")
        S(f"s_mul_i32 {sr(sWAs)}, {sr(sW)}, {16 * 832}")
        S(f"s_mul_i32 {sr(sWAm)}, {sr(sT1)}, {SLOT}")
        S(f"s_mul_i32 {sr(sT2)}, {sr(sT0)}, 1088")
        S(f"s_add_u32 {sr(sWAm)}, {sr(sWAm)}, {sr(sT2)}")
        S(f"s_add_u32 {sr(sWAm)}, {sr(sWAm)}, {Z + 4032 - 768}")
        S(f"s_mul_i32 {sr(sWBs)}, {sr(sT0)}, {16 * 832}")
        S(f"s_add_u32 {sr(sWBs)}, {sr(sWBs)}, {64 * 832}")
        S(f"s_add_u32 {sr(sWBm)}, {sr(sT2)}, {Z + 2 * SLOT + 4032 - 768}")
        S(f"s_lshl_b32 {sr(sT3)}, {sr(sW)}, 10")
        S(f"s_add_u32 {sr(sT6m)}, {sr(sT3)}, {T6}")
        S(f"s_add_u32 {sr(sT6s)}, {sr(sT3)}, {96 * 832 + LSTR}")
        S(f"s_add_u32 {sr(sLm)}, {sr(sT3)}, 81920")
        S(f"s_lshl_b32 {sr(sUm)}, {sr(sW)}, 12")
        S(f"s_add_u32 {sr(sMXs)}, {sr(sT3)}, {96 * 832 + LSTR + 4096}")
        S(f"s_add_u32 {sr(sMXm)}, {sr(sT3)}, {T6 + 4096}")
        S(f"s_cmp_eq_u32 {sr(sW)}, 3")
        S(f"s_cselect_b32 {sr(sMXs)}, 86016, {sr(sMXs)}")
        S(f"s_cselect_b32 {sr(sMXm)}, 86016, {sr(sMXm)}")
        S(f"s_lshl_b32 {sr(sXo)}, s2, 2")
        S(f"s_add_u32 {sr(sXo)}, {sr(sXo)}, {sr(sW)}")
        S(f"s_mul_i32 {sr(sXo)}, {sr(sXo)}, {16 * 832}")
        S(f"s_mov_b32 {sr(sMask)}, 0")
        S(f"s_mov_b32 {sr(sMask + 1)}, -1")
        S(f"s_mov_b32 {sr(sCnt)}, {c.nlayers - 2}")
        S(f"s_min_u32 {sr(sT2)}, {sr(sW)}, 2")
        S(f"s_lshl_b32 {sr(sT2)}, {sr(sT2)}, 10")
        S(f"s_add_u32 {sr(sT0)}, {sr(sT3)}, {96 * 832}")
        S(f"s_add_u32 {sr(sT1)}, {sr(sT2)}, {96 * 832 + 4096}")
        S(f"s_add_u32 {sr(sT2)}, {sr(sT2)}, {T6 + 4096}")
        bh, bt, bg, bl = t[9], t[10], t[11], t[12]
        V(f"v_min_u32 {vr(w)}, 2, {vr(w)}") if False else None
        S(f"s_min_u32 {sr(sT3)}, {sr(sW)}, 2")
        V(f"v_lshrrev_b32 {vr(bh)}, 5, {vr(lane)}")
        V(f"v_and_b32 {vr(bt)}, 1, {vr(g)}")
        V(f"v_lshl_add_u32 {vr(bh)}, {sr(sT3)}, 1, {vr(bh)}")
        rho = t[13]
        V(f"v_lshrrev_b32 {vr(x)}, 2, {vr(m)}")
        V(f"v_and_b32 {vr(y)}, 3, {vr(m)}")
        V(f"v_lshlrev_b32 {vr(x)}, 2, {vr(x)}")
        V(f"v_add_u32 {vr(x)}, {vr(x)}, {vr(y)}")
        V(f"v_lshlrev_b32 {vr(rho)}, 1, {vr(x)}")
        V(f"v_add_u32 {vr(x)}, {vr(rho)}, {vr(bt)}")
        V(f"v_mul_u32_u24 {vr(bg)}, 832, {vr(bh)}")
        V(f"v_lshl_add_u32 {vr(bg)}, {vr(x)}, 1, {vr(bg)}")
        V(f"v_mul_u32_u24 {vr(bl)}, 336, {vr(bh)}")
        V(f"v_mul_u32_u24 {vr(x)}, 208, {vr(bt)}")
        V(f"v_add_u32 {vr(bl)}, {vr(bl)}, {vr(x)}")
        V(f"v_lshl_add_u32 {vr(bl)}, {vr(m)}, 3, {vr(bl)}")
        V(f"v_add_u32 {vr(bl)}, {Z}, {vr(bl)}")
        V(f"v_mul_u32_u24 {vr(x)}, 208, {vr(rho)}")
        V(f"v_lshl_add_u32 {vr(PU)}, {vr(g)}, 4, {vr(x)}")
        V(f"v_lshl_add_u32 {vr(x)}, {vr(g)}, 3, {vr(x)}")
        V(f"v_add_u32 {vr(x)}, 192, {vr(x)}")
        V(f"v_lshlrev_b32 {vr(y)}, 3, {vr(m)}")
        V(f"v_add_u32 {vr(y)}, {Z}, {vr(y)}")
        V(f"v_cndmask_b32_e64 {vr(PT)}, {vr(x)}, {vr(y)}, {sr(sMask, 2)}")
        V(f"v_mov_b32 {vr(x)}, {WIN}")
        V(f"v_mov_b32 {vr(y)}, 2016")
        V(f"v_cndmask_b32_e64 {vr(D1)}, {vr(x)}, {vr(y)}, {sr(sMask, 2)}")
        V(f"v_mov_b32 {vr(x)}, {(-WIN) & 0xFFFFFFFF}")
        V(f"v_mov_b32 {vr(y)}, {(-1680) & 0xFFFFFFFF}")
        V(f"v_cndmask_b32_e64 {vr(x)}, {vr(x)}, {vr(y)}, {sr(sMask, 2)}")
        V(f"v_accvgpr_write_b32 {ar(s.ST_D2)}, {vr(x)}")
        V(f"v_accvgpr_write_b32 {ar(s.ST_XA)}, {vr(XA)}")
        V(f"v_and_b32 {vr(x)}, 7, {vr(m)}")
        V(f"v_lshrrev_b32 {vr(y)}, 1, {vr(x)}")
        V(f"v_xor_b32 {vr(y)}, {vr(y)}, {vr(g)}")
        V(f"v_lshlrev_b32 {vr(y)}, 4, {vr(y)}")
        V(f"v_lshl_add_u32 {vr(y)}, {vr(x)}, 7, {vr(y)}")
        V(f"v_lshrrev_b32 {vr(x)}, 3, {vr(m)}")
        V(f"v_mul_u32_u24 {vr(x)}, 1088, {vr(x)}")
        V(f"v_add_u32 {vr(y)}, {vr(y)}, {vr(x)}")
        V(f"v_add_u32 {vr(PV)}, {WIN}, {vr(y)}")
        V(f"v_lshrrev_b32 {vr(x)}, 3, {vr(m)}")
        V(f"v_mul_u32_u24 {vr(x)}, 12, {vr(x)}")
        V(f"v_xor_b32 {vr(x)}, {vr(x)}, {vr(m)}")
        V(f"v_mul_u32_u24 {vr(x)}, 832, {vr(x)}")
        V(f"v_lshl_add_u32 {vr(x)}, {vr(g)}, 4, {vr(x)}")
        V(f"v_add_u32 {vr(PV6)}, {T6}, {vr(x)}")
        XAk, bgk, blk = XF + 8, XF + 9, XF + 10
        XAk, bgk, blk = TMP, t[27], t[26]
        V(f"v_mov_b32 {vr(XAk)}, {vr(XA)}")
        V(f"v_mov_b32 {vr(bgk)}, {vr(bg)}")
        V(f"v_mov_b32 {vr(blk)}, {vr(bl)}")
        for i in range(26):
            V(f"v_mov_b32 {vr(H0 + i)}, 0")
        S("s_waitcnt lgkmcnt(0)")
        if c.stamps:
            S(f"s_memtime s[62:63]")
        for base, n in ((S_X, 16384 * 832), (S_U, NL * LSTR), (S_V, NL * LSTR), (S_B, NL * 832), (S_O, 16384 * 832)):
            S(f"s_mov_b32 {sr(base + 2)}, {n}")
            S(f"s_mov_b32 {sr(base + 3)}, 0x20000")
        S(f"s_cmp_eq_u32 {sr(sW)}, 3")
        S(f"s_cselect_b32 {sr(S_M)}, {sr(S_U)}, {sr(S_V)}")
        S(f"s_cselect_b32 {sr(S_M + 1)}, {sr(S_U + 1)}, {sr(S_V + 1)}")
        S(f"s_mov_b32 {sr(S_M + 2)}, {NL * LSTR}")
        S(f"s_mov_b32 {sr(S_M + 3)}, 0x20000")

        def dma(g):
            for sc, v in s.dma_items(g):
                if sc is not None:
                    o.append(sc)
                    o.append(I("s_nop 0", "salu"))
                o.append(v)

        def xload(f):
            dst = xo(f, 0) if f < 10 else xbuf(f)
            o.append(I(f"buffer_load_dwordx4 {vr(dst, 4)}, {vr(XAk)}, {sr(S_X, 4)}, {sr(sXo)} offen offset:{64 * f}{c.xmod}", "vload", grp=f"X{f}"))

        def stamp(k):
            if c.stamps and c.stamps != "rt":
                S(f"s_memtime s[{80 + 2 * k}:{81 + 2 * k}]")
        stamp(0)
        dma("WA"); dma("WB"); dma("V0")
        S(f"s_mov_b32 m0, {sr(sT6m)}"); S("s_nop 0")
        o.append(I(f"buffer_load_dwordx4 {vr(DU)}, {sr(S_V, 4)}, {sr(sT0)} offen lds", "dma", grp="T6"))
        S(f"s_mov_b32 m0, {sr(sT2)}"); S("s_nop 0")
        o.append(I(f"buffer_load_dwordx4 {vr(DU)}, {sr(S_V, 4)}, {sr(sT1)} offen lds", "dma", grp="T6b"))
        xload(0); xload(1)
        for p in range(13):
            o.append(I(f"buffer_load_short_d16_hi {vr(H0 + 2 * p)}, {vr(bgk)}, {sr(S_B, 4)}, 0 offen offset:{64 * p}", "vload", grp="BI"))
        if c.pf_w:
            S(f"s_lshr_b32 {sr(sT3)}, s2, 3")
            S(f"s_and_b32 {sr(sT3)}, {sr(sT3)}, 31")
            S(f"s_mul_i32 {sr(sT3)}, {sr(sT3)}, {NL * LSTR // 32}")
            V(f"v_lshlrev_b32 {vr(1)}, 2, {vr(DU)}")
            S(f"s_lshl_b32 {sr(sCnt)}, {sr(sW)}, 12")
            S(f"s_add_u32 {sr(sT3)}, {sr(sT3)}, {sr(sCnt)}")
            S(f"s_mov_b32 {sr(sCnt)}, {c.nlayers - 2}")
            PFD = s.ST + 2
            o.append(I(f"buffer_load_dword {ar(PFD)}, {vr(1)}, {sr(S_V, 4)}, {sr(sT3)} offen", "vload", grp="PW"))
            o.append(I(f"buffer_load_dword {ar(PFD + 1)}, {vr(1)}, {sr(S_U, 4)}, {sr(sT3)} offen", "vload", grp="PW"))
        dma("V1"); xload(2); xload(3)
        dma("V2"); xload(4); xload(5)
        dma("V3"); xload(6); xload(7)
        dma("V4")
        for f in range(8, 13):
            xload(f)
        stamp(1)
        for i in range(104):
            V(f"v_mov_b32 {vr(C0 + i)}, 1.0")
        for e in range(6):
            V(f"v_accvgpr_write_b32 {ar(s.TR0 + 4 * e + 2)}, 0")
            V(f"v_accvgpr_write_b32 {ar(s.TR0 + 4 * e + 3)}, 0")
        stamp(2)
        w = I(None, "wait"); w.wait = dict(vm=["BI"], lg=False); o.append(w)
        stamp(3)
        if c.stamps:
            S("s_waitcnt lgkmcnt(0)")
        for p in range(13):
            imm = SLOT * (p % 7) + (2016 if p >= 7 else 0)
            o.append(I(f"ds_write_b64 {vr(blk)}, {vr(H0 + 2 * p, 2)} offset:{imm}", "dsw"))
        if c.stamps:
            S("s_waitcnt lgkmcnt(0)")
        stamp(4)
        w = I(None, "wait"); w.wait = dict(vm=["WA", "WB", "V0", "T6", "T6b", "X0"], lg=False, lg0=True); o.append(w)
        stamp(5)
        o.append(I("s_barrier", "barrier"))
        if c.stamps:
            S(f"s_memtime s[64:65]")
            if c.stamps == "rt":
                S(f"s_memrealtime s[80:81]")
            S("s_waitcnt lgkmcnt(0)")
        for T in range(c.LA):
            o.append(s.slot_desc(T, True)[1])
            if T == s.g1_slot_of(0, 5):
                o.append(I(f"v_subrev_u32 {vr(PV)}, {WIN}, {vr(PV)}", "valu"))
        w = I(None, "wait"); w.wait = dict(vm=[], lg=True); o.append(w)
        return o

    BI_R, BI_QA, BI_QB, BI_AD = 0, 8, 12, 16

    def prologue2(s):
        c = s.c
        o = []
        S = lambda t: o.append(I(t, "salu"))
        V = lambda t: o.append(I(t, "valu"))
        t = [H0 + i for i in range(28)]
        S(f"s_cmp_ge_u32 s2, 256")
        S(f"s_cbranch_scc1 L_end")
        S(f"s_load_dwordx2 {sr(S_X, 2)}, s[0:1], 0")
        S(f"s_load_dwordx2 {sr(S_V, 2)}, s[0:1], 16")
        S(f"s_load_dwordx2 {sr(S_U, 2)}, s[0:1], 8")
        S(f"s_load_dwordx2 {sr(S_B, 2)}, s[0:1], 24")
        S(f"s_load_dwordx2 {sr(S_O, 2)}, s[0:1], 32")
        if c.stamps:
            S(f"s_load_dwordx2 {sr(sDbg, 2)}, s[0:1], {40 if c.dbg else 48}")
            S(f"s_memtime s[60:61]")
            S(f"s_memrealtime s[70:71]")
        lane, w, g, m = t[0], t[1], t[2], t[3]
        V(f"v_lshrrev_b32 {vr(w)}, 6, v0")
        V(f"v_and_b32 {vr(lane)}, 63, v0")
        V(f"v_readfirstlane_b32 {sr(sW)}, {vr(w)}")
        if c.pf_code:
            S(f"s_getpc_b64 {sr(S_M, 2)}")
            o.append(I("L_pc:", "label"))
            S(f"s_mov_b32 {sr(S_M + 2)}, L_end-L_pc")
            S(f"s_mov_b32 {sr(S_M + 3)}, 0x20000")
            V(f"v_lshlrev_b32 {vr(t[20])}, 6, v0")
            o.append(I(f"buffer_load_dword {ar(s.ST + 4)}, {vr(t[20])}, {sr(S_M, 4)}, 0 offen", "vload", grp="PC"))
            if c.wvloop:
                V(f"v_add_u32 {vr(t[20])}, 16384, {vr(t[20])}")
                o.append(I(f"buffer_load_dword {ar(s.ST + 5)}, {vr(t[20])}, {sr(S_M, 4)}, 0 offen", "vload", grp="PC"))
        V(f"v_lshrrev_b32 {vr(g)}, 4, {vr(lane)}")
        V(f"v_and_b32 {vr(m)}, 15, {vr(lane)}")
        j, q, x, y = t[4], t[5], t[6], t[7]
        V(f"v_lshrrev_b32 {vr(j)}, 3, {vr(lane)}")
        V(f"v_and_b32 {vr(q)}, 7, {vr(lane)}")
        V(f"v_mul_u32_u24 {vr(x)}, {2 * 832}, {vr(j)}")
        V(f"v_lshrrev_b32 {vr(y)}, 1, {vr(j)}")
        V(f"v_xor_b32 {vr(y)}, {vr(y)}, {vr(q)}")
        V(f"v_lshl_add_u32 {vr(DV)}, {vr(y)}, 4, {vr(x)}")
        V(f"v_lshlrev_b32 {vr(DU)}, 4, {vr(lane)}")
        XA = TMP
        V(f"v_mul_u32_u24 {vr(XA)}, 832, {vr(m)}")
        V(f"v_lshl_add_u32 {vr(XA)}, {vr(g)}, 4, {vr(XA)}")
        S(f"s_and_b32 {sr(sT0)}, {sr(sW)}, 1")
        S(f"s_lshr_b32 {sr(sT1)}, {sr(sW)}, 1")
        S(f"s_mul_i32 {sr(sVb)}, {sr(sT0)}, {SLOT}")
        S(f"s_mul_i32 {sr(sT2)}, {sr(sT1)}, 1088")
        S(f"s_add_u32 {sr(sVb)}, {sr(sVb)}, {sr(sT2)}")
        S(f"s_mul_i32 {sr(sVs0)}, {sr(sT0)}, {832 + 64}")
        S(f"s_mul_i32 {sr(sT2)}, {sr(sT1)}, {16 * 832}")
        S(f"s_add_u32 {sr(sVs0)}, {sr(sVs0)}, {sr(sT2)}")
        S(f"s_add_u32 {sr(sVs0 + 1)}, {sr(sVs0)}, {32 * 832}")
        S(f"s_add_u32 {sr(sVs0 + 2)}, {sr(sVs0)}, {64 * 832}")
        S(f"s_mul_i32 {sr(sWAs)}, {sr(sW)}, {16 * 832}")
        S(f"s_mul_i32 {sr(sWAm)}, {sr(sT1)}, {SLOT}")
        S(f"s_mul_i32 {sr(sT2)}, {sr(sT0)}, 1088")
        S(f"s_add_u32 {sr(sWAm)}, {sr(sWAm)}, {sr(sT2)}")
        S(f"s_add_u32 {sr(sWAm)}, {sr(sWAm)}, {Z + 4032 - 768}")
        S(f"s_mul_i32 {sr(sWBs)}, {sr(sT0)}, {16 * 832}")
        S(f"s_add_u32 {sr(sWBs)}, {sr(sWBs)}, {64 * 832}")
        S(f"s_add_u32 {sr(sWBm)}, {sr(sT2)}, {Z + 2 * SLOT + 4032 - 768}")
        S(f"s_lshl_b32 {sr(sT3)}, {sr(sW)}, 10")
        S(f"s_add_u32 {sr(sT6m)}, {sr(sT3)}, {T6}")
        S(f"s_add_u32 {sr(sLm)}, {sr(sT3)}, 81920")
        S(f"s_add_u32 {sr(sT6s)}, {sr(sT3)}, {96 * 832 + LSTR}")
        S(f"s_add_u32 {sr(sMXs)}, {sr(sT3)}, {96 * 832 + LSTR + 4096}")
        S(f"s_add_u32 {sr(sMXm)}, {sr(sT3)}, {T6 + 4096}")
        S(f"s_add_u32 {sr(sT0)}, {sr(sT3)}, {96 * 832}")
        S(f"s_min_u32 {sr(sT2)}, {sr(sW)}, 2")
        S(f"s_lshl_b32 {sr(sT2)}, {sr(sT2)}, 10")
        S(f"s_add_u32 {sr(sT1)}, {sr(sT2)}, {96 * 832 + 4096}")
        S(f"s_add_u32 {sr(sT2)}, {sr(sT2)}, {T6 + 4096}")
        S(f"s_lshl_b32 {sr(sXo)}, s2, 2")
        S(f"s_add_u32 {sr(sXo)}, {sr(sXo)}, {sr(sW)}")
        S(f"s_mul_i32 {sr(sXo)}, {sr(sXo)}, {16 * 832}")
        for base, n in ((S_X, 16384 * 832), (S_V, NL * LSTR), (S_U, NL * LSTR), (S_B, NL * 832), (S_O, 16384 * 832)):
            S(f"s_mov_b32 {sr(base + 2)}, {n}")
            S(f"s_mov_b32 {sr(base + 3)}, 0x20000")
        S("s_waitcnt lgkmcnt(0)")
        if c.stamps:
            S(f"s_memtime s[62:63]")

        def stamp(k):
            if c.stamps and c.stamps != "rt":
                S(f"s_memtime s[{80 + 2 * k}:{81 + 2 * k}]")

        def dma(gname):
            for sc, v in s.dma_items(gname):
                if sc is not None:
                    o.append(sc)
                    o.append(I("s_nop 0", "salu"))
                o.append(v)

        def xload(f):
            dst = xo(f, 0) if f < 10 else xbuf(f)
            o.append(I(f"buffer_load_dwordx4 {vr(dst, 4)}, {vr(XA)}, {sr(S_X, 4)}, {sr(sXo)} offen offset:{64 * f}{c.xmod}", "vload", grp=f"X{f}"))

        stamp(0)
        dma("WA"); dma("WB"); dma("V0")
        S(f"s_mov_b32 m0, {sr(sT6m)}"); S("s_nop 0")
        o.append(I(f"buffer_load_dwordx4 {vr(DU)}, {sr(S_V, 4)}, {sr(sT0)} offen lds", "dma", grp="T6"))
        S(f"s_mov_b32 m0, {sr(sT2)}"); S("s_nop 0")
        o.append(I(f"buffer_load_dwordx4 {vr(DU)}, {sr(S_V, 4)}, {sr(sT1)} offen lds", "dma", grp="T6b"))
        xload(0); xload(1)

        def pfw():
            S(f"s_lshr_b32 {sr(sT3)}, s2, 3")
            S(f"s_and_b32 {sr(sT3)}, {sr(sT3)}, 31")
            S(f"s_mul_i32 {sr(sT3)}, {sr(sT3)}, {NL * LSTR // 32}")
            V(f"v_lshlrev_b32 {vr(t[21])}, 2, {vr(DU)}")
            S(f"s_lshl_b32 {sr(sT0)}, {sr(sW)}, 12")
            S(f"s_add_u32 {sr(sT3)}, {sr(sT3)}, {sr(sT0)}")
            PFD = s.ST + 2
            o.append(I(f"buffer_load_dword {ar(PFD)}, {vr(t[21])}, {sr(S_V, 4)}, {sr(sT3)} offen", "vload", grp="PW"))
            o.append(I(f"buffer_load_dword {ar(PFD + 1)}, {vr(t[21])}, {sr(S_U, 4)}, {sr(sT3)} offen", "vload", grp="PW"))
        bl, bm, bg = t[8], t[9], t[10]
        def biloads():
            V(f"v_lshrrev_b32 {vr(bl)}, 3, {vr(lane)}")
            V(f"v_min_u32 {vr(bl)}, 5, {vr(bl)}")
            V(f"v_and_b32 {vr(bm)}, 7, {vr(lane)}")
            V(f"v_mul_u32_u24 {vr(bg)}, 832, {vr(bl)}")
            V(f"v_lshl_add_u32 {vr(bg)}, {vr(bm)}, 3, {vr(bg)}")
            S(f"s_lshl_b32 {sr(sT0)}, {sr(sW)}, 6")
            for k in range(4):
                so = sr(sT0) if k < 3 else "0"
                o.append(I(f"buffer_load_dwordx2 {vr(s.BI_R + 2 * k, 2)}, {vr(bg)}, {sr(S_B, 4)}, {so} offen offset:{256 * k}", "vload", grp="BI"))
        if c.bi_early:
            biloads()
        if c.pf_w == 1:
            pfw()
        dma("V1"); xload(2); xload(3)
        dma("V2"); xload(4); xload(5)
        dma("V3"); xload(6); xload(7)
        dma("V4")
        for f in range(8, 13):
            xload(f)
        if c.pf_w == 2:
            pfw()
        if not c.bi_early:
            biloads()
        stamp(1)
        V(f"v_mul_u32_u24 {vr(bl)}, 336, {vr(bl)}")
        V(f"v_lshl_add_u32 {vr(bl)}, {vr(bm)}, 4, {vr(bl)}")
        V(f"v_add_u32 {vr(bl)}, {Z}, {vr(bl)}")
        S(f"s_mul_i32 {sr(sT0)}, {sr(sW)}, {SLOT}")
        V(f"v_add_u32 {vr(s.BI_AD)}, {sr(sT0)}, {vr(bl)}")
        S(f"s_add_u32 {sr(sT1)}, {sr(sT0)}, {4 * SLOT}")
        S(f"s_cmp_eq_u32 {sr(sW)}, 3")
        S(f"s_cselect_b32 {sr(sT1)}, 2016, {sr(sT1)}")
        V(f"v_add_u32 {vr(s.BI_AD + 1)}, {sr(sT1)}, {vr(bl)}")
        S(f"s_add_u32 {sr(sT1)}, {sr(sT0)}, {SLOT + 2016}")
        V(f"v_add_u32 {vr(s.BI_AD + 2)}, {sr(sT1)}, {vr(bl)}")
        V(f"v_add_u32 {vr(s.BI_AD + 3)}, {5 * SLOT + 2016}, {vr(bl)}")
        for r in (s.BI_QA + 1, s.BI_QA + 3, s.BI_QB + 1, s.BI_QB + 3):
            V(f"v_mov_b32 {vr(r)}, 0")
        S(f"s_lshl_b32 {sr(sUm)}, {sr(sW)}, 12")
        S(f"s_cmp_eq_u32 {sr(sW)}, 3")
        S(f"s_cselect_b32 {sr(sMXs)}, 86016, {sr(sMXs)}")
        S(f"s_cselect_b32 {sr(sMXm)}, 86016, {sr(sMXm)}")
        S(f"s_cselect_b32 {sr(S_M)}, {sr(S_U)}, {sr(S_V)}")
        S(f"s_cselect_b32 {sr(S_M + 1)}, {sr(S_U + 1)}, {sr(S_V + 1)}")
        S(f"s_mov_b32 {sr(S_M + 2)}, {NL * LSTR}")
        S(f"s_mov_b32 {sr(S_M + 3)}, 0x20000")
        S(f"s_mov_b32 {sr(sMask)}, 0")
        S(f"s_mov_b32 {sr(sMask + 1)}, -1")
        S(f"s_mov_b32 {sr(sCnt)}, {c.nlayers - 2}")
        rho = t[13]
        V(f"v_lshrrev_b32 {vr(x)}, 2, {vr(m)}")
        V(f"v_and_b32 {vr(y)}, 3, {vr(m)}")
        V(f"v_lshlrev_b32 {vr(x)}, 2, {vr(x)}")
        V(f"v_add_u32 {vr(x)}, {vr(x)}, {vr(y)}")
        V(f"v_lshlrev_b32 {vr(rho)}, 1, {vr(x)}")
        V(f"v_and_b32 {vr(x)}, 7, {vr(m)}")
        V(f"v_lshrrev_b32 {vr(y)}, 1, {vr(x)}")
        V(f"v_xor_b32 {vr(y)}, {vr(y)}, {vr(g)}")
        V(f"v_lshlrev_b32 {vr(y)}, 4, {vr(y)}")
        V(f"v_lshl_add_u32 {vr(y)}, {vr(x)}, 7, {vr(y)}")
        V(f"v_lshrrev_b32 {vr(x)}, 3, {vr(m)}")
        V(f"v_mul_u32_u24 {vr(x)}, 1088, {vr(x)}")
        V(f"v_add_u32 {vr(y)}, {vr(y)}, {vr(x)}")
        V(f"v_add_u32 {vr(PV)}, {WIN}, {vr(y)}")
        V(f"v_lshrrev_b32 {vr(x)}, 3, {vr(m)}")
        V(f"v_mul_u32_u24 {vr(x)}, 12, {vr(x)}")
        V(f"v_xor_b32 {vr(x)}, {vr(x)}, {vr(m)}")
        V(f"v_mul_u32_u24 {vr(x)}, 832, {vr(x)}")
        V(f"v_lshl_add_u32 {vr(x)}, {vr(g)}, 4, {vr(x)}")
        V(f"v_add_u32 {vr(PV6)}, {T6}, {vr(x)}")
        V(f"v_mul_u32_u24 {vr(x)}, 208, {vr(rho)}")
        V(f"v_lshl_add_u32 {vr(PU)}, {vr(g)}, 4, {vr(x)}")
        V(f"v_lshl_add_u32 {vr(x)}, {vr(g)}, 3, {vr(x)}")
        V(f"v_add_u32 {vr(x)}, 192, {vr(x)}")
        V(f"v_lshlrev_b32 {vr(y)}, 3, {vr(m)}")
        V(f"v_add_u32 {vr(y)}, {Z}, {vr(y)}")
        V(f"v_cndmask_b32_e64 {vr(PT)}, {vr(x)}, {vr(y)}, {sr(sMask, 2)}")
        V(f"v_mov_b32 {vr(x)}, {WIN}")
        V(f"v_mov_b32 {vr(y)}, 2016")
        V(f"v_cndmask_b32_e64 {vr(D1)}, {vr(x)}, {vr(y)}, {sr(sMask, 2)}")
        V(f"v_mov_b32 {vr(x)}, {(-WIN) & 0xFFFFFFFF}")
        V(f"v_mov_b32 {vr(y)}, {(-1680) & 0xFFFFFFFF}")
        V(f"v_cndmask_b32_e64 {vr(x)}, {vr(x)}, {vr(y)}, {sr(sMask, 2)}")
        V(f"v_accvgpr_write_b32 {ar(s.ST_D2)}, {vr(x)}")
        V(f"v_accvgpr_write_b32 {ar(s.ST_XA)}, {vr(XA)}")
        for e in range(6):
            V(f"v_accvgpr_write_b32 {ar(s.TR0 + 4 * e + 2)}, 0")
            V(f"v_accvgpr_write_b32 {ar(s.TR0 + 4 * e + 3)}, 0")
        for i in range(20, 104):
            V(f"v_mov_b32 {vr(C0 + i)}, 1.0")
        stamp(2)
        w_ = I(None, "wait"); w_.wait = dict(vm=["WA", "WB", "V0", "T6", "T6b", "X0"], lg=False); o.append(w_)
        stamp(3)
        if c.stamps and c.stamps != "rt":
            S("s_waitcnt lgkmcnt(0)")
        o.append(I("s_barrier", "barrier"))
        if c.stamps:
            S(f"s_memtime s[64:65]")
            if c.stamps == "rt":
                S(f"s_memrealtime s[80:81]")
            S("s_waitcnt lgkmcnt(0)")
        for T in range(c.LA):
            o.append(s.slot_desc(T, True)[1])
            if T == s.g1_slot_of(0, 5):
                o.append(I(f"v_subrev_u32 {vr(PV)}, {WIN}, {vr(PV)}", "valu"))
        w_ = I(None, "wait"); w_.wait = dict(vm=[], lg=True); o.append(w_)
        return o

    def prologue3(s):
        c = s.c
        o = []
        cur = [o]
        S = lambda t: cur[0].append(I(t, "salu"))
        V = lambda t: cur[0].append(I(t, "valu"))
        t = [H0 + i for i in range(28)]
        sP = list(range(92, 100))
        if not c._hdr:
            S(f"s_cmp_ge_u32 s2, 256")
            S(f"s_cbranch_scc1 L_end")
        S(f"s_load_dwordx2 {sr(S_V, 2)}, s[0:1], 16")
        S(f"s_load_dwordx2 {sr(S_X, 2)}, s[0:1], 0")
        S(f"s_load_dwordx2 {sr(S_U, 2)}, s[0:1], 8")
        S(f"s_load_dwordx2 {sr(S_B, 2)}, s[0:1], 24")
        S(f"s_load_dwordx2 {sr(S_O, 2)}, s[0:1], 32")
        if c.keep and not c.stamps:
            S(f"s_load_dwordx2 {sr(sDbg, 2)}, s[0:1], 48")
        if c.stamps:
            S(f"s_load_dwordx2 {sr(sDbg, 2)}, s[0:1], {40 if c.dbg else 48}")
            S(f"s_memtime s[60:61]")
            S(f"s_memrealtime s[70:71]")
        lane, w, g, m = t[0], t[1], t[2], t[3]
        V(f"v_lshrrev_b32 {vr(w)}, 6, v0")
        V(f"v_and_b32 {vr(lane)}, 63, v0")
        V(f"v_readfirstlane_b32 {sr(sW)}, {vr(w)}")
        if c.pf_code:
            if not c._hdr:
                S(f"s_getpc_b64 {sr(S_M, 2)}")
                o.append(I("L_pc:", "label"))
            S(f"s_mov_b32 {sr(S_M + 2)}, {'L_fin' if c._hdr else 'L_end'}-L_pc")
            S(f"s_mov_b32 {sr(S_M + 3)}, 0x20000")
            if c.pf_slice:
                pfl = -(-c.pf_bytes // (c.pf_slice * 256))
                assert pfl <= 31
                S(f"s_lshr_b32 s4, s2, 3")
                S(f"s_and_b32 s4, s4, {c.pf_slice - 1}")
                S(f"s_lshl_b32 s4, s4, 2")
                S(f"s_add_u32 s4, s4, {sr(sW)}")
                S(f"s_mul_i32 s4, s4, {64 * pfl}")
                V(f"v_lshlrev_b32 {vr(t[20])}, 6, {vr(lane)}")
                S(f"s_mov_b64 exec, {hex((1 << pfl) - 1)}")
                o.append(I(f"buffer_load_dword {ar(s.ST + 4)}, {vr(t[20])}, {sr(S_M, 4)}, s4 offen", "vload", grp="PC"))
                S(f"s_mov_b64 exec, -1")
            else:
                V(f"v_lshlrev_b32 {vr(t[20])}, 6, v0")
                o.append(I(f"buffer_load_dword {ar(s.ST + 4)}, {vr(t[20])}, {sr(S_M, 4)}, 0 offen", "vload", grp="PC"))
                for k in range(1, c.pf_code):
                    V(f"v_add_u32 {vr(t[20])}, 16384, {vr(t[20])}")
                    o.append(I(f"buffer_load_dword {ar(s.ST + 4 + k)}, {vr(t[20])}, {sr(S_M, 4)}, 0 offen", "vload", grp="PC"))
        V(f"v_lshrrev_b32 {vr(g)}, 4, {vr(lane)}")
        V(f"v_and_b32 {vr(m)}, 15, {vr(lane)}")
        j, q, x, y = t[4], t[5], t[6], t[7]
        V(f"v_lshrrev_b32 {vr(j)}, 3, {vr(lane)}")
        V(f"v_and_b32 {vr(q)}, 7, {vr(lane)}")
        V(f"v_mul_u32_u24 {vr(x)}, {2 * 832}, {vr(j)}")
        V(f"v_lshrrev_b32 {vr(y)}, 1, {vr(j)}")
        V(f"v_xor_b32 {vr(y)}, {vr(y)}, {vr(q)}")
        V(f"v_lshl_add_u32 {vr(DV)}, {vr(y)}, 4, {vr(x)}")
        V(f"v_lshlrev_b32 {vr(DU)}, 4, {vr(lane)}")
        XA = TMP
        V(f"v_mul_u32_u24 {vr(XA)}, 832, {vr(m)}")
        V(f"v_lshl_add_u32 {vr(XA)}, {vr(g)}, 4, {vr(XA)}")
        bl, bm, bg = t[8], t[9], t[10]
        V(f"v_min_u32 {vr(bl)}, 5, {vr(j)}")
        V(f"v_mul_u32_u24 {vr(bg)}, 832, {vr(bl)}")
        V(f"v_lshl_add_u32 {vr(bg)}, {vr(q)}, 3, {vr(bg)}")
        V(f"v_lshlrev_b32 {vr(t[21])}, 2, {vr(DU)}")
        V(f"v_mul_u32_u24 {vr(t[22])}, 373, {vr(lane)}")
        V(f"v_lshrrev_b32 {vr(t[22])}, 12, {vr(t[22])}")
        V(f"v_mul_u32_u24 {vr(t[23])}, 11, {vr(t[22])}")
        V(f"v_sub_u32 {vr(t[23])}, {vr(lane)}, {vr(t[23])}")
        V(f"v_mul_u32_u24 {vr(t[22])}, {LSTR}, {vr(t[22])}")
        V(f"v_lshl_add_u32 {vr(t[22])}, {vr(t[23])}, 6, {vr(t[22])}")
        S(f"s_and_b32 {sr(sT0)}, {sr(sW)}, 1")
        S(f"s_lshr_b32 {sr(sT1)}, {sr(sW)}, 1")
        S(f"s_mul_i32 {sr(sVb)}, {sr(sT0)}, {SLOT}")
        S(f"s_mul_i32 {sr(sT2)}, {sr(sT1)}, 1088")
        S(f"s_add_u32 {sr(sVb)}, {sr(sVb)}, {sr(sT2)}")
        S(f"s_mul_i32 {sr(sVs0)}, {sr(sT0)}, {832 + 64}")
        S(f"s_mul_i32 {sr(sT2)}, {sr(sT1)}, {16 * 832}")
        S(f"s_add_u32 {sr(sVs0)}, {sr(sVs0)}, {sr(sT2)}")
        S(f"s_add_u32 {sr(sVs0 + 1)}, {sr(sVs0)}, {32 * 832}")
        S(f"s_add_u32 {sr(sVs0 + 2)}, {sr(sVs0)}, {64 * 832}")
        S(f"s_mul_i32 {sr(sWAs)}, {sr(sW)}, {16 * 832}")
        S(f"s_mul_i32 {sr(sWAm)}, {sr(sT1)}, {SLOT}")
        S(f"s_mul_i32 {sr(sT2)}, {sr(sT0)}, 1088")
        S(f"s_add_u32 {sr(sWAm)}, {sr(sWAm)}, {sr(sT2)}")
        S(f"s_add_u32 {sr(sWAm)}, {sr(sWAm)}, {Z + 4032 - 768}")
        S(f"s_mul_i32 {sr(sWBs)}, {sr(sT0)}, {16 * 832}")
        S(f"s_add_u32 {sr(sWBs)}, {sr(sWBs)}, {64 * 832}")
        S(f"s_add_u32 {sr(sWBm)}, {sr(sT2)}, {Z + 2 * SLOT + 4032 - 768}")
        S(f"s_lshl_b32 {sr(sT3)}, {sr(sW)}, 10")
        S(f"s_add_u32 {sr(sT6m)}, {sr(sT3)}, {T6}")
        S(f"s_add_u32 {sr(sLm)}, {sr(sT3)}, 81920")
        S(f"s_add_u32 {sr(sT6s)}, {sr(sT3)}, {96 * 832 + LSTR}")
        S(f"s_add_u32 {sr(sMXs)}, {sr(sT3)}, {96 * 832 + LSTR + 4096}")
        S(f"s_add_u32 {sr(sMXm)}, {sr(sT3)}, {T6 + 4096}")
        S(f"s_add_u32 {sr(sP[0])}, {sr(sT3)}, {96 * 832}")
        S(f"s_min_u32 {sr(sP[2])}, {sr(sW)}, 2")
        S(f"s_lshl_b32 {sr(sP[2])}, {sr(sP[2])}, 10")
        S(f"s_add_u32 {sr(sP[1])}, {sr(sP[2])}, {96 * 832 + 4096}")
        S(f"s_add_u32 {sr(sP[2])}, {sr(sP[2])}, {T6 + 4096}")
        S(f"s_lshl_b32 {sr(sXo)}, s2, 2")
        S(f"s_add_u32 {sr(sXo)}, {sr(sXo)}, {sr(sW)}")
        S(f"s_mul_i32 {sr(sXo)}, {sr(sXo)}, {16 * 832}")
        S(f"s_lshl_b32 {sr(sP[3])}, {sr(sW)}, 6")
        S(f"s_lshr_b32 {sr(sP[4])}, s2, 3")
        S(f"s_and_b32 {sr(sP[4])}, {sr(sP[4])}, 31")
        S(f"s_mul_i32 {sr(sP[4])}, {sr(sP[4])}, {NL * LSTR // 32}")
        S(f"s_lshl_b32 {sr(sP[5])}, {sr(sW)}, 12")
        S(f"s_add_u32 {sr(sP[4])}, {sr(sP[4])}, {sr(sP[5])}")
        S(f"s_lshr_b32 {sr(sP[6])}, s2, 3")
        S(f"s_and_b32 {sr(sP[6])}, {sr(sP[6])}, 31")
        S(f"s_mul_i32 {sr(sP[6])}, {sr(sP[6])}, {LSTR // 32}")
        S(f"s_mul_i32 {sr(sP[5])}, {sr(sW)}, {LSTR // 128}")
        S(f"s_add_u32 {sr(sP[6])}, {sr(sP[6])}, {sr(sP[5])}")
        S(f"s_lshr_b32 s4, s2, 3")
        S(f"s_and_b32 s4, s4, 31")
        S(f"s_lshl_b32 s4, s4, 2")
        S(f"s_add_u32 s4, s4, {sr(sW)}")
        S(f"s_mul_i32 s4, s4, {LSTR // 128}")
        S(f"s_and_b32 s4, s4, 0xffffffc0")
        S(f"s_add_u32 s5, s4, {LSTR}")
        S(f"s_add_u32 s6, s4, {2 * LSTR}")
        if c.keep:
            S(f"s_lshl_b32 s7, s2, 2")
            S(f"s_add_u32 s7, s7, {sr(sW)}")
            S(f"s_lshl_b32 s7, s7, 7")
            S(f"s_add_u32 s7, s7, 0x10000")
            S(f"s_mov_b32 {sr(sDbg + 2)}, 0x8000000")
            S(f"s_mov_b32 {sr(sDbg + 3)}, 0x20000")
        for base, n in ((S_V, NL * LSTR), (S_X, 16384 * 832), (S_U, NL * LSTR), (S_B, NL * 832), (S_O, 16384 * 832)):
            S(f"s_mov_b32 {sr(base + 2)}, {n}")
            S(f"s_mov_b32 {sr(base + 3)}, 0x20000")
        S("s_waitcnt lgkmcnt(0)")
        if c.stamps:
            S(f"s_memtime s[62:63]")

        def stamp(k):
            if c.stamps and c.stamps != "rt":
                S(f"s_memtime s[{80 + 2 * k}:{81 + 2 * k}]")

        s._dm = c.dmamod0 if c.dmamod0 is not None else c.dmamod
        items = []
        M0 = lambda txt: [I(txt, "salu"), I("s_nop 0", "salu")]
        for tok in c.p3order.split():
            if tok == "T6":
                items.append(M0(f"s_mov_b32 m0, {sr(sT6m)}") + [I(f"buffer_load_dwordx4 {vr(DU)}, {sr(S_V, 4)}, {sr(sP[0])} offen{s._dm} lds", "dma", grp="T6")])
            elif tok == "T6b":
                items.append(M0(f"s_mov_b32 m0, {sr(sP[2])}") + [I(f"buffer_load_dwordx4 {vr(DU)}, {sr(S_V, 4)}, {sr(sP[1])} offen{s._dm} lds", "dma", grp="T6b")])
            elif tok[0] == "X":
                f = int(tok[1:])
                dst = xo(f, 0) if f < 10 else xbuf(f)
                items.append([I(f"buffer_load_dwordx4 {vr(dst, 4)}, {vr(XA)}, {sr(S_X, 4)}, {sr(sXo)} offen offset:{64 * f}{c.xmod}", "vload", grp=f"X{f}")])
            elif tok == "BI":
                for k in range(4):
                    so = sr(sP[3]) if k < 3 else "0"
                    items.append([I(f"buffer_load_dwordx2 {vr(s.BI_R + 2 * k, 2)}, {vr(bg)}, {sr(S_B, 4)}, {so} offen offset:{256 * k}", "vload", grp="BI")])
            elif tok == "PW":
                if c.pf_w:
                    PFD = s.ST + 2
                    items.append([I(f"buffer_load_dword {ar(PFD)}, {vr(t[21])}, {sr(S_V, 4)}, {sr(sP[4])} offen{c.pmod}", "vload", grp="PW")])
                    items.append([I(f"buffer_load_dword {ar(PFD + 1)}, {vr(t[21])}, {sr(S_U, 4)}, {sr(sP[4])} offen{c.pmod}", "vload", grp="PW")])
            elif tok[0] == "Q":
                ly = int(tok[1]); srd = S_V if tok[2] == "V" else S_U
                items.append([I(f"buffer_load_dword {ar(s.ST + 2 + 2 * ly + (tok[2] == 'U'))}, {vr(DU)}, {sr(srd, 4)}, s{4 + ly} offen{c.pmod}", "vload", grp="PW")])
            elif tok[:2] == "P0":
                nl = int(tok[3:] or 1)
                srd = S_V if tok[2] == "V" else S_U
                items.append([I(f"s_mov_b64 exec, {hex((1 << (11 * nl)) - 1)}", "salu"),
                              I(f"buffer_load_dword {ar(s.ST + (2 if tok[2] == 'V' else 3))}, {vr(t[22])}, {sr(srd, 4)}, {sr(sP[6])} offen{c.pmod}", "vload", grp="PW"),
                              I(f"s_mov_b64 exec, -1", "salu")])
            else:
                for sc, v in s.dma_items(tok):
                    items.append((M0(sc.txt) if sc is not None else []) + [v])
        fill = []
        cur[0] = fill
        V(f"v_mul_u32_u24 {vr(bl)}, 336, {vr(bl)}")
        V(f"v_lshl_add_u32 {vr(bl)}, {vr(q)}, 4, {vr(bl)}")
        V(f"v_add_u32 {vr(bl)}, {Z}, {vr(bl)}")
        S(f"s_mul_i32 {sr(sT0)}, {sr(sW)}, {SLOT}")
        V(f"v_add_u32 {vr(s.BI_AD)}, {sr(sT0)}, {vr(bl)}")
        S(f"s_add_u32 {sr(sT1)}, {sr(sT0)}, {4 * SLOT}")
        S(f"s_cmp_eq_u32 {sr(sW)}, 3")
        S(f"s_cselect_b32 {sr(sT1)}, 2016, {sr(sT1)}")
        V(f"v_add_u32 {vr(s.BI_AD + 1)}, {sr(sT1)}, {vr(bl)}")
        S(f"s_add_u32 {sr(sT1)}, {sr(sT0)}, {SLOT + 2016}")
        V(f"v_add_u32 {vr(s.BI_AD + 2)}, {sr(sT1)}, {vr(bl)}")
        V(f"v_add_u32 {vr(s.BI_AD + 3)}, {5 * SLOT + 2016}, {vr(bl)}")
        for r in (s.BI_QA + 1, s.BI_QA + 3, s.BI_QB + 1, s.BI_QB + 3):
            V(f"v_mov_b32 {vr(r)}, 0")
        S(f"s_lshl_b32 {sr(sUm)}, {sr(sW)}, 12")
        S(f"s_cmp_eq_u32 {sr(sW)}, 3")
        S(f"s_cselect_b32 {sr(sMXs)}, 86016, {sr(sMXs)}")
        S(f"s_cselect_b32 {sr(sMXm)}, 86016, {sr(sMXm)}")
        S(f"s_cselect_b32 {sr(S_M)}, {sr(S_U)}, {sr(S_V)}")
        S(f"s_cselect_b32 {sr(S_M + 1)}, {sr(S_U + 1)}, {sr(S_V + 1)}")
        S(f"s_mov_b32 {sr(S_M + 2)}, {NL * LSTR}")
        S(f"s_mov_b32 {sr(S_M + 3)}, 0x20000")
        S(f"s_mov_b32 {sr(sMask)}, 0")
        S(f"s_mov_b32 {sr(sMask + 1)}, -1")
        S(f"s_mov_b32 {sr(sCnt)}, {c.nlayers - 2}")
        rho = t[13]
        V(f"v_lshrrev_b32 {vr(x)}, 2, {vr(m)}")
        V(f"v_and_b32 {vr(y)}, 3, {vr(m)}")
        V(f"v_lshlrev_b32 {vr(x)}, 2, {vr(x)}")
        V(f"v_add_u32 {vr(x)}, {vr(x)}, {vr(y)}")
        V(f"v_lshlrev_b32 {vr(rho)}, 1, {vr(x)}")
        V(f"v_and_b32 {vr(x)}, 7, {vr(m)}")
        V(f"v_lshrrev_b32 {vr(y)}, 1, {vr(x)}")
        V(f"v_xor_b32 {vr(y)}, {vr(y)}, {vr(g)}")
        V(f"v_lshlrev_b32 {vr(y)}, 4, {vr(y)}")
        V(f"v_lshl_add_u32 {vr(y)}, {vr(x)}, 7, {vr(y)}")
        V(f"v_lshrrev_b32 {vr(x)}, 3, {vr(m)}")
        V(f"v_mul_u32_u24 {vr(x)}, 1088, {vr(x)}")
        V(f"v_add_u32 {vr(y)}, {vr(y)}, {vr(x)}")
        V(f"v_add_u32 {vr(PV)}, {WIN}, {vr(y)}")
        V(f"v_lshrrev_b32 {vr(x)}, 3, {vr(m)}")
        V(f"v_mul_u32_u24 {vr(x)}, 12, {vr(x)}")
        V(f"v_xor_b32 {vr(x)}, {vr(x)}, {vr(m)}")
        V(f"v_mul_u32_u24 {vr(x)}, 832, {vr(x)}")
        V(f"v_lshl_add_u32 {vr(x)}, {vr(g)}, 4, {vr(x)}")
        V(f"v_add_u32 {vr(PV6)}, {T6}, {vr(x)}")
        if c.zrow:
            V(f"v_add_u32 {vr(x)}, 2, {vr(g)}")
            V(f"v_and_b32 {vr(x)}, 3, {vr(x)}")
            V(f"v_lshlrev_b32 {vr(x)}, 4, {vr(x)}")
            V(f"v_add_u32 {vr(x)}, {ZR}, {vr(x)}")
            V(f"v_cmp_gt_u32 vcc, 8, {vr(m)}")
            V(f"v_lshlrev_b32 {vr(y)}, 2, {vr(lane)}")
            S(f"s_lshl_b32 {sr(sT0)}, {sr(sW)}, 8")
            V(f"v_cndmask_b32 {vr(PV6)}, {vr(x)}, {vr(PV6)}, vcc")
            S(f"s_add_u32 {sr(sT0)}, {sr(sT0)}, {ZR}")
            V(f"v_mov_b32 {vr(x)}, 0")
            V(f"v_add_u32 {vr(y)}, {sr(sT0)}, {vr(y)}")
            cur[0].append(I(f"ds_write_b32 {vr(y)}, {vr(x)}", "dsw"))
        V(f"v_mul_u32_u24 {vr(x)}, 208, {vr(rho)}")
        V(f"v_lshl_add_u32 {vr(PU)}, {vr(g)}, 4, {vr(x)}")
        V(f"v_lshl_add_u32 {vr(x)}, {vr(g)}, 3, {vr(x)}")
        V(f"v_add_u32 {vr(x)}, 192, {vr(x)}")
        V(f"v_lshlrev_b32 {vr(y)}, 3, {vr(m)}")
        V(f"v_add_u32 {vr(y)}, {Z}, {vr(y)}")
        V(f"v_cndmask_b32_e64 {vr(PT)}, {vr(x)}, {vr(y)}, {sr(sMask, 2)}")
        V(f"v_mov_b32 {vr(x)}, {WIN}")
        V(f"v_mov_b32 {vr(y)}, 2016")
        V(f"v_cndmask_b32_e64 {vr(D1)}, {vr(x)}, {vr(y)}, {sr(sMask, 2)}")
        V(f"v_mov_b32 {vr(x)}, {(-WIN) & 0xFFFFFFFF}")
        V(f"v_mov_b32 {vr(y)}, {(-1680) & 0xFFFFFFFF}")
        V(f"v_cndmask_b32_e64 {vr(x)}, {vr(x)}, {vr(y)}, {sr(sMask, 2)}")
        V(f"v_accvgpr_write_b32 {ar(s.ST_D2)}, {vr(x)}")
        if c.smix:
            S(f"s_mul_i32 {sr(sT0)}, {sr(sW)}, 6144")
            S(f"s_add_u32 {sr(sT0)}, {sr(sT0)}, 139264")
            V(f"v_lshlrev_b32 {vr(y)}, 4, {vr(lane)}")
            V(f"v_add_u32 {vr(y)}, {sr(sT0)}, {vr(y)}")
            V(f"v_accvgpr_write_b32 a88, {vr(y)}")
        if c.stpat == "oct":
            V(f"v_mul_u32_u24 {vr(x)}, 1664, {vr(j)}")
            V(f"v_lshl_add_u32 {vr(x)}, {vr(q)}, 4, {vr(x)}")
            V(f"v_accvgpr_write_b32 {ar(s.ST_XA)}, {vr(x)}")
        else:
            V(f"v_accvgpr_write_b32 {ar(s.ST_XA)}, {vr(XA)}")
        for e in range(0 if c.tail16 else 6):
            V(f"v_accvgpr_write_b32 {ar(s.TR0 + 4 * e + 2)}, 0")
            V(f"v_accvgpr_write_b32 {ar(s.TR0 + 4 * e + 3)}, 0")
        for i in range(20, 104):
            V(f"v_mov_b32 {vr(C0 + i)}, 1.0")
        cur[0] = o
        stamp(0)
        k = 0
        for n, it in enumerate(items):
            o.extend(it)
            if n + 1 >= c.p3start:
                o.extend(fill[k:k + c.p3k]); k += c.p3k
        stamp(1)
        o.extend(fill[k:])
        if c.pw1:
            V(f"v_add_u32 {vr(TMP)}, {LSTR}, {vr(t[22])}")
        stamp(2)
        if not c.bias_in:
            w_ = I(None, "wait"); w_.wait = dict(vm=["BI"], lg=False); o.append(w_)
            o.extend(s.bias_ops())
        stamp(3)
        w_ = I(None, "wait"); w_.wait = dict(vm=["WA", "WB", "V0", "T6", "T6b", "X0"] + [f"X{f}" for f in range(1, c.x0wait + 1)], lg=False, lg0=True); o.append(w_)
        stamp(4)
        o.append(I("s_barrier", "barrier"))
        if c.delayb:
            S(f"s_mov_b32 s69, {c.delayb}")
            o.append(I("L_dlyb:", "label"))
            for _ in range(8):
                S("s_nop 0")
            S("s_sub_u32 s69, s69, 1")
            S("s_cmp_lg_u32 s69, 0")
            S("s_cbranch_scc1 L_dlyb")
        if c.stamps:
            S(f"s_memtime s[64:65]")
            if c.stamps == "rt":
                S(f"s_memrealtime s[80:81]")
            S("s_waitcnt lgkmcnt(0)")
        for T in range(c.LA):
            o.append(s.slot_desc(T, True)[1])
            if T == s.g1_slot_of(0, 5):
                o.append(I(f"v_subrev_u32 {vr(PV)}, {WIN}, {vr(PV)}", "valu"))
        w_ = I(None, "wait"); w_.wait = dict(vm=[], lg=True); o.append(w_)
        return o

    def bias_ops(s):
        o = []
        for k in range(4):
            r = s.BI_R + 2 * k; A_, B_ = s.BI_QA, s.BI_QB; ad = s.BI_AD + k
            o.append(I(f"v_lshlrev_b32 {vr(A_)}, 16, {vr(r)}", "valu"))
            o.append(I(f"v_lshlrev_b32 {vr(A_ + 2)}, 16, {vr(r + 1)}", "valu"))
            o.append(I(f"v_and_b32 {vr(B_)}, 0xffff0000, {vr(r)}", "valu"))
            o.append(I(f"v_and_b32 {vr(B_ + 2)}, 0xffff0000, {vr(r + 1)}", "valu"))
            o.append(I(f"ds_write_b128 {vr(ad)}, {vr(A_, 4)}", "dsw"))
            o.append(I(f"ds_write_b128 {vr(ad)}, {vr(B_, 4)} offset:208", "dsw"))
        for i in range(20):
            o.append(I(f"v_mov_b32 {vr(C0 + i)}, 1.0", "valu"))
        return o

    def resolve(s, trace, res=None, final=True):
        if res is None:
            res = {}
        vm_idx = []
        lastgrp = {}
        nvm = 0
        nds = 0
        areg_ds = {}
        inst = []
        for pos, x in enumerate(trace):
            if x.kind in ("dma", "vload", "store"):
                nvm += 1
                if x.grp:
                    lastgrp[x.grp] = nvm
            elif x.kind in ("dsr", "dsw"):
                if x.kind == "dsr":
                    areg_ds[x.areg] = nds
                nds += 1
            elif x.kind == "wait":
                vmN = None
                if x.wait["vm"]:
                    need = 0
                    for g in x.wait["vm"]:
                        if g not in lastgrp:
                            continue
                        need = max(need, lastgrp[g])
                    vmN = nvm - need
                inst.append((pos, x, vmN, nds))
            elif x.kind == "mfma":
                x_need = areg_ds.get(x.areg)
                assert x_need is not None, x.txt
                trace_need.append(x_need) if False else None
        need_at = [None] * len(trace)
        areg_ds = {}; nds = 0
        for pos, x in enumerate(trace):
            if x.kind in ("dsr", "dsw"):
                if x.kind == "dsr":
                    areg_ds[x.areg] = nds
                nds += 1
            elif x.kind == "mfma":
                need_at[pos] = areg_ds[x.areg]
        lgw = [(pos, x, vmN, nds_) for (pos, x, vmN, nds_) in inst if x.wait["lg"] or x.wait.get("lg0")]
        lgN = {}
        for k, (pos, x, vmN, nds_) in enumerate(lgw):
            end = lgw[k + 1][0] if k + 1 < len(lgw) else len(trace)
            need = [need_at[p] for p in range(pos, end) if need_at[p] is not None]
            if x.wait.get("lg0"):
                N = 0
            elif need:
                mx = max(need)
                assert mx < nds_, ("read issued after its wait", pos, x.wait)
                N = nds_ - 1 - mx
            else:
                N = None
            lgN[pos] = N
        for (pos, x, vmN, nds_) in inst:
            r = res.setdefault(id(x), dict(x=x, vm=None, lg=None))
            if vmN is not None:
                r["vm"] = vmN if r["vm"] is None else min(r["vm"], vmN)
            N = lgN.get(pos)
            if N is not None:
                r["lg"] = N if r["lg"] is None else min(r["lg"], N)
        if not final:
            return
        for r in res.values():
            x = r["x"]; parts = []
            if r["vm"] is not None:
                assert r["vm"] <= 63
                parts.append(f"vmcnt({r['vm']})")
            if r["lg"] is not None:
                parts.append(f"lgkmcnt({min(r['lg'], 15)})")
            x.txt = ("s_waitcnt " + " ".join(parts)) if parts else None
            x.cmt = ",".join(x.wait["vm"])

    def kernel(s):
        c = s.c
        if c.alt is not None:
            c._hdr = True
        pro = {1: s.prologue, 2: s.prologue2, 3: s.prologue3}[c.pro]()
        g1f = s.lin(s.build("g1first"))
        g2l = s.lin(s.build("g2last"))
        proB = g1fB = None
        if c.alt is not None:
            import copy
            c2 = copy.copy(c)
            for k_, v_ in c.alt.items():
                assert hasattr(c, k_), k_
                setattr(c2, k_, v_)
            gB = Gen(c2)
            proB = gB.prologue3()
            g1fB = gB.lin(gB.build("g1first"))
            assert c.wvloop
        if c.wvloop:
            ncopy = len(c.wshift)
            loops = [s.lin(s.build("loop", wave=w)) for w in range(ncopy)]
            res = {}
            for w in range(ncopy):
                if proB is not None:
                    s.resolve(proB + g1fB + loops[w] * (c.nlayers - 1) + g2l, res, final=False)
                s.resolve(pro + g1f + loops[w] * (c.nlayers - 1) + g2l, res, final=(w == ncopy - 1))
            loop = loops[0]
        else:
            loop = s.lin(s.build("loop"))
            trace = pro + g1f + loop * (c.nlayers - 1) + g2l
            s.resolve(trace)
        L = []
        A = L.append
        hdr = open("standalone__cross_network_dcn_v2__recsys.s.ref").read().split("\n")
        for ln in hdr:
            if ln.startswith("; @launch"):
                A(f"; @launch grid=(256,1,1) block=(256,1,1) lds={163840 if c.smix else LDS + (1024 if c.zrow else 0)}")
            elif ln.startswith(";"):
                A(ln)
            else:
                break
        A('.amdgcn_target "amdgcn-amd-amdhsa--gfx950"')
        A(".text"); A(f".globl {KN}"); A(".p2align 8"); A(f".type {KN},@function"); A(f"{KN}:")

        def emit(lst):
            for x in lst:
                if x.txt is None:
                    continue
                if x.kind == "label":
                    A(x.txt); continue
                A("  " + x.txt + (f"   ; {x.cmt}" if x.cmt else ""))
        if c.delay0:
            if c.dly_bit is not None:
                A(f"  s_bitcmp1_b32 s2, {c.dly_bit}")
                A("  s_cbranch_scc0 L_dly0e")
            A(f"  s_mov_b32 s69, {c.delay0}")
            A("L_dly0:")
            for _ in range(8):
                A("  v_mov_b32 v1, v0")
            A("  s_sub_u32 s69, s69, 1")
            A("  s_cmp_lg_u32 s69, 0")
            A("  s_cbranch_scc1 L_dly0")
            A("L_dly0e:")
        if c.alt is not None:
            A("  s_cmp_ge_u32 s2, 256")
            A("  s_cbranch_scc1 L_end")
            A(f"  s_getpc_b64 {sr(S_M, 2)}")
            A("L_pc:")
            if c.alt_mask:
                A(f"  s_and_b32 s3, s2, {c.alt_mask[0]}")
                A(f"  s_cmp_eq_u32 s3, {c.alt_mask[1]}")
                A(f"  s_cbranch_scc{0 if c.alt_mask[2] else 1} L_alt")
            else:
                A(f"  s_bitcmp1_b32 s2, {c.alt_bit}")
                A("  s_cbranch_scc1 L_alt")
        emit(pro)
        A("; ---- G1 first"); emit(g1f)
        if c.alt is not None:
            A("L_join:")
        if c.stamps:
            A("  s_memtime s[74:75]")
            if c.stamps == "rt":
                A("  s_memrealtime s[82:83]")
            A("  s_waitcnt lgkmcnt(0)")
        if "vmwait" in c.drop:
            import re
            for x in loop:
                if x.kind == "wait" and x.txt:
                    x.txt = re.sub(r"vmcnt\(\d+\) ?", "", x.txt)
                    if x.txt.strip() == "s_waitcnt":
                        x.txt = None
        def flt(lst):
            o_ = []; k_ = 0
            if c.smix and ("h" in c.smix or "d" in c.smix):
                import re
                im = -1; prevA = None
                for x in lst:
                    if x.kind == "mfma":
                        im += 1
                        m_ = re.search(r"a\[\d+:\d+\]", x.txt)
                        if im & 1 and prevA and "h" in c.smix:
                            x = I(x.txt.replace(m_.group(0), prevA), "mfma", areg=x.areg)
                        else:
                            prevA = m_.group(0)
                    elif x.kind == "dsr" and x.areg < 88 and im & 1:
                        continue
                    o_.append(x)
                return o_
            for x in lst:
                if x.kind in c.drop:
                    continue
                if c.drophalf and x.kind == "dsr":
                    k_ += 1
                    if k_ % c.drophalf:
                        continue
                o_.append(x)
            return o_
        if c.wvloop:
            if ncopy == 2:
                A(f"  s_and_b32 s3, s{sW}, 1"); A(f"  s_cbranch_scc1 L_loop1")
            else:
                for w in range(1, 4):
                    A(f"  s_cmp_eq_u32 s{sW}, {w}"); A(f"  s_cbranch_scc1 L_loop{w}")
            for w in range(ncopy):
                A(f"; ---- loop of wave {w}"); A(f"L_loop{w}:")
                if c.itst:
                    A("  s_mov_b32 s91, s90"); A("  s_mov_b32 s90, s89"); A("  s_mov_b32 s89, s88"); A("  s_mov_b32 s88, s86")
                    A("  s_memrealtime s[86:87]")
                emit(flt(loops[w]))
                A(f"  s_cbranch_scc0 L_loop{w}")
                if w < ncopy - 1:
                    A("  s_branch L_g2l")
            A("L_g2l:")
        else:
            A("; ---- loop"); A("L_loop:"); emit([x for x in loop if x.kind not in c.drop])
            A("  s_cbranch_scc0 L_loop")
        if c.stamps:
            A("  s_memtime s[76:77]")
            if c.stamps == "rt":
                A("  s_memrealtime s[84:85]")
            A("  s_waitcnt lgkmcnt(0)")
        if c.delaym:
            A(f"  s_mov_b32 s69, {c.delaym}")
            A("L_dlym:")
            for _ in range(8):
                A("  s_nop 0")
            A("  s_sub_u32 s69, s69, 1")
            A("  s_cmp_lg_u32 s69, 0")
            A("  s_cbranch_scc1 L_dlym")
        if c.nost_bit == -1:
            A(f"  s_mov_b32 s{S_O + 2}, 0")
        elif c.nost_bit is not None:
            A(f"  s_bitcmp1_b32 s2, {c.nost_bit}")
            A(f"  s_cselect_b32 s{S_O + 2}, 0, s{S_O + 2}")
        A("; ---- G2 last"); emit(g2l)
        if c.delay:
            A(f"  s_mov_b32 s69, {c.delay}")
            A("L_dly:")
            for _ in range(8):
                A("  v_mov_b32 v0, v1")
            A("  s_sub_u32 s69, s69, 1")
            A("  s_cmp_lg_u32 s69, 0")
            A("  s_cbranch_scc1 L_dly")
        if c.stamps:
            A("  s_memtime s[66:67]")
            A("  s_waitcnt vmcnt(0) lgkmcnt(0)")
            A("  s_memtime s[78:79]")
            A("  s_memrealtime s[72:73]")
            A("  s_waitcnt lgkmcnt(0)")
            for k, reg in enumerate((62, 64, 74, 76, 66, 78, 80, 82, 84, 86, 88, 90) + ((89,) if c.itst else ())):
                A(f"  s_sub_u32 s{reg}, s{reg}, " + ("s70" if (c.stamps == "rt" and reg >= 80) else "s60"))
            A(f"  s_mov_b32 s{sDbg + 2}, 0x100000"); A(f"  s_mov_b32 s{sDbg + 3}, 0x20000")
            A(f"  s_lshl_b32 s68, s2, 2"); A(f"  s_add_u32 s68, s68, s{sW}"); A("  s_lshl_b32 s68, s68, 6")
            for k, reg in enumerate((62, 64, 74, 76, 66, 78, 70, 72, 80, 82, 84, 86, 88, 90, 89 if c.itst else 60, 60)):
                A(f"  v_mov_b32 v{k}, s{reg}")
            A("  v_mov_b32 v16, 0")
            if c.dbg:
                A(f"  s_mov_b32 s{sDbg + 2}, 256")
                A("  v_mov_b32 v20, s72"); A("  s_sub_u32 s73, -1, s70"); A("  v_mov_b32 v21, s73")
                A("  s_mov_b64 exec, 1")
                A(f"  buffer_atomic_umax v20, v16, s[{sDbg}:{sDbg + 3}], 0 offen")
                A(f"  buffer_atomic_umax v21, v16, s[{sDbg}:{sDbg + 3}], 0 offen offset:4")
                A("  s_sub_u32 s73, s72, s70"); A("  v_mov_b32 v22, s73")
                A(f"  buffer_atomic_umax v22, v16, s[{sDbg}:{sDbg + 3}], 0 offen offset:8")
                for k, r in enumerate((62, 64, 74, 76, 66, 78, 80, 82, 84)):
                    A(f"  v_mov_b32 v23, s{r}")
                    A(f"  buffer_atomic_umax v23, v16, s[{sDbg}:{sDbg + 3}], 0 offen offset:{12 + 4 * k}")
                    A("  s_nop 1")
                A("  s_mov_b64 exec, -1")
            else:
              for k in range(4):
                A(f"  buffer_store_dwordx4 v[{4 * k}:{4 * k + 3}], v16, s[{sDbg}:{sDbg + 3}], s68 offen offset:{16 * k}")
        if c.lstamps:
            nls = len(c.lstamps)
            A(f"  s_memtime s[{64 + 2 * nls}:{65 + 2 * nls}]")
            A("  s_waitcnt vmcnt(0) lgkmcnt(0)")
            A(f"  s_memtime s[{66 + 2 * nls}:{67 + 2 * nls}]")
            A(f"  s_load_dwordx2 s[{sDbg}:{sDbg + 1}], s[0:1], 48")
            A("  s_waitcnt lgkmcnt(0)")
            A(f"  s_mov_b32 s{sDbg + 2}, 0x100000"); A(f"  s_mov_b32 s{sDbg + 3}, 0x20000")
            A(f"  s_lshl_b32 s61, s2, 2"); A(f"  s_add_u32 s61, s61, s{sW}"); A("  s_lshl_b32 s61, s61, 6")
            for k in range(16):
                A(f"  v_mov_b32 v{k}, s{64 + 2 * min(k, len(c.lstamps) + 1)}")
            A("  v_mov_b32 v16, 0")
            for k in range(4):
                A(f"  buffer_store_dwordx4 v[{4 * k}:{4 * k + 3}], v16, s[{sDbg}:{sDbg + 3}], s61 offen offset:{16 * k}")
        A("L_end:"); A("  s_endpgm")
        if c.alt is not None:
            A("; ---- second start-up path"); A("L_alt:"); emit(proB)
            A("; ---- G1 first, second path"); emit(g1fB)
            A("  s_branch L_join"); A("L_fin:")
        A('.section .rodata,"a"'); A(".p2align 6"); A(f".amdhsa_kernel {KN}")
        nv = 256 + s.NA
        A(f"  .amdhsa_next_free_vgpr {nv}"); A("  .amdhsa_next_free_sgpr 102"); A("  .amdhsa_accum_offset 256")
        A("  .amdhsa_group_segment_fixed_size 0"); A("  .amdhsa_kernarg_size 56"); A("  .amdhsa_user_sgpr_count 2")
        A("  .amdhsa_user_sgpr_kernarg_segment_ptr 1"); A("  .amdhsa_system_sgpr_workgroup_id_x 1"); A(".end_amdhsa_kernel")
        s.sizes = dict(pro=len(pro), g1f=len(g1f), loop=len(loop), g2l=len(g2l))
        s.parts = dict(pro=pro, g1f=g1f, loop=loop, g2l=g2l)
        return "\n".join(L) + "\n"


def est_cycles(lst):
    cyc = 0; sc = 0; vc = 0; started = False
    for x in lst:
        if x.txt is None:
            continue
        if x.kind == "mfma":
            if started:
                cyc += 16 + 4 * (max(0, sc - 1) + max(0, vc - 2))
            started = True; sc = 0; vc = 0
        elif x.kind in ("salu", "wait", "barrier"):
            sc += 1
        else:
            vc += 1
    cyc += 16 + 4 * (max(0, sc - 1) + max(0, vc - 2))
    return cyc


if __name__ == "__main__":
    cfg = Cfg()
    out = "standalone__cross_network_dcn_v2__recsys.s"
    for a in sys.argv[1:]:
        if "=" in a:
            k, v = a.split("=", 1)
            if k == "out":
                out = v
            else:
                setattr(cfg, k, eval(v))
    g = Gen(cfg)
    txt = g.kernel()
    open(out, "w").write(txt)
    print("sizes", g.sizes, {k: est_cycles(v) for k, v in g.parts.items() if k != "pro"})
```

```python
import sys, json

KN = "standalone__cross_network_dcn_v2__recsys_kernel"
NL = 6
SLOT = 6656
WIN = 7 * SLOT
Z = 87040
T6 = Z + 6 * SLOT + 4032
LDS = 138240
ZR = 138240
LSTR = 86528
C0, X0, H0, XF = 0, 104, 208, 236
TMP, PV, PV6, PU, PT, DV, DU, D1 = 248, 249, 250, 251, 252, 253, 254, 255
S_X, S_U, S_V, S_B, S_O, S_M = 8, 12, 16, 20, 24, 28
(sW, sVb, sVs0, sVs1, sVs2, sWAs, sWAm, sWBs, sWBm, sT6s, sT6m, sMXs, sMXm, sUm, sLm, sCnt,
 sXo, sT0, sT1, sT2, sT3) = range(32, 53)
sMask = 54
sDbg = 56


class Cfg:
    LA = 12
    RING = 13
    NW = 4
    SWV = 8
    headint = True
    bars = [2, 20, 34, 54, 68, 91, 111, 131, 147, 163, 179]
    dma = {
        "V5": ([3, 7, 11], 54),
        "G0": ([21, 25, 29, 33], 68),
        "G1": ([37, 41, 45, 49], 91),
        "G2": ([55, 59, 63, 67], 111),
        "G3": ([71, 75, 79, 83], 131),
        "G4": ([92, 96, 100, 104], 147),
        "L": ([108], 163),
        "MX": ([113], 163),
        "T6": ([117], 179),
        "WA": ([121], 179),
        "WB": ([125], 179),
        "V0": ([132, 136, 140], 179),
        "V1": ([144, 148, 152], 2),
        "V2": ([156, 160, 164], 2),
        "V3": ([168, 172, 176], 20),
        "V4": ([180, 184, 188], 34),
    }
    stamps = False
    bars1 = [2, 14, 28, 42, 54, 68]
    dma1 = {
        "V1": ([], 2), "V2": ([], 14),
        "V3": ([0, 3, 6], 28), "V4": ([9, 12, 15], 42), "V5": ([18, 21, 24], 54),
        "G0": ([29, 32, 35, 38], 68), "G1": ([43, 46, 49, 52], 91),
        "G2": ([55, 59, 63, 67], 111), "G3": ([71, 75, 79, 83], 131),
    }
    p3order = "V0 WA WB T6 T6b X0 X1 BI PW V1 X2 X3 X4 V2 X5 X6 X7 X8 X9 X10 X11 X12"
    x0wait = 0
    delayb = 0
    tail16 = False
    zrow = False
    stwin = 0
    bias_in = False
    otmod = ""
    keep = ()
    keepmod = " sc1"
    keepld = False
    otld = None
    otouch = None
    xin = {}
    pl = ()
    pl1 = ()
    pw1 = ()
    p3start = 8
    p3k = 8
    pro = 2
    bi_early = True
    bias_at = (14, 60)
    pf_code = False
    delay = 0
    delay0 = 0
    delaym = 0
    lphase = "loop"
    wvloop = False
    wshift = (0, 1, 2, 3)
    lstamps = None
    dma_first = False
    dmamod = ""
    stmod = ""
    stsplit = 13
    stmod2 = ""
    stpat = ""
    xmod = ""
    pmod = ""
    dmamod0 = None
    dbg = False
    drop = ()
    pf_w = False
    nlayers = NL
    dly_bit = None
    alt = None
    alt_bit = 3
    alt_mask = None
    g2l_head = False
    g2l_first = 3
    dmaL = None
    barsL = None
    ntr = 3
    headsnake = False
    g1snake = False
    g2snake = False
    itst = False
    smix = 0
    dmaw = None
    g1mode = "k"
    headn = 2
    g2chain = False
    _hdr = False
    pf_slice = 0
    pf_bytes = 18432
    nost_bit = None
    drophalf = 0


class I:
    __slots__ = ("txt", "kind", "grp", "areg", "wait", "cmt")

    def __init__(s, txt, kind, grp=None, areg=None, cmt=None):
        s.txt, s.kind, s.grp, s.areg, s.cmt = txt, kind, grp, areg, cmt
        s.wait = None


def vr(a, n=1):
    return f"v{a}" if n == 1 else f"v[{a}:{a + n - 1}]"


def ar(a, n=1):
    return f"a{a}" if n == 1 else f"a[{a}:{a + n - 1}]"


def sr(a, n=1):
    return f"s{a}" if n == 1 else f"s[{a}:{a + n - 1}]"


def cpos(p, tau):
    return C0 + 8 * p + 4 * tau


def xe(p, q):
    return X0 + 8 * p + q


def xo(p, q):
    return X0 + 8 * p + 4 + q


def xbuf(f):
    return XF + 4 * (f % 3)


class Gen:
    def __init__(s, cfg):
        s.c = cfg
        s.TR0 = 4 * cfg.RING
        s.ST = s.TR0 + 8 * cfg.ntr
        s.ST_XA, s.ST_D2 = s.ST, s.ST + 1
        s.NA = s.ST + 12
        if cfg.smix:
            s.NA = 128
        s.R2 = s.NA
        if cfg.g2l_head:
            s.NA += 4 * cfg.RING

    def g1_order(s, ks):
        if ks and (ks & 1) and s.c.g1snake:
            return list(range(6, -1, -1))
        return [1, 3, 5, 0, 2, 4, 6] if ks == 0 else list(range(7))

    def g1_seq(s):
        if getattr(s, "_seq", None) is None:
            if s.c.g1mode == "k":
                q = [(st, t) for st in range(13) for t in s.g1_order(st)]
            else:
                q = [(0, 1), (0, 3), (0, 5)]
                for j in range(5):
                    for t in (0, 2, 4, 6):
                        q += [(2 * j, t), (2 * j + 1, t)]
                    for t in (1, 3, 5):
                        q += [(2 * j + 1, t), (2 * j + 2, t)]
                for t in (2, 4, 6, 0):
                    q += [(10, t), (11, t)]
                q += [(12, 0), (11, 1), (12, 1), (12, 2), (11, 3), (12, 3), (12, 4), (11, 5), (12, 5), (12, 6)]
            assert len(q) == 91 and len(set(q)) == 91
            s._seq = q
        return s._seq

    def fuse(s, f):
        u = [i for i, (st, t) in enumerate(s.g1_seq()) if st == f]
        return u[0], u[-1]

    def pv_switch(s):
        if s.c.g1mode == "k":
            return max(s.g1_slot_of(s.c.SWV - 1, t) for t in range(6))
        return s.g1_slot_of(8, 5)

    def g2_order(s):
        o = []
        p0 = 0
        if s.c.headint:
            for ks in range(4):
                tl = [(p, tau) for p in range(s.c.headn) for tau in (0, 1)]
                if s.c.headsnake and (ks & 1):
                    tl.reverse()
                for p, tau in tl:
                    o.append((p, tau, ks))
            p0 = s.c.headn
        for p in range(p0, 13):
            if s.c.g2chain:
                for tau in (0, 1):
                    rev = s.c.g2snake and (tau == 0 if s.c.headsnake else tau == 1)
                    for ks in (range(3, -1, -1) if rev else range(4)):
                        o.append((p, tau, ks))
                continue
            for ks in range(4):
                for tau in (0, 1):
                    o.append((p, tau, ks))
        return o

    def ring(s, T):
        return 4 * (T % s.c.RING)

    def slot_desc(s, T, first=False):
        c = s.c
        if T < 91:
            st, t = s.g1_seq()[T]
            a = s.ring(T)
            if t < 6:
                ks, tau = t >> 1, t & 1
                if tau == 0:
                    if st < 12:
                        k = 2 * (st >> 1); ab = SLOT * (k + 1) + 2112 * ks + 64 * (st & 1); grp = f"V{k >> 1}"
                    else:
                        ab = Z + SLOT * ks + 4032; grp = "W"
                else:
                    if st == 0:
                        ab = Z + SLOT * ks + 4032 + 64; grp = "W"
                    else:
                        j = (st - 1) >> 1; k = 2 * j + 1
                        ab = SLOT * (k + 1) + 2112 * ks + 64 * ((st - 1) & 1); grp = f"V{j}"
                high = T > s.pv_switch() or (st == 0 and tau == 1)
                imm = ab - (WIN if high else 0)
                assert 0 <= imm < 65536, (T, imm)
                rd = I(f"ds_read_b128 {ar(a, 4)}, {vr(PV)} offset:{imm}", "dsr", areg=a)
            else:
                rd = I(f"ds_read_b128 {ar(a, 4)}, {vr(PV6)} offset:{64 * st}", "dsr", areg=a)
            D = H0 + 4 * t
            if first:
                B = xo(st, 0) if st < 10 else xbuf(st)
            else:
                B = xbuf(st)
            Cc = "0" if st == 0 else vr(D, 4)
            mf = I(f"v_mfma_f32_16x16x32_bf16 {vr(D, 4)}, {ar(a, 4)}, {vr(B, 4)}, {Cc}", "mfma", areg=a)
            return mf, rd
        p, tau, ks = s.g2_order()[T - 91]
        D = cpos(p, tau)
        if ks < 3:
            a = s.ring(T)
            imm = SLOT * (p % 7) + 208 * tau + 64 * ks
            rd = I(f"ds_read_b128 {ar(a, 4)}, {vr(PU)} offset:{imm}", "dsr", areg=a)
            B = H0 + 8 * ks
        else:
            a = s.TR0 + 4 * (2 * (p % c.ntr) + tau)
            imm = SLOT * (p % 7) + 208 * tau
            rd = I(f"ds_read_b64 {ar(a, 2)}, {vr(PT)} offset:{imm}", "dsr", areg=a)
            B = H0 + 24
        if ks == 3 and c.tail16:
            mf = I(f"v_mfma_f32_16x16x16_bf16 {vr(D, 4)}, {ar(a, 2)}, {vr(B, 2)}, {vr(D, 4)}", "mfma", areg=a)
        else:
            mf = I(f"v_mfma_f32_16x16x32_bf16 {vr(D, 4)}, {ar(a, 4)}, {vr(B, 4)}, {vr(D, 4)}", "mfma", areg=a)
        return mf, rd

    def g2_slot_of(s, p, tau, ks):
        return 91 + s.g2_order().index((p, tau, ks))

    def g1_slot_of(s, st, t):
        return s.g1_seq().index((st, t))

    def dma_items(s, g):
        V = lambda txt: I(txt.replace(" lds", getattr(s, "_dm", s.c.dmamod) + " lds"), "dma", grp=g)
        S = lambda txt: I(txt, "salu")
        if g[0] == "V":
            j = int(g[1]); out = []
            for ks in range(3):
                out.append((S(f"s_add_u32 m0, {sr(sVb)}, {13184 * j + 2112 * ks + SLOT}"),
                            V(f"buffer_load_dwordx4 {vr(DV)}, {sr(S_V, 4)}, {sr(sVs0 + ks)} offen offset:{128 * j} lds")))
            return out
        if g[0] == "G":
            n = int(g[1]); out = []
            for i in range(4):
                sc = S(f"s_add_u32 m0, {sr(sUm)}, {16384 * n}") if i == 0 else None
                out.append((sc, V(f"buffer_load_dwordx4 {vr(DU)}, {sr(S_U, 4)}, m0 offen offset:{1024 * i} lds")))
            return out
        if g == "L":
            return [(S(f"s_mov_b32 m0, {sr(sLm)}"), V(f"buffer_load_dwordx4 {vr(DU)}, {sr(S_U, 4)}, m0 offen lds"))]
        if g == "MX":
            return [(S(f"s_mov_b32 m0, {sr(sMXm)}"), V(f"buffer_load_dwordx4 {vr(DU)}, {sr(S_M, 4)}, {sr(sMXs)} offen lds"))]
        if g == "T6":
            return [(S(f"s_mov_b32 m0, {sr(sT6m)}"), V(f"buffer_load_dwordx4 {vr(DU)}, {sr(S_V, 4)}, {sr(sT6s)} offen lds"))]
        if g == "WA":
            return [(S(f"s_mov_b32 m0, {sr(sWAm)}"), V(f"buffer_load_dwordx4 {vr(DV)}, {sr(S_V, 4)}, {sr(sWAs)} offen offset:768 lds"))]
        if g == "WB":
            return [(S(f"s_mov_b32 m0, {sr(sWBm)}"), V(f"buffer_load_dwordx4 {vr(DV)}, {sr(S_V, 4)}, {sr(sWBs)} offen offset:768 lds"))]
        raise KeyError(g)

    def xfrag_ops(s, f, dst=None):
        b = xbuf(f) if dst is None else dst
        o = []
        for q in range(4):
            o.append(I(f"v_mul_f32 {vr(b + q)}, {vr(xe(f, q))}, {vr(cpos(f, 0) + q)}", "valu"))
            o.append(I(f"v_mul_f32 {vr(TMP)}, {vr(xo(f, q))}, {vr(cpos(f, 1) + q)}", "valu"))
            o.append(I(f"v_cvt_pk_bf16_f32 {vr(b + q)}, {vr(b + q)}, {vr(TMP)}", "valu"))
        return o

    def unpack_ops(s, f):
        src = xo(f, 0) if f < 10 else xbuf(f)
        o = []
        for q in range(4):
            o.append(I(f"v_lshlrev_b32 {vr(xe(f, q))}, 16, {vr(src + q)}", "valu"))
            o.append(I(f"v_and_b32 {vr(xo(f, q))}, 0xffff0000, {vr(src + q)}", "valu"))
        return o

    def hcvt_ops(s, ks):
        if ks < 3:
            b = H0 + 8 * ks
            return [I(f"v_cvt_pk_bf16_f32 {vr(b + q)}, {vr(b + q)}, {vr(b + 4 + q)}", "valu") for q in range(4)]
        b = H0 + 24
        o = [I(f"v_cvt_pk_bf16_f32 {vr(b)}, {vr(b)}, {vr(b + 1)}", "valu"),
             I(f"v_cvt_pk_bf16_f32 {vr(b + 1)}, {vr(b + 2)}, {vr(b + 3)}", "valu")]
        if not s.c.tail16:
            o += [I(f"v_mov_b32 {vr(b + 2)}, 0", "valu"), I(f"v_mov_b32 {vr(b + 3)}, 0", "valu")]
        o.append(I(f"v_cndmask_b32_e64 {vr(b)}, {vr(b)}, 0.5, {sr(sMask, 2)}", "valu"))
        if not s.c.zrow:
            o.append(I(f"v_cndmask_b32_e64 {vr(b + 1)}, {vr(b + 1)}, 0, {sr(sMask, 2)}", "valu"))
        return o

    class Phase:
        def __init__(s, T0, n):
            s.T0, s.n = T0, n
            s.m = [None] * n; s.r = [None] * n
            s.sc = [[] for _ in range(n)]
            s.vx = [[] for _ in range(n)]

        def load(s, i):
            return len(s.vx[i])

    def spread(s, ph, ops, lo, hi, deadline_groups=None):
        n = hi - lo + 1
        base = [ph.load(i) for i in range(lo, hi + 1)]
        tot = sum(base) + len(ops)
        lvl = 0
        while sum(max(0, lvl - b) for b in base) < len(ops):
            lvl += 1
        cap = [max(0, lvl - b) for b in base]
        excess = sum(cap) - len(ops)
        idxs = [i for i in range(n) if cap[i] > 0]
        if excess > 0:
            step = len(idxs) / excess
            for e in range(excess):
                cap[idxs[int((e + 0.5) * step)]] -= 1
        k = 0
        for i in range(n):
            for _ in range(cap[i]):
                ph.vx[lo + i].append(ops[k]); k += 1
        assert k == len(ops)

    def build(s, kind, wave=None):
        c = s.c
        LA = c.LA
        if kind == "g1first":
            Ts = list(range(0, 91))
        elif kind == "loop":
            Ts = list(range(91, 195)) + list(range(0, 91))
        else:
            Ts = list(range(91, 195))
        n = len(Ts)
        ph = s.Phase(Ts[0], n)
        ph.kind = kind
        ph.Ts = Ts
        pos = {T: i for i, T in enumerate(Ts)}
        first = kind == "g1first"
        last = kind == "g2last"
        for i, T in enumerate(Ts):
            ph.m[i] = s.slot_desc(T, first)[0]
            Tn = (T + LA) % 195
            if last and T + LA >= 195:
                ph.r[i] = None
            else:
                ph.r[i] = s.slot_desc(Tn, False)[1]

        def at(T):
            return pos.get(T % 195)

        slot_of = s.g2_slot_of
        if last and c.g2l_head:
            assert c.headint and c.headn == 2
            lo_ = s.g2_order()
            order_l = [(p, tau, ks) for p in (0, 1) for ks in range(4) for tau in (0, 1)] + lo_[16:]
            slot_of = lambda p, tau, ks: 91 + order_l.index((p, tau, ks))
            r2 = lambda T: s.R2 + 4 * (T % c.RING)
            for i, T in enumerate(Ts):
                it = order_l[i]
                mf = s.slot_desc(s.g2_slot_of(*it), False)[0]
                if T >= 107 and it[2] < 3:
                    mf = I(mf.txt.replace(ar(mf.areg, 4), ar(r2(T), 4)), "mfma", areg=r2(T))
                ph.m[i] = mf
                rd = ph.r[i]
                if rd is not None and T + LA >= 107 and order_l[i + LA][2] < 3:
                    ph.r[i] = I(rd.txt.replace(ar(rd.areg, 4), ar(r2(T + LA), 4)), "dsr", areg=r2(T + LA))

        p3 = first and c.pro == 3
        s._dm = c.dmamod0 if (first and c.dmamod0 is not None) else c.dmamod
        cdma = c.dma1 if p3 else c.dma
        cbars = c.bars1 if p3 else c.bars
        if last and c.dmaL:
            cdma = dict(c.dma); cdma.update(c.dmaL)
            cbars = c.barsL
        groups = dict(cdma)
        if last:
            for g in list(groups):
                if g not in ("G4", "L", "MX"):
                    del groups[g]
        m0_req = []
        dma_slots = []
        for g, (slots, arr) in groups.items():
            items = s.dma_items(g)
            if not slots:
                continue
            assert len(items) == len(slots), g
            ovr = wave is not None and c.dmaw and g in c.dmaw[wave]
            if ovr:
                slots = c.dmaw[wave][g]
            for (sc, v), T in zip(items, slots):
                if wave is not None and not ovr:
                    T = T + c.wshift[wave]
                i = at(T)
                if i is None:
                    continue
                ph.vx[i].append(v)
                dma_slots.append(i)
                if sc is not None:
                    m0_req.append((i, sc))
        dma_slots.sort()
        bars = [b for b in cbars if at(b) is not None]
        if last:
            need = set()
            for g in ("G1", "G2", "G3", "G4", "L", "MX"):
                need.add(cdma[g][1])
            bars = [b for b in bars if b in need or b == 91]
        fixed = {}
        for b in bars:
            i = at(b)
            ph.sc[i].append(I("s_barrier", "barrier"))
            arrivals = [g for g, (sl, arr) in cdma.items() if arr == b]
            if last:
                arrivals = [g for g in arrivals if g in ("G1", "G2", "G3", "G4", "L", "MX")]
            if arrivals:
                w = I(None, "wait"); w.wait = dict(vm=arrivals, lg=True)
                j = i - 1
                if j < 0:
                    ph.pre_wait = w
                else:
                    ph.sc[j].append(w)
        if kind in ("g1first", "loop"):
            nb = (Ts[-1] + 1) % 195
            if nb in c.bars:
                arrivals = [g for g, (sl, arr) in c.dma.items() if arr == nb]
                if arrivals:
                    w = I(None, "wait"); w.wait = dict(vm=arrivals, lg=True)
                    ph.sc[n - 1].append(w)
        if first:
            for st in range(1, 13):
                fr = st if st < 10 else None
                if p3:
                    grp = [f"X{st}"]
                elif st == 9:
                    grp = ["X9", "X10", "X11", "X12"]
                elif st > 9:
                    continue
                else:
                    grp = [f"X{st}"]
                if (c.pro == 2 or (p3 and c.bias_in)) and s.fuse(st)[0] - 1 < c.bias_at[0] <= (s.fuse(st + 1)[0] if st < 12 else 91) - 1:
                    grp = grp + ["BI"]
                j = s.fuse(st)[0] - 1
                ex = [x for x in ph.sc[j] if x.kind == "wait"]
                if ex:
                    ex[0].wait["vm"] = ex[0].wait["vm"] + grp
                else:
                    w = I(None, "wait"); w.wait = dict(vm=grp, lg=True)
                    ph.sc[j].append(w)
        for i, sc in sorted(m0_req, key=lambda x: x[0]):
            prev = max([d for d in dma_slots if d < i], default=-1)
            placed = False
            for j in range(i, prev, -1):
                if j >= 0 and not ph.sc[j]:
                    ph.sc[j].append(sc); placed = True; break
            if not placed:
                ph.sc[i].append(sc)
        if kind == "loop":
            ph.loopctl = True
        def put(T, ins):
            i = at(T)
            if i is not None:
                ph.vx[i].append(ins)
        rdslot = lambda T: (T - LA) % 195
        put(rdslot(s.pv_switch()), I(f"v_add_u32 {vr(PV)}, {WIN}, {vr(PV)}", "valu"))
        if not last:
            if not first:
                put(rdslot(s.g1_slot_of(0, 5)), I(f"v_subrev_u32 {vr(PV)}, {WIN}, {vr(PV)}", "valu"))
        if not first:
            lastPU6 = max(s.g2_slot_of(6, t, k) for t in (0, 1) for k in range(3))
            put(rdslot(lastPU6), I(f"v_add_u32 {vr(PU)}, {WIN}, {vr(PU)}", "valu"))
            put(rdslot(s.g2_slot_of(6, 1, 3)), I(f"v_add_u32 {vr(PT)}, {vr(PT)}, {vr(D1)}", "valu"))
            if not last:
                lastPU12 = s.g2_slot_of(12, 1, 3) if not c.g2snake else max(s.g2_slot_of(12, t, k) for t in (0, 1) for k in range(3))
                put(rdslot(lastPU12), I(f"v_subrev_u32 {vr(PU)}, {WIN}, {vr(PU)}", "valu"))
        if kind == "loop":
            put(0, I(f"v_accvgpr_read_b32 {vr(TMP)}, {ar(s.ST_D2)}", "valu"))
            put(1, I(f"v_add_u32 {vr(PT)}, {vr(PT)}, {vr(TMP)}", "valu"))
            put(2, I(f"v_add_u32 {vr(DU)}, {LSTR}, {vr(DU)}", "valu"))
        if kind == "loop":
            for T in c.keep:
                if c.keepld:
                    put(T, I(f"buffer_load_dword {ar(s.ST + 9)}, off, {sr(sDbg, 4)}, s7{c.keepmod}", "vload", grp="KP"))
                    put(T + 1, I(f"s_add_u32 s7, s7, 0x100000", "salu"))
                else:
                    put(T, I(f"buffer_store_dword {vr(D1)}, off, {sr(sDbg, 4)}, s7{c.keepmod}", "store", grp="KP"))
            for k_, (T, mat) in enumerate(c.pl):
                put(T, I(f"buffer_load_dword {ar(s.ST + 10 + k_)}, {vr(DU)}, {sr(S_V if mat == 'V' else S_U, 4)}, {'s6' if T >= 91 else 's5'} offen{c.pmod}", "vload", grp="PW"))
        if kind in ("loop", "g1first"):
            put(86, I(f"v_add_u32 {vr(DV)}, {LSTR}, {vr(DV)}", "valu"))
        if c.smix and kind == "loop":
            F = c.smix
            put(84, I(f"v_accvgpr_read_b32 {vr(TMP)}, a88", "valu"))
            if "w" in F:
                for t_ in range(7):
                    put(87 + t_, I(f"ds_write_b128 {vr(TMP)}, {vr(H0 + 4 * t_, 4)} offset:{1024 * (t_ % 6)}", "dsw"))
                for t_ in range(6):
                    put(103 + t_, I(f"ds_write_b128 {vr(TMP)}, {vr(H0 + 8 * (t_ % 3), 4)} offset:{1024 * t_}", "dsw"))
            if "b" in F:
                ph.sc[at(94)].append(I("s_waitcnt lgkmcnt(0)", "salu"))
                ph.sc[at(95)].append(I("s_barrier", "barrier"))
                ph.sc[at(110)].append(I("s_waitcnt lgkmcnt(0)", "salu"))
            if "r" in F:
                for t_ in range(7):
                    put(96 + t_, I(f"ds_read_b128 {ar(92 + 4 * t_, 4)}, {vr(TMP)} offset:{1024 * (t_ % 6)}", "dsr", areg=92 + 4 * t_))
                for t_ in range(6):
                    put(112 + t_, I(f"ds_read_b128 {ar(92 + 4 * t_, 4)}, {vr(TMP)} offset:{1024 * t_}", "dsr", areg=92 + 4 * t_))
            if "2" in F:
                ph.sc[at(103)].append(I("s_waitcnt lgkmcnt(0)", "salu"))
                ph.sc[at(119)].append(I("s_waitcnt lgkmcnt(0)", "salu"))
            if "v" in F:
                fr = [H0 + 4 + (i & 3) + 8 * ((i >> 2) % 3) for i in range(39)]
                xo_ = [I(f"v_add_f32 {vr(fr[i])}, {vr(C0 + 2 * i)}, {vr(X0 + 2 * i)}", "valu") for i in range(39)]
                s.spread(ph, xo_, at(104), at(190))
        h0 = s.hcvt_ops(0); h1 = s.hcvt_ops(1); h2 = s.hcvt_ops(2); h3 = s.hcvt_ops(3)
        use = [min(slot_of(p, t, k) for p in range(13) for t in (0, 1)) for k in range(4)]
        ab = c.g1mode != "k"
        if kind in ("loop", "g1first"):
            for k, op in enumerate(h0):
                ph.vx[at((86 if ab else 88) + k // 2)].append(op)
            if ab:
                for k, op in enumerate(h1):
                    ph.vx[at(89 + k // 2)].append(op)
        if kind in ("loop", "g2last"):
            for ops, early, u in ((h1, 91, use[1]), (h2, 92, use[2]), (h3, 93, use[3]))[(1 if ab else 0):]:
                lo = max(early, getattr(s, "_hlast", 91))
                hi = u - 2
                if lo > hi:
                    lo = early
                s.spread(ph, ops, at(lo), at(hi))
                s._hlast = hi + 1 if hi + 1 <= 195 else lo
            s._hlast = 91
        if kind == "loop":
            done = [max(s.g2_slot_of(f, t, k) for t in (0, 1) for k in range(4)) + 3 for f in range(3)]
            if c.headint and c.headn == 2:
                lo = max(done[1], use[3])
                ops = s.xfrag_ops(0) + s.xfrag_ops(1) + s.xfrag_ops(2)
                lo = max(lo, done[0])
                if c.smix:
                    lo = 120
                s.spread(ph, ops[:24], at(lo), at(lo + 39))
                s.spread(ph, ops[24:], at(max(lo + 40, done[2])), at(190))
            else:
                lo = max(done[0], use[3])
                w_ = (190 - lo + 1) // 3
                for f in range(3):
                    a0 = lo + f * w_
                    assert a0 >= done[f]
                    s.spread(ph, s.xfrag_ops(f), at(a0), at(a0 + w_ - 1))
            for f in range(3, 13):
                if ab:
                    a0 = 10 + 7 * (f - 3); a1 = a0 + 6
                else:
                    a0 = 7 + (76 * (f - 3) + 5) // 10
                    a1 = 7 + (76 * (f - 2) + 5) // 10 - 1
                assert a0 > s.fuse(f - 3)[1] and a1 <= s.fuse(f)[0] - 2, (f, a0, a1)
                s.spread(ph, s.xfrag_ops(f), at(a0), at(a1))
        if first:
            for f in range(0, 10):
                lo = s.fuse(f)[1] + 1
                hi = min(lo + 6, 83)
                s.spread(ph, s.unpack_ops(f), at(lo), at(hi))
            if p3:
                for f in (10, 11, 12):
                    f0 = s.fuse(f)[0]
                    s.spread(ph, s.unpack_ops(f), at(f0), at(min(f0 + 6, 87) if f < 12 else 90))
            else:
                s.spread(ph, s.unpack_ops(10) + s.unpack_ops(11) + s.unpack_ops(12), at(63), at(87))
            if p3 and c.otld is not None:
                put(c.otld, I(f"buffer_load_dword {ar(s.ST + 7)}, {vr(TMP)}, {sr(S_O, 4)}, {sr(sXo)} offen{c.otmod}", "vload", grp="OT"))
            if p3 and c.otouch is not None:
                put(c.otouch, I(f"buffer_store_dword {vr(D1)}, {vr(TMP)}, {sr(S_O, 4)}, {sr(sXo)} offen{c.otmod}", "store", grp="OT"))
            if p3:
                for f, T in c.xin.items():
                    dst = xo(f, 0) if f < 10 else xbuf(f)
                    put(T, I(f"buffer_load_dwordx4 {vr(dst, 4)}, {vr(TMP)}, {sr(S_X, 4)}, {sr(sXo)} offen offset:{64 * f}{c.xmod}", "vload", grp=f"X{f}"))
                for k_, (T, mat) in enumerate(c.pl1):
                    put(T, I(f"buffer_load_dword {ar(s.ST + 8 + k_)}, {vr(DU)}, {sr(S_V if mat == 'V' else S_U, 4)}, s5 offen{c.pmod}", "vload", grp="PW"))
                for k_, (T, mat) in enumerate(c.pw1):
                    put(T, I(f"buffer_load_dword {ar(s.ST + 6 + k_)}, {vr(TMP)}, {sr(S_V if mat == 'V' else S_U, 4)}, s98 offen{c.pmod}", "vload", grp="PW"))
            if c.pro == 2 or (p3 and c.bias_in):
                bo = s.bias_ops()
                if "biasw" in c.drop:
                    bo = [x for x in bo if x.kind != "dsw"]
                s.spread(ph, bo, at(c.bias_at[0]), at(c.bias_at[1]))
        if last:
            put(92, I(f"v_accvgpr_read_b32 {vr(DV)}, {ar(s.ST_XA)}", "valu"))
            ph.tail = []
            prev = use[3] - 1
            for f in range(13):
                done = max(slot_of(f, t, k) for t in (0, 1) for k in range(4)) + 3
                ops = s.xfrag_ops(f)
                if c.stwin and f >= c.stwin:
                    w = I(None, "wait"); w.wait = dict(vm=[f"S{f - c.stwin}"], lg=False); ops.append(w)
                ops = ops + [I(f"buffer_store_dwordx4 {vr(xbuf(f), 4)}, {vr(DV)}, {sr(S_O, 4)}, {sr(sXo)} offen offset:{(128 if c.stpat == 'oct' else 64) * f}{c.stmod if f < c.stsplit else c.stmod2}", "store", grp=f"S{f}")]
                lo = max(done, prev + 1)
                hi = min(194, max(lo + 5, done + 7))
                if f == 0 and c.g2l_head:
                    hi = lo + c.g2l_first
                if lo > 194 or f == 12:
                    if not ph.tail:
                        ph.tail.append(I("s_nop 5", "salu"))
                    ph.tail += ops
                    continue
                s.spread(ph, ops, at(lo), at(hi))
                prev = hi
        s.place_lg(ph)
        return ph

    def place_lg(s, ph):
        c = s.c
        n = ph.n
        has = [any(x.kind == "wait" for x in ph.sc[i]) for i in range(n)]
        i = 0
        lastw = -1
        j = -1
        while j < n - 1:
            cand = list(range(j + 1, min(j + c.NW, n - 1) + 1))
            nxt = None
            ex = [x for x in cand if has[x]]
            if ex:
                nxt = ex[0]
            else:
                fr = [x for x in cand if not ph.sc[x]]
                nxt = fr[-1] if fr else cand[-1]
                w = I(None, "wait"); w.wait = dict(vm=[], lg=True)
                ph.sc[nxt].insert(0, w) if not fr else ph.sc[nxt].append(w)
                has[nxt] = True
            j = nxt
            if j >= n - 1:
                break

    def lin(s, ph):
        out = []
        for i in range(ph.n):
            out.append(ph.m[i])
            if s.c.lstamps and ph.kind == s.c.lphase and ph.Ts[i] in s.c.lstamps:
                k = s.c.lstamps.index(ph.Ts[i])
                out.append(I(f"s_memtime s[{64 + 2 * k}:{65 + 2 * k}]", "salu"))
            sc = list(ph.sc[i])
            sc.sort(key=lambda x: {"wait": 0, "barrier": 1}.get(x.kind, 2))
            shadow = sc[:1]; rest = sc[1:]
            out += shadow
            pre = [x for x in rest if x.kind != "wait"]
            post = [x for x in rest if x.kind == "wait"]
            out += pre
            if getattr(ph, "loopctl", False) and i == ph.n - 1:
                out.append(I(f"s_sub_u32 {sr(sCnt)}, {sr(sCnt)}, 1", "salu"))
            vx = list(ph.vx[i])
            if s.c.dma_first:
                d = [x for x in vx if x.kind == "dma"]
                if d and (shadow and shadow[0].kind == "salu" and "m0" in shadow[0].txt):
                    pass
                elif d:
                    out += d; vx = [x for x in vx if x.kind != "dma"]
            if ph.r[i] is not None:
                out.append(ph.r[i])
            out += vx
            out += post
        out += getattr(ph, "tail", [])
        return out

    def prologue(s):
        c = s.c
        o = []
        S = lambda t: o.append(I(t, "salu"))
        V = lambda t: o.append(I(t, "valu"))
        t = [H0 + i for i in range(28)]
        S(f"s_cmp_ge_u32 s2, 256")
        S(f"s_cbranch_scc1 L_end")
        if c.pf_code:
            S(f"s_getpc_b64 {sr(S_M, 2)}")
            o.append(I("L_pc:", "label"))
            S(f"s_mov_b32 {sr(S_M + 2)}, L_end-L_pc")
            S(f"s_mov_b32 {sr(S_M + 3)}, 0x20000")
            V(f"v_lshlrev_b32 {vr(TMP)}, 6, v0")
            o.append(I(f"buffer_load_dword {ar(s.ST + 4)}, {vr(TMP)}, {sr(S_M, 4)}, 0 offen", "vload", grp="PC"))
        S(f"s_load_dwordx2 {sr(S_X, 2)}, s[0:1], 0")
        S(f"s_load_dwordx2 {sr(S_U, 2)}, s[0:1], 8")
        S(f"s_load_dwordx2 {sr(S_V, 2)}, s[0:1], 16")
        S(f"s_load_dwordx2 {sr(S_B, 2)}, s[0:1], 24")
        S(f"s_load_dwordx2 {sr(S_O, 2)}, s[0:1], 32")
        if c.stamps:
            S(f"s_load_dwordx2 {sr(sDbg, 2)}, s[0:1], {40 if c.dbg else 48}")
            S(f"s_memtime s[60:61]")
            S(f"s_memrealtime s[70:71]")
        lane, w, g, m = t[0], t[1], t[2], t[3]
        V(f"v_lshrrev_b32 {vr(w)}, 6, v0")
        V(f"v_and_b32 {vr(lane)}, 63, v0")
        V(f"v_readfirstlane_b32 {sr(sW)}, {vr(w)}")
        V(f"v_lshrrev_b32 {vr(g)}, 4, {vr(lane)}")
        V(f"v_and_b32 {vr(m)}, 15, {vr(lane)}")
        j, q, x, y = t[4], t[5], t[6], t[7]
        V(f"v_lshrrev_b32 {vr(j)}, 3, {vr(lane)}")
        V(f"v_and_b32 {vr(q)}, 7, {vr(lane)}")
        V(f"v_lshrrev_b32 {vr(x)}, 2, {vr(j)}")
        V(f"v_and_b32 {vr(y)}, 3, {vr(j)}")
        V(f"v_lshlrev_b32 {vr(x)}, 2, {vr(x)}")
        V(f"v_add_u32 {vr(x)}, {vr(x)}, {vr(y)}")
        V(f"v_mul_u32_u24 {vr(x)}, {2 * 832}, {vr(x)}")
        V(f"v_lshrrev_b32 {vr(y)}, 1, {vr(j)}")
        V(f"v_xor_b32 {vr(y)}, {vr(y)}, {vr(q)}")
        V(f"v_lshl_add_u32 {vr(DV)}, {vr(y)}, 4, {vr(x)}")
        V(f"v_lshlrev_b32 {vr(DU)}, 4, {vr(lane)}")
        XA = t[8]
        V(f"v_mul_u32_u24 {vr(XA)}, 832, {vr(m)}")
        V(f"v_lshl_add_u32 {vr(XA)}, {vr(g)}, 4, {vr(XA)}")
        S(f"s_and_b32 {sr(sT0)}, {sr(sW)}, 1")
        S(f"s_lshr_b32 {sr(sT1)}, {sr(sW)}, 1")
        S(f"s_mul_i32 {sr(sVb)}, {sr(sT0)}, {SLOT}")
        S(f"s_mul_i32 {sr(sT2)}, {sr(sT1)}, 1088")
        S(f"s_add_u32 {sr(sVb)}, {sr(sVb)}, {sr(sT2)}")
        S(f"s_mul_i32 {sr(sVs0)}, {sr(sT0)}, {832 + 64}")
        S(f"s_mul_i32 {sr(sT2)}, {sr(sT1)}, {16 * 832}")
        S(f"s_add_u32 {sr(sVs0)}, {sr(sVs0)}, {sr(sT2)}")
        S(f"s_add_u32 {sr(sVs0 + 1)}, {sr(sVs0)}, {32 * 832}")
        S(f"s_add_u32 {sr(sVs0 + 2)}, {sr(sVs0)}, {64 * 832}")
        S(f"s_mul_i32 {sr(sWAs)}, {sr(sW)}, {16 * 832}")
        S(f"s_mul_i32 {sr(sWAm)}, {sr(sT1)}, {SLOT}")
        S(f"s_mul_i32 {sr(sT2)}, {sr(sT0)}, 1088")
        S(f"s_add_u32 {sr(sWAm)}, {sr(sWAm)}, {sr(sT2)}")
        S(f"s_add_u32 {sr(sWAm)}, {sr(sWAm)}, {Z + 4032 - 768}")
        S(f"s_mul_i32 {sr(sWBs)}, {sr(sT0)}, {16 * 832}")
        S(f"s_add_u32 {sr(sWBs)}, {sr(sWBs)}, {64 * 832}")
        S(f"s_add_u32 {sr(sWBm)}, {sr(sT2)}, {Z + 2 * SLOT + 4032 - 768}")
        S(f"s_lshl_b32 {sr(sT3)}, {sr(sW)}, 10")
        S(f"s_add_u32 {sr(sT6m)}, {sr(sT3)}, {T6}")
        S(f"s_add_u32 {sr(sT6s)}, {sr(sT3)}, {96 * 832 + LSTR}")
        S(f"s_add_u32 {sr(sLm)}, {sr(sT3)}, 81920")
        S(f"s_lshl_b32 {sr(sUm)}, {sr(sW)}, 12")
        S(f"s_add_u32 {sr(sMXs)}, {sr(sT3)}, {96 * 832 + LSTR + 4096}")
        S(f"s_add_u32 {sr(sMXm)}, {sr(sT3)}, {T6 + 4096}")
        S(f"s_cmp_eq_u32 {sr(sW)}, 3")
        S(f"s_cselect_b32 {sr(sMXs)}, 86016, {sr(sMXs)}")
        S(f"s_cselect_b32 {sr(sMXm)}, 86016, {sr(sMXm)}")
        S(f"s_lshl_b32 {sr(sXo)}, s2, 2")
        S(f"s_add_u32 {sr(sXo)}, {sr(sXo)}, {sr(sW)}")
        S(f"s_mul_i32 {sr(sXo)}, {sr(sXo)}, {16 * 832}")
        S(f"s_mov_b32 {sr(sMask)}, 0")
        S(f"s_mov_b32 {sr(sMask + 1)}, -1")
        S(f"s_mov_b32 {sr(sCnt)}, {c.nlayers - 2}")
        S(f"s_min_u32 {sr(sT2)}, {sr(sW)}, 2")
        S(f"s_lshl_b32 {sr(sT2)}, {sr(sT2)}, 10")
        S(f"s_add_u32 {sr(sT0)}, {sr(sT3)}, {96 * 832}")
        S(f"s_add_u32 {sr(sT1)}, {sr(sT2)}, {96 * 832 + 4096}")
        S(f"s_add_u32 {sr(sT2)}, {sr(sT2)}, {T6 + 4096}")
        bh, bt, bg, bl = t[9], t[10], t[11], t[12]
        V(f"v_min_u32 {vr(w)}, 2, {vr(w)}") if False else None
        S(f"s_min_u32 {sr(sT3)}, {sr(sW)}, 2")
        V(f"v_lshrrev_b32 {vr(bh)}, 5, {vr(lane)}")
        V(f"v_and_b32 {vr(bt)}, 1, {vr(g)}")
        V(f"v_lshl_add_u32 {vr(bh)}, {sr(sT3)}, 1, {vr(bh)}")
        rho = t[13]
        V(f"v_lshrrev_b32 {vr(x)}, 2, {vr(m)}")
        V(f"v_and_b32 {vr(y)}, 3, {vr(m)}")
        V(f"v_lshlrev_b32 {vr(x)}, 2, {vr(x)}")
        V(f"v_add_u32 {vr(x)}, {vr(x)}, {vr(y)}")
        V(f"v_lshlrev_b32 {vr(rho)}, 1, {vr(x)}")
        V(f"v_add_u32 {vr(x)}, {vr(rho)}, {vr(bt)}")
        V(f"v_mul_u32_u24 {vr(bg)}, 832, {vr(bh)}")
        V(f"v_lshl_add_u32 {vr(bg)}, {vr(x)}, 1, {vr(bg)}")
        V(f"v_mul_u32_u24 {vr(bl)}, 336, {vr(bh)}")
        V(f"v_mul_u32_u24 {vr(x)}, 208, {vr(bt)}")
        V(f"v_add_u32 {vr(bl)}, {vr(bl)}, {vr(x)}")
        V(f"v_lshl_add_u32 {vr(bl)}, {vr(m)}, 3, {vr(bl)}")
        V(f"v_add_u32 {vr(bl)}, {Z}, {vr(bl)}")
        V(f"v_mul_u32_u24 {vr(x)}, 208, {vr(rho)}")
        V(f"v_lshl_add_u32 {vr(PU)}, {vr(g)}, 4, {vr(x)}")
        V(f"v_lshl_add_u32 {vr(x)}, {vr(g)}, 3, {vr(x)}")
        V(f"v_add_u32 {vr(x)}, 192, {vr(x)}")
        V(f"v_lshlrev_b32 {vr(y)}, 3, {vr(m)}")
        V(f"v_add_u32 {vr(y)}, {Z}, {vr(y)}")
        V(f"v_cndmask_b32_e64 {vr(PT)}, {vr(x)}, {vr(y)}, {sr(sMask, 2)}")
        V(f"v_mov_b32 {vr(x)}, {WIN}")
        V(f"v_mov_b32 {vr(y)}, 2016")
        V(f"v_cndmask_b32_e64 {vr(D1)}, {vr(x)}, {vr(y)}, {sr(sMask, 2)}")
        V(f"v_mov_b32 {vr(x)}, {(-WIN) & 0xFFFFFFFF}")
        V(f"v_mov_b32 {vr(y)}, {(-1680) & 0xFFFFFFFF}")
        V(f"v_cndmask_b32_e64 {vr(x)}, {vr(x)}, {vr(y)}, {sr(sMask, 2)}")
        V(f"v_accvgpr_write_b32 {ar(s.ST_D2)}, {vr(x)}")
        V(f"v_accvgpr_write_b32 {ar(s.ST_XA)}, {vr(XA)}")
        V(f"v_and_b32 {vr(x)}, 7, {vr(m)}")
        V(f"v_lshrrev_b32 {vr(y)}, 1, {vr(x)}")
        V(f"v_xor_b32 {vr(y)}, {vr(y)}, {vr(g)}")
        V(f"v_lshlrev_b32 {vr(y)}, 4, {vr(y)}")
        V(f"v_lshl_add_u32 {vr(y)}, {vr(x)}, 7, {vr(y)}")
        V(f"v_lshrrev_b32 {vr(x)}, 3, {vr(m)}")
        V(f"v_mul_u32_u24 {vr(x)}, 1088, {vr(x)}")
        V(f"v_add_u32 {vr(y)}, {vr(y)}, {vr(x)}")
        V(f"v_add_u32 {vr(PV)}, {WIN}, {vr(y)}")
        V(f"v_lshrrev_b32 {vr(x)}, 3, {vr(m)}")
        V(f"v_mul_u32_u24 {vr(x)}, 12, {vr(x)}")
        V(f"v_xor_b32 {vr(x)}, {vr(x)}, {vr(m)}")
        V(f"v_mul_u32_u24 {vr(x)}, 832, {vr(x)}")
        V(f"v_lshl_add_u32 {vr(x)}, {vr(g)}, 4, {vr(x)}")
        V(f"v_add_u32 {vr(PV6)}, {T6}, {vr(x)}")
        XAk, bgk, blk = XF + 8, XF + 9, XF + 10
        XAk, bgk, blk = TMP, t[27], t[26]
        V(f"v_mov_b32 {vr(XAk)}, {vr(XA)}")
        V(f"v_mov_b32 {vr(bgk)}, {vr(bg)}")
        V(f"v_mov_b32 {vr(blk)}, {vr(bl)}")
        for i in range(26):
            V(f"v_mov_b32 {vr(H0 + i)}, 0")
        S("s_waitcnt lgkmcnt(0)")
        if c.stamps:
            S(f"s_memtime s[62:63]")
        for base, n in ((S_X, 16384 * 832), (S_U, NL * LSTR), (S_V, NL * LSTR), (S_B, NL * 832), (S_O, 16384 * 832)):
            S(f"s_mov_b32 {sr(base + 2)}, {n}")
            S(f"s_mov_b32 {sr(base + 3)}, 0x20000")
        S(f"s_cmp_eq_u32 {sr(sW)}, 3")
        S(f"s_cselect_b32 {sr(S_M)}, {sr(S_U)}, {sr(S_V)}")
        S(f"s_cselect_b32 {sr(S_M + 1)}, {sr(S_U + 1)}, {sr(S_V + 1)}")
        S(f"s_mov_b32 {sr(S_M + 2)}, {NL * LSTR}")
        S(f"s_mov_b32 {sr(S_M + 3)}, 0x20000")

        def dma(g):
            for sc, v in s.dma_items(g):
                if sc is not None:
                    o.append(sc)
                    o.append(I("s_nop 0", "salu"))
                o.append(v)

        def xload(f):
            dst = xo(f, 0) if f < 10 else xbuf(f)
            o.append(I(f"buffer_load_dwordx4 {vr(dst, 4)}, {vr(XAk)}, {sr(S_X, 4)}, {sr(sXo)} offen offset:{64 * f}{c.xmod}", "vload", grp=f"X{f}"))

        def stamp(k):
            if c.stamps and c.stamps != "rt":
                S(f"s_memtime s[{80 + 2 * k}:{81 + 2 * k}]")
        stamp(0)
        dma("WA"); dma("WB"); dma("V0")
        S(f"s_mov_b32 m0, {sr(sT6m)}"); S("s_nop 0")
        o.append(I(f"buffer_load_dwordx4 {vr(DU)}, {sr(S_V, 4)}, {sr(sT0)} offen lds", "dma", grp="T6"))
        S(f"s_mov_b32 m0, {sr(sT2)}"); S("s_nop 0")
        o.append(I(f"buffer_load_dwordx4 {vr(DU)}, {sr(S_V, 4)}, {sr(sT1)} offen lds", "dma", grp="T6b"))
        xload(0); xload(1)
        for p in range(13):
            o.append(I(f"buffer_load_short_d16_hi {vr(H0 + 2 * p)}, {vr(bgk)}, {sr(S_B, 4)}, 0 offen offset:{64 * p}", "vload", grp="BI"))
        if c.pf_w:
            S(f"s_lshr_b32 {sr(sT3)}, s2, 3")
            S(f"s_and_b32 {sr(sT3)}, {sr(sT3)}, 31")
            S(f"s_mul_i32 {sr(sT3)}, {sr(sT3)}, {NL * LSTR // 32}")
            V(f"v_lshlrev_b32 {vr(1)}, 2, {vr(DU)}")
            S(f"s_lshl_b32 {sr(sCnt)}, {sr(sW)}, 12")
            S(f"s_add_u32 {sr(sT3)}, {sr(sT3)}, {sr(sCnt)}")
            S(f"s_mov_b32 {sr(sCnt)}, {c.nlayers - 2}")
            PFD = s.ST + 2
            o.append(I(f"buffer_load_dword {ar(PFD)}, {vr(1)}, {sr(S_V, 4)}, {sr(sT3)} offen", "vload", grp="PW"))
            o.append(I(f"buffer_load_dword {ar(PFD + 1)}, {vr(1)}, {sr(S_U, 4)}, {sr(sT3)} offen", "vload", grp="PW"))
        dma("V1"); xload(2); xload(3)
        dma("V2"); xload(4); xload(5)
        dma("V3"); xload(6); xload(7)
        dma("V4")
        for f in range(8, 13):
            xload(f)
        stamp(1)
        for i in range(104):
            V(f"v_mov_b32 {vr(C0 + i)}, 1.0")
        for e in range(6):
            V(f"v_accvgpr_write_b32 {ar(s.TR0 + 4 * e + 2)}, 0")
            V(f"v_accvgpr_write_b32 {ar(s.TR0 + 4 * e + 3)}, 0")
        stamp(2)
        w = I(None, "wait"); w.wait = dict(vm=["BI"], lg=False); o.append(w)
        stamp(3)
        if c.stamps:
            S("s_waitcnt lgkmcnt(0)")
        for p in range(13):
            imm = SLOT * (p % 7) + (2016 if p >= 7 else 0)
            o.append(I(f"ds_write_b64 {vr(blk)}, {vr(H0 + 2 * p, 2)} offset:{imm}", "dsw"))
        if c.stamps:
            S("s_waitcnt lgkmcnt(0)")
        stamp(4)
        w = I(None, "wait"); w.wait = dict(vm=["WA", "WB", "V0", "T6", "T6b", "X0"], lg=False, lg0=True); o.append(w)
        stamp(5)
        o.append(I("s_barrier", "barrier"))
        if c.stamps:
            S(f"s_memtime s[64:65]")
            if c.stamps == "rt":
                S(f"s_memrealtime s[80:81]")
            S("s_waitcnt lgkmcnt(0)")
        for T in range(c.LA):
            o.append(s.slot_desc(T, True)[1])
            if T == s.g1_slot_of(0, 5):
                o.append(I(f"v_subrev_u32 {vr(PV)}, {WIN}, {vr(PV)}", "valu"))
        w = I(None, "wait"); w.wait = dict(vm=[], lg=True); o.append(w)
        return o

    BI_R, BI_QA, BI_QB, BI_AD = 0, 8, 12, 16

    def prologue2(s):
        c = s.c
        o = []
        S = lambda t: o.append(I(t, "salu"))
        V = lambda t: o.append(I(t, "valu"))
        t = [H0 + i for i in range(28)]
        S(f"s_cmp_ge_u32 s2, 256")
        S(f"s_cbranch_scc1 L_end")
        S(f"s_load_dwordx2 {sr(S_X, 2)}, s[0:1], 0")
        S(f"s_load_dwordx2 {sr(S_V, 2)}, s[0:1], 16")
        S(f"s_load_dwordx2 {sr(S_U, 2)}, s[0:1], 8")
        S(f"s_load_dwordx2 {sr(S_B, 2)}, s[0:1], 24")
        S(f"s_load_dwordx2 {sr(S_O, 2)}, s[0:1], 32")
        if c.stamps:
            S(f"s_load_dwordx2 {sr(sDbg, 2)}, s[0:1], {40 if c.dbg else 48}")
            S(f"s_memtime s[60:61]")
            S(f"s_memrealtime s[70:71]")
        lane, w, g, m = t[0], t[1], t[2], t[3]
        V(f"v_lshrrev_b32 {vr(w)}, 6, v0")
        V(f"v_and_b32 {vr(lane)}, 63, v0")
        V(f"v_readfirstlane_b32 {sr(sW)}, {vr(w)}")
        if c.pf_code:
            S(f"s_getpc_b64 {sr(S_M, 2)}")
            o.append(I("L_pc:", "label"))
            S(f"s_mov_b32 {sr(S_M + 2)}, L_end-L_pc")
            S(f"s_mov_b32 {sr(S_M + 3)}, 0x20000")
            V(f"v_lshlrev_b32 {vr(t[20])}, 6, v0")
            o.append(I(f"buffer_load_dword {ar(s.ST + 4)}, {vr(t[20])}, {sr(S_M, 4)}, 0 offen", "vload", grp="PC"))
            if c.wvloop:
                V(f"v_add_u32 {vr(t[20])}, 16384, {vr(t[20])}")
                o.append(I(f"buffer_load_dword {ar(s.ST + 5)}, {vr(t[20])}, {sr(S_M, 4)}, 0 offen", "vload", grp="PC"))
        V(f"v_lshrrev_b32 {vr(g)}, 4, {vr(lane)}")
        V(f"v_and_b32 {vr(m)}, 15, {vr(lane)}")
        j, q, x, y = t[4], t[5], t[6], t[7]
        V(f"v_lshrrev_b32 {vr(j)}, 3, {vr(lane)}")
        V(f"v_and_b32 {vr(q)}, 7, {vr(lane)}")
        V(f"v_mul_u32_u24 {vr(x)}, {2 * 832}, {vr(j)}")
        V(f"v_lshrrev_b32 {vr(y)}, 1, {vr(j)}")
        V(f"v_xor_b32 {vr(y)}, {vr(y)}, {vr(q)}")
        V(f"v_lshl_add_u32 {vr(DV)}, {vr(y)}, 4, {vr(x)}")
        V(f"v_lshlrev_b32 {vr(DU)}, 4, {vr(lane)}")
        XA = TMP
        V(f"v_mul_u32_u24 {vr(XA)}, 832, {vr(m)}")
        V(f"v_lshl_add_u32 {vr(XA)}, {vr(g)}, 4, {vr(XA)}")
        S(f"s_and_b32 {sr(sT0)}, {sr(sW)}, 1")
        S(f"s_lshr_b32 {sr(sT1)}, {sr(sW)}, 1")
        S(f"s_mul_i32 {sr(sVb)}, {sr(sT0)}, {SLOT}")
        S(f"s_mul_i32 {sr(sT2)}, {sr(sT1)}, 1088")
        S(f"s_add_u32 {sr(sVb)}, {sr(sVb)}, {sr(sT2)}")
        S(f"s_mul_i32 {sr(sVs0)}, {sr(sT0)}, {832 + 64}")
        S(f"s_mul_i32 {sr(sT2)}, {sr(sT1)}, {16 * 832}")
        S(f"s_add_u32 {sr(sVs0)}, {sr(sVs0)}, {sr(sT2)}")
        S(f"s_add_u32 {sr(sVs0 + 1)}, {sr(sVs0)}, {32 * 832}")
        S(f"s_add_u32 {sr(sVs0 + 2)}, {sr(sVs0)}, {64 * 832}")
        S(f"s_mul_i32 {sr(sWAs)}, {sr(sW)}, {16 * 832}")
        S(f"s_mul_i32 {sr(sWAm)}, {sr(sT1)}, {SLOT}")
        S(f"s_mul_i32 {sr(sT2)}, {sr(sT0)}, 1088")
        S(f"s_add_u32 {sr(sWAm)}, {sr(sWAm)}, {sr(sT2)}")
        S(f"s_add_u32 {sr(sWAm)}, {sr(sWAm)}, {Z + 4032 - 768}")
        S(f"s_mul_i32 {sr(sWBs)}, {sr(sT0)}, {16 * 832}")
        S(f"s_add_u32 {sr(sWBs)}, {sr(sWBs)}, {64 * 832}")
        S(f"s_add_u32 {sr(sWBm)}, {sr(sT2)}, {Z + 2 * SLOT + 4032 - 768}")
        S(f"s_lshl_b32 {sr(sT3)}, {sr(sW)}, 10")
        S(f"s_add_u32 {sr(sT6m)}, {sr(sT3)}, {T6}")
        S(f"s_add_u32 {sr(sLm)}, {sr(sT3)}, 81920")
        S(f"s_add_u32 {sr(sT6s)}, {sr(sT3)}, {96 * 832 + LSTR}")
        S(f"s_add_u32 {sr(sMXs)}, {sr(sT3)}, {96 * 832 + LSTR + 4096}")
        S(f"s_add_u32 {sr(sMXm)}, {sr(sT3)}, {T6 + 4096}")
        S(f"s_add_u32 {sr(sT0)}, {sr(sT3)}, {96 * 832}")
        S(f"s_min_u32 {sr(sT2)}, {sr(sW)}, 2")
        S(f"s_lshl_b32 {sr(sT2)}, {sr(sT2)}, 10")
        S(f"s_add_u32 {sr(sT1)}, {sr(sT2)}, {96 * 832 + 4096}")
        S(f"s_add_u32 {sr(sT2)}, {sr(sT2)}, {T6 + 4096}")
        S(f"s_lshl_b32 {sr(sXo)}, s2, 2")
        S(f"s_add_u32 {sr(sXo)}, {sr(sXo)}, {sr(sW)}")
        S(f"s_mul_i32 {sr(sXo)}, {sr(sXo)}, {16 * 832}")
        for base, n in ((S_X, 16384 * 832), (S_V, NL * LSTR), (S_U, NL * LSTR), (S_B, NL * 832), (S_O, 16384 * 832)):
            S(f"s_mov_b32 {sr(base + 2)}, {n}")
            S(f"s_mov_b32 {sr(base + 3)}, 0x20000")
        S("s_waitcnt lgkmcnt(0)")
        if c.stamps:
            S(f"s_memtime s[62:63]")

        def stamp(k):
            if c.stamps and c.stamps != "rt":
                S(f"s_memtime s[{80 + 2 * k}:{81 + 2 * k}]")

        def dma(gname):
            for sc, v in s.dma_items(gname):
                if sc is not None:
                    o.append(sc)
                    o.append(I("s_nop 0", "salu"))
                o.append(v)

        def xload(f):
            dst = xo(f, 0) if f < 10 else xbuf(f)
            o.append(I(f"buffer_load_dwordx4 {vr(dst, 4)}, {vr(XA)}, {sr(S_X, 4)}, {sr(sXo)} offen offset:{64 * f}{c.xmod}", "vload", grp=f"X{f}"))

        stamp(0)
        dma("WA"); dma("WB"); dma("V0")
        S(f"s_mov_b32 m0, {sr(sT6m)}"); S("s_nop 0")
        o.append(I(f"buffer_load_dwordx4 {vr(DU)}, {sr(S_V, 4)}, {sr(sT0)} offen lds", "dma", grp="T6"))
        S(f"s_mov_b32 m0, {sr(sT2)}"); S("s_nop 0")
        o.append(I(f"buffer_load_dwordx4 {vr(DU)}, {sr(S_V, 4)}, {sr(sT1)} offen lds", "dma", grp="T6b"))
        xload(0); xload(1)

        def pfw():
            S(f"s_lshr_b32 {sr(sT3)}, s2, 3")
            S(f"s_and_b32 {sr(sT3)}, {sr(sT3)}, 31")
            S(f"s_mul_i32 {sr(sT3)}, {sr(sT3)}, {NL * LSTR // 32}")
            V(f"v_lshlrev_b32 {vr(t[21])}, 2, {vr(DU)}")
            S(f"s_lshl_b32 {sr(sT0)}, {sr(sW)}, 12")
            S(f"s_add_u32 {sr(sT3)}, {sr(sT3)}, {sr(sT0)}")
            PFD = s.ST + 2
            o.append(I(f"buffer_load_dword {ar(PFD)}, {vr(t[21])}, {sr(S_V, 4)}, {sr(sT3)} offen", "vload", grp="PW"))
            o.append(I(f"buffer_load_dword {ar(PFD + 1)}, {vr(t[21])}, {sr(S_U, 4)}, {sr(sT3)} offen", "vload", grp="PW"))
        bl, bm, bg = t[8], t[9], t[10]
        def biloads():
            V(f"v_lshrrev_b32 {vr(bl)}, 3, {vr(lane)}")
            V(f"v_min_u32 {vr(bl)}, 5, {vr(bl)}")
            V(f"v_and_b32 {vr(bm)}, 7, {vr(lane)}")
            V(f"v_mul_u32_u24 {vr(bg)}, 832, {vr(bl)}")
            V(f"v_lshl_add_u32 {vr(bg)}, {vr(bm)}, 3, {vr(bg)}")
            S(f"s_lshl_b32 {sr(sT0)}, {sr(sW)}, 6")
            for k in range(4):
                so = sr(sT0) if k < 3 else "0"
                o.append(I(f"buffer_load_dwordx2 {vr(s.BI_R + 2 * k, 2)}, {vr(bg)}, {sr(S_B, 4)}, {so} offen offset:{256 * k}", "vload", grp="BI"))
        if c.bi_early:
            biloads()
        if c.pf_w == 1:
            pfw()
        dma("V1"); xload(2); xload(3)
        dma("V2"); xload(4); xload(5)
        dma("V3"); xload(6); xload(7)
        dma("V4")
        for f in range(8, 13):
            xload(f)
        if c.pf_w == 2:
            pfw()
        if not c.bi_early:
            biloads()
        stamp(1)
        V(f"v_mul_u32_u24 {vr(bl)}, 336, {vr(bl)}")
        V(f"v_lshl_add_u32 {vr(bl)}, {vr(bm)}, 4, {vr(bl)}")
        V(f"v_add_u32 {vr(bl)}, {Z}, {vr(bl)}")
        S(f"s_mul_i32 {sr(sT0)}, {sr(sW)}, {SLOT}")
        V(f"v_add_u32 {vr(s.BI_AD)}, {sr(sT0)}, {vr(bl)}")
        S(f"s_add_u32 {sr(sT1)}, {sr(sT0)}, {4 * SLOT}")
        S(f"s_cmp_eq_u32 {sr(sW)}, 3")
        S(f"s_cselect_b32 {sr(sT1)}, 2016, {sr(sT1)}")
        V(f"v_add_u32 {vr(s.BI_AD + 1)}, {sr(sT1)}, {vr(bl)}")
        S(f"s_add_u32 {sr(sT1)}, {sr(sT0)}, {SLOT + 2016}")
        V(f"v_add_u32 {vr(s.BI_AD + 2)}, {sr(sT1)}, {vr(bl)}")
        V(f"v_add_u32 {vr(s.BI_AD + 3)}, {5 * SLOT + 2016}, {vr(bl)}")
        for r in (s.BI_QA + 1, s.BI_QA + 3, s.BI_QB + 1, s.BI_QB + 3):
            V(f"v_mov_b32 {vr(r)}, 0")
        S(f"s_lshl_b32 {sr(sUm)}, {sr(sW)}, 12")
        S(f"s_cmp_eq_u32 {sr(sW)}, 3")
        S(f"s_cselect_b32 {sr(sMXs)}, 86016, {sr(sMXs)}")
        S(f"s_cselect_b32 {sr(sMXm)}, 86016, {sr(sMXm)}")
        S(f"s_cselect_b32 {sr(S_M)}, {sr(S_U)}, {sr(S_V)}")
        S(f"s_cselect_b32 {sr(S_M + 1)}, {sr(S_U + 1)}, {sr(S_V + 1)}")
        S(f"s_mov_b32 {sr(S_M + 2)}, {NL * LSTR}")
        S(f"s_mov_b32 {sr(S_M + 3)}, 0x20000")
        S(f"s_mov_b32 {sr(sMask)}, 0")
        S(f"s_mov_b32 {sr(sMask + 1)}, -1")
        S(f"s_mov_b32 {sr(sCnt)}, {c.nlayers - 2}")
        rho = t[13]
        V(f"v_lshrrev_b32 {vr(x)}, 2, {vr(m)}")
        V(f"v_and_b32 {vr(y)}, 3, {vr(m)}")
        V(f"v_lshlrev_b32 {vr(x)}, 2, {vr(x)}")
        V(f"v_add_u32 {vr(x)}, {vr(x)}, {vr(y)}")
        V(f"v_lshlrev_b32 {vr(rho)}, 1, {vr(x)}")
        V(f"v_and_b32 {vr(x)}, 7, {vr(m)}")
        V(f"v_lshrrev_b32 {vr(y)}, 1, {vr(x)}")
        V(f"v_xor_b32 {vr(y)}, {vr(y)}, {vr(g)}")
        V(f"v_lshlrev_b32 {vr(y)}, 4, {vr(y)}")
        V(f"v_lshl_add_u32 {vr(y)}, {vr(x)}, 7, {vr(y)}")
        V(f"v_lshrrev_b32 {vr(x)}, 3, {vr(m)}")
        V(f"v_mul_u32_u24 {vr(x)}, 1088, {vr(x)}")
        V(f"v_add_u32 {vr(y)}, {vr(y)}, {vr(x)}")
        V(f"v_add_u32 {vr(PV)}, {WIN}, {vr(y)}")
        V(f"v_lshrrev_b32 {vr(x)}, 3, {vr(m)}")
        V(f"v_mul_u32_u24 {vr(x)}, 12, {vr(x)}")
        V(f"v_xor_b32 {vr(x)}, {vr(x)}, {vr(m)}")
        V(f"v_mul_u32_u24 {vr(x)}, 832, {vr(x)}")
        V(f"v_lshl_add_u32 {vr(x)}, {vr(g)}, 4, {vr(x)}")
        V(f"v_add_u32 {vr(PV6)}, {T6}, {vr(x)}")
        V(f"v_mul_u32_u24 {vr(x)}, 208, {vr(rho)}")
        V(f"v_lshl_add_u32 {vr(PU)}, {vr(g)}, 4, {vr(x)}")
        V(f"v_lshl_add_u32 {vr(x)}, {vr(g)}, 3, {vr(x)}")
        V(f"v_add_u32 {vr(x)}, 192, {vr(x)}")
        V(f"v_lshlrev_b32 {vr(y)}, 3, {vr(m)}")
        V(f"v_add_u32 {vr(y)}, {Z}, {vr(y)}")
        V(f"v_cndmask_b32_e64 {vr(PT)}, {vr(x)}, {vr(y)}, {sr(sMask, 2)}")
        V(f"v_mov_b32 {vr(x)}, {WIN}")
        V(f"v_mov_b32 {vr(y)}, 2016")
        V(f"v_cndmask_b32_e64 {vr(D1)}, {vr(x)}, {vr(y)}, {sr(sMask, 2)}")
        V(f"v_mov_b32 {vr(x)}, {(-WIN) & 0xFFFFFFFF}")
        V(f"v_mov_b32 {vr(y)}, {(-1680) & 0xFFFFFFFF}")
        V(f"v_cndmask_b32_e64 {vr(x)}, {vr(x)}, {vr(y)}, {sr(sMask, 2)}")
        V(f"v_accvgpr_write_b32 {ar(s.ST_D2)}, {vr(x)}")
        V(f"v_accvgpr_write_b32 {ar(s.ST_XA)}, {vr(XA)}")
        for e in range(6):
            V(f"v_accvgpr_write_b32 {ar(s.TR0 + 4 * e + 2)}, 0")
            V(f"v_accvgpr_write_b32 {ar(s.TR0 + 4 * e + 3)}, 0")
        for i in range(20, 104):
            V(f"v_mov_b32 {vr(C0 + i)}, 1.0")
        stamp(2)
        w_ = I(None, "wait"); w_.wait = dict(vm=["WA", "WB", "V0", "T6", "T6b", "X0"], lg=False); o.append(w_)
        stamp(3)
        if c.stamps and c.stamps != "rt":
            S("s_waitcnt lgkmcnt(0)")
        o.append(I("s_barrier", "barrier"))
        if c.stamps:
            S(f"s_memtime s[64:65]")
            if c.stamps == "rt":
                S(f"s_memrealtime s[80:81]")
            S("s_waitcnt lgkmcnt(0)")
        for T in range(c.LA):
            o.append(s.slot_desc(T, True)[1])
            if T == s.g1_slot_of(0, 5):
                o.append(I(f"v_subrev_u32 {vr(PV)}, {WIN}, {vr(PV)}", "valu"))
        w_ = I(None, "wait"); w_.wait = dict(vm=[], lg=True); o.append(w_)
        return o

    def prologue3(s):
        c = s.c
        o = []
        cur = [o]
        S = lambda t: cur[0].append(I(t, "salu"))
        V = lambda t: cur[0].append(I(t, "valu"))
        t = [H0 + i for i in range(28)]
        sP = list(range(92, 100))
        if not c._hdr:
            S(f"s_cmp_ge_u32 s2, 256")
            S(f"s_cbranch_scc1 L_end")
        S(f"s_load_dwordx2 {sr(S_V, 2)}, s[0:1], 16")
        S(f"s_load_dwordx2 {sr(S_X, 2)}, s[0:1], 0")
        S(f"s_load_dwordx2 {sr(S_U, 2)}, s[0:1], 8")
        S(f"s_load_dwordx2 {sr(S_B, 2)}, s[0:1], 24")
        S(f"s_load_dwordx2 {sr(S_O, 2)}, s[0:1], 32")
        if c.keep and not c.stamps:
            S(f"s_load_dwordx2 {sr(sDbg, 2)}, s[0:1], 48")
        if c.stamps:
            S(f"s_load_dwordx2 {sr(sDbg, 2)}, s[0:1], {40 if c.dbg else 48}")
            S(f"s_memtime s[60:61]")
            S(f"s_memrealtime s[70:71]")
        lane, w, g, m = t[0], t[1], t[2], t[3]
        V(f"v_lshrrev_b32 {vr(w)}, 6, v0")
        V(f"v_and_b32 {vr(lane)}, 63, v0")
        V(f"v_readfirstlane_b32 {sr(sW)}, {vr(w)}")
        if c.pf_code:
            if not c._hdr:
                S(f"s_getpc_b64 {sr(S_M, 2)}")
                o.append(I("L_pc:", "label"))
            S(f"s_mov_b32 {sr(S_M + 2)}, {'L_fin' if c._hdr else 'L_end'}-L_pc")
            S(f"s_mov_b32 {sr(S_M + 3)}, 0x20000")
            if c.pf_slice:
                pfl = -(-c.pf_bytes // (c.pf_slice * 256))
                assert pfl <= 31
                S(f"s_lshr_b32 s4, s2, 3")
                S(f"s_and_b32 s4, s4, {c.pf_slice - 1}")
                S(f"s_lshl_b32 s4, s4, 2")
                S(f"s_add_u32 s4, s4, {sr(sW)}")
                S(f"s_mul_i32 s4, s4, {64 * pfl}")
                V(f"v_lshlrev_b32 {vr(t[20])}, 6, {vr(lane)}")
                S(f"s_mov_b64 exec, {hex((1 << pfl) - 1)}")
                o.append(I(f"buffer_load_dword {ar(s.ST + 4)}, {vr(t[20])}, {sr(S_M, 4)}, s4 offen", "vload", grp="PC"))
                S(f"s_mov_b64 exec, -1")
            else:
                V(f"v_lshlrev_b32 {vr(t[20])}, 6, v0")
                o.append(I(f"buffer_load_dword {ar(s.ST + 4)}, {vr(t[20])}, {sr(S_M, 4)}, 0 offen", "vload", grp="PC"))
                for k in range(1, c.pf_code):
                    V(f"v_add_u32 {vr(t[20])}, 16384, {vr(t[20])}")
                    o.append(I(f"buffer_load_dword {ar(s.ST + 4 + k)}, {vr(t[20])}, {sr(S_M, 4)}, 0 offen", "vload", grp="PC"))
        V(f"v_lshrrev_b32 {vr(g)}, 4, {vr(lane)}")
        V(f"v_and_b32 {vr(m)}, 15, {vr(lane)}")
        j, q, x, y = t[4], t[5], t[6], t[7]
        V(f"v_lshrrev_b32 {vr(j)}, 3, {vr(lane)}")
        V(f"v_and_b32 {vr(q)}, 7, {vr(lane)}")
        V(f"v_mul_u32_u24 {vr(x)}, {2 * 832}, {vr(j)}")
        V(f"v_lshrrev_b32 {vr(y)}, 1, {vr(j)}")
        V(f"v_xor_b32 {vr(y)}, {vr(y)}, {vr(q)}")
        V(f"v_lshl_add_u32 {vr(DV)}, {vr(y)}, 4, {vr(x)}")
        V(f"v_lshlrev_b32 {vr(DU)}, 4, {vr(lane)}")
        XA = TMP
        V(f"v_mul_u32_u24 {vr(XA)}, 832, {vr(m)}")
        V(f"v_lshl_add_u32 {vr(XA)}, {vr(g)}, 4, {vr(XA)}")
        bl, bm, bg = t[8], t[9], t[10]
        V(f"v_min_u32 {vr(bl)}, 5, {vr(j)}")
        V(f"v_mul_u32_u24 {vr(bg)}, 832, {vr(bl)}")
        V(f"v_lshl_add_u32 {vr(bg)}, {vr(q)}, 3, {vr(bg)}")
        V(f"v_lshlrev_b32 {vr(t[21])}, 2, {vr(DU)}")
        V(f"v_mul_u32_u24 {vr(t[22])}, 373, {vr(lane)}")
        V(f"v_lshrrev_b32 {vr(t[22])}, 12, {vr(t[22])}")
        V(f"v_mul_u32_u24 {vr(t[23])}, 11, {vr(t[22])}")
        V(f"v_sub_u32 {vr(t[23])}, {vr(lane)}, {vr(t[23])}")
        V(f"v_mul_u32_u24 {vr(t[22])}, {LSTR}, {vr(t[22])}")
        V(f"v_lshl_add_u32 {vr(t[22])}, {vr(t[23])}, 6, {vr(t[22])}")
        S(f"s_and_b32 {sr(sT0)}, {sr(sW)}, 1")
        S(f"s_lshr_b32 {sr(sT1)}, {sr(sW)}, 1")
        S(f"s_mul_i32 {sr(sVb)}, {sr(sT0)}, {SLOT}")
        S(f"s_mul_i32 {sr(sT2)}, {sr(sT1)}, 1088")
        S(f"s_add_u32 {sr(sVb)}, {sr(sVb)}, {sr(sT2)}")
        S(f"s_mul_i32 {sr(sVs0)}, {sr(sT0)}, {832 + 64}")
        S(f"s_mul_i32 {sr(sT2)}, {sr(sT1)}, {16 * 832}")
        S(f"s_add_u32 {sr(sVs0)}, {sr(sVs0)}, {sr(sT2)}")
        S(f"s_add_u32 {sr(sVs0 + 1)}, {sr(sVs0)}, {32 * 832}")
        S(f"s_add_u32 {sr(sVs0 + 2)}, {sr(sVs0)}, {64 * 832}")
        S(f"s_mul_i32 {sr(sWAs)}, {sr(sW)}, {16 * 832}")
        S(f"s_mul_i32 {sr(sWAm)}, {sr(sT1)}, {SLOT}")
        S(f"s_mul_i32 {sr(sT2)}, {sr(sT0)}, 1088")
        S(f"s_add_u32 {sr(sWAm)}, {sr(sWAm)}, {sr(sT2)}")
        S(f"s_add_u32 {sr(sWAm)}, {sr(sWAm)}, {Z + 4032 - 768}")
        S(f"s_mul_i32 {sr(sWBs)}, {sr(sT0)}, {16 * 832}")
        S(f"s_add_u32 {sr(sWBs)}, {sr(sWBs)}, {64 * 832}")
        S(f"s_add_u32 {sr(sWBm)}, {sr(sT2)}, {Z + 2 * SLOT + 4032 - 768}")
        S(f"s_lshl_b32 {sr(sT3)}, {sr(sW)}, 10")
        S(f"s_add_u32 {sr(sT6m)}, {sr(sT3)}, {T6}")
        S(f"s_add_u32 {sr(sLm)}, {sr(sT3)}, 81920")
        S(f"s_add_u32 {sr(sT6s)}, {sr(sT3)}, {96 * 832 + LSTR}")
        S(f"s_add_u32 {sr(sMXs)}, {sr(sT3)}, {96 * 832 + LSTR + 4096}")
        S(f"s_add_u32 {sr(sMXm)}, {sr(sT3)}, {T6 + 4096}")
        S(f"s_add_u32 {sr(sP[0])}, {sr(sT3)}, {96 * 832}")
        S(f"s_min_u32 {sr(sP[2])}, {sr(sW)}, 2")
        S(f"s_lshl_b32 {sr(sP[2])}, {sr(sP[2])}, 10")
        S(f"s_add_u32 {sr(sP[1])}, {sr(sP[2])}, {96 * 832 + 4096}")
        S(f"s_add_u32 {sr(sP[2])}, {sr(sP[2])}, {T6 + 4096}")
        S(f"s_lshl_b32 {sr(sXo)}, s2, 2")
        S(f"s_add_u32 {sr(sXo)}, {sr(sXo)}, {sr(sW)}")
        S(f"s_mul_i32 {sr(sXo)}, {sr(sXo)}, {16 * 832}")
        S(f"s_lshl_b32 {sr(sP[3])}, {sr(sW)}, 6")
        S(f"s_lshr_b32 {sr(sP[4])}, s2, 3")
        S(f"s_and_b32 {sr(sP[4])}, {sr(sP[4])}, 31")
        S(f"s_mul_i32 {sr(sP[4])}, {sr(sP[4])}, {NL * LSTR // 32}")
        S(f"s_lshl_b32 {sr(sP[5])}, {sr(sW)}, 12")
        S(f"s_add_u32 {sr(sP[4])}, {sr(sP[4])}, {sr(sP[5])}")
        S(f"s_lshr_b32 {sr(sP[6])}, s2, 3")
        S(f"s_and_b32 {sr(sP[6])}, {sr(sP[6])}, 31")
        S(f"s_mul_i32 {sr(sP[6])}, {sr(sP[6])}, {LSTR // 32}")
        S(f"s_mul_i32 {sr(sP[5])}, {sr(sW)}, {LSTR // 128}")
        S(f"s_add_u32 {sr(sP[6])}, {sr(sP[6])}, {sr(sP[5])}")
        S(f"s_lshr_b32 s4, s2, 3")
        S(f"s_and_b32 s4, s4, 31")
        S(f"s_lshl_b32 s4, s4, 2")
        S(f"s_add_u32 s4, s4, {sr(sW)}")
        S(f"s_mul_i32 s4, s4, {LSTR // 128}")
        S(f"s_and_b32 s4, s4, 0xffffffc0")
        S(f"s_add_u32 s5, s4, {LSTR}")
        S(f"s_add_u32 s6, s4, {2 * LSTR}")
        if c.keep:
            S(f"s_lshl_b32 s7, s2, 2")
            S(f"s_add_u32 s7, s7, {sr(sW)}")
            S(f"s_lshl_b32 s7, s7, 7")
            S(f"s_add_u32 s7, s7, 0x10000")
            S(f"s_mov_b32 {sr(sDbg + 2)}, 0x8000000")
            S(f"s_mov_b32 {sr(sDbg + 3)}, 0x20000")
        for base, n in ((S_V, NL * LSTR), (S_X, 16384 * 832), (S_U, NL * LSTR), (S_B, NL * 832), (S_O, 16384 * 832)):
            S(f"s_mov_b32 {sr(base + 2)}, {n}")
            S(f"s_mov_b32 {sr(base + 3)}, 0x20000")
        S("s_waitcnt lgkmcnt(0)")
        if c.stamps:
            S(f"s_memtime s[62:63]")

        def stamp(k):
            if c.stamps and c.stamps != "rt":
                S(f"s_memtime s[{80 + 2 * k}:{81 + 2 * k}]")

        s._dm = c.dmamod0 if c.dmamod0 is not None else c.dmamod
        items = []
        M0 = lambda txt: [I(txt, "salu"), I("s_nop 0", "salu")]
        for tok in c.p3order.split():
            if tok == "T6":
                items.append(M0(f"s_mov_b32 m0, {sr(sT6m)}") + [I(f"buffer_load_dwordx4 {vr(DU)}, {sr(S_V, 4)}, {sr(sP[0])} offen{s._dm} lds", "dma", grp="T6")])
            elif tok == "T6b":
                items.append(M0(f"s_mov_b32 m0, {sr(sP[2])}") + [I(f"buffer_load_dwordx4 {vr(DU)}, {sr(S_V, 4)}, {sr(sP[1])} offen{s._dm} lds", "dma", grp="T6b")])
            elif tok[0] == "X":
                f = int(tok[1:])
                dst = xo(f, 0) if f < 10 else xbuf(f)
                items.append([I(f"buffer_load_dwordx4 {vr(dst, 4)}, {vr(XA)}, {sr(S_X, 4)}, {sr(sXo)} offen offset:{64 * f}{c.xmod}", "vload", grp=f"X{f}")])
            elif tok == "BI":
                for k in range(4):
                    so = sr(sP[3]) if k < 3 else "0"
                    items.append([I(f"buffer_load_dwordx2 {vr(s.BI_R + 2 * k, 2)}, {vr(bg)}, {sr(S_B, 4)}, {so} offen offset:{256 * k}", "vload", grp="BI")])
            elif tok == "PW":
                if c.pf_w:
                    PFD = s.ST + 2
                    items.append([I(f"buffer_load_dword {ar(PFD)}, {vr(t[21])}, {sr(S_V, 4)}, {sr(sP[4])} offen{c.pmod}", "vload", grp="PW")])
                    items.append([I(f"buffer_load_dword {ar(PFD + 1)}, {vr(t[21])}, {sr(S_U, 4)}, {sr(sP[4])} offen{c.pmod}", "vload", grp="PW")])
            elif tok[0] == "Q":
                ly = int(tok[1]); srd = S_V if tok[2] == "V" else S_U
                items.append([I(f"buffer_load_dword {ar(s.ST + 2 + 2 * ly + (tok[2] == 'U'))}, {vr(DU)}, {sr(srd, 4)}, s{4 + ly} offen{c.pmod}", "vload", grp="PW")])
            elif tok[:2] == "P0":
                nl = int(tok[3:] or 1)
                srd = S_V if tok[2] == "V" else S_U
                items.append([I(f"s_mov_b64 exec, {hex((1 << (11 * nl)) - 1)}", "salu"),
                              I(f"buffer_load_dword {ar(s.ST + (2 if tok[2] == 'V' else 3))}, {vr(t[22])}, {sr(srd, 4)}, {sr(sP[6])} offen{c.pmod}", "vload", grp="PW"),
                              I(f"s_mov_b64 exec, -1", "salu")])
            else:
                for sc, v in s.dma_items(tok):
                    items.append((M0(sc.txt) if sc is not None else []) + [v])
        fill = []
        cur[0] = fill
        V(f"v_mul_u32_u24 {vr(bl)}, 336, {vr(bl)}")
        V(f"v_lshl_add_u32 {vr(bl)}, {vr(q)}, 4, {vr(bl)}")
        V(f"v_add_u32 {vr(bl)}, {Z}, {vr(bl)}")
        S(f"s_mul_i32 {sr(sT0)}, {sr(sW)}, {SLOT}")
        V(f"v_add_u32 {vr(s.BI_AD)}, {sr(sT0)}, {vr(bl)}")
        S(f"s_add_u32 {sr(sT1)}, {sr(sT0)}, {4 * SLOT}")
        S(f"s_cmp_eq_u32 {sr(sW)}, 3")
        S(f"s_cselect_b32 {sr(sT1)}, 2016, {sr(sT1)}")
        V(f"v_add_u32 {vr(s.BI_AD + 1)}, {sr(sT1)}, {vr(bl)}")
        S(f"s_add_u32 {sr(sT1)}, {sr(sT0)}, {SLOT + 2016}")
        V(f"v_add_u32 {vr(s.BI_AD + 2)}, {sr(sT1)}, {vr(bl)}")
        V(f"v_add_u32 {vr(s.BI_AD + 3)}, {5 * SLOT + 2016}, {vr(bl)}")
        for r in (s.BI_QA + 1, s.BI_QA + 3, s.BI_QB + 1, s.BI_QB + 3):
            V(f"v_mov_b32 {vr(r)}, 0")
        S(f"s_lshl_b32 {sr(sUm)}, {sr(sW)}, 12")
        S(f"s_cmp_eq_u32 {sr(sW)}, 3")
        S(f"s_cselect_b32 {sr(sMXs)}, 86016, {sr(sMXs)}")
        S(f"s_cselect_b32 {sr(sMXm)}, 86016, {sr(sMXm)}")
        S(f"s_cselect_b32 {sr(S_M)}, {sr(S_U)}, {sr(S_V)}")
        S(f"s_cselect_b32 {sr(S_M + 1)}, {sr(S_U + 1)}, {sr(S_V + 1)}")
        S(f"s_mov_b32 {sr(S_M + 2)}, {NL * LSTR}")
        S(f"s_mov_b32 {sr(S_M + 3)}, 0x20000")
        S(f"s_mov_b32 {sr(sMask)}, 0")
        S(f"s_mov_b32 {sr(sMask + 1)}, -1")
        S(f"s_mov_b32 {sr(sCnt)}, {c.nlayers - 2}")
        rho = t[13]
        V(f"v_lshrrev_b32 {vr(x)}, 2, {vr(m)}")
        V(f"v_and_b32 {vr(y)}, 3, {vr(m)}")
        V(f"v_lshlrev_b32 {vr(x)}, 2, {vr(x)}")
        V(f"v_add_u32 {vr(x)}, {vr(x)}, {vr(y)}")
        V(f"v_lshlrev_b32 {vr(rho)}, 1, {vr(x)}")
        V(f"v_and_b32 {vr(x)}, 7, {vr(m)}")
        V(f"v_lshrrev_b32 {vr(y)}, 1, {vr(x)}")
        V(f"v_xor_b32 {vr(y)}, {vr(y)}, {vr(g)}")
        V(f"v_lshlrev_b32 {vr(y)}, 4, {vr(y)}")
        V(f"v_lshl_add_u32 {vr(y)}, {vr(x)}, 7, {vr(y)}")
        V(f"v_lshrrev_b32 {vr(x)}, 3, {vr(m)}")
        V(f"v_mul_u32_u24 {vr(x)}, 1088, {vr(x)}")
        V(f"v_add_u32 {vr(y)}, {vr(y)}, {vr(x)}")
        V(f"v_add_u32 {vr(PV)}, {WIN}, {vr(y)}")
        V(f"v_lshrrev_b32 {vr(x)}, 3, {vr(m)}")
        V(f"v_mul_u32_u24 {vr(x)}, 12, {vr(x)}")
        V(f"v_xor_b32 {vr(x)}, {vr(x)}, {vr(m)}")
        V(f"v_mul_u32_u24 {vr(x)}, 832, {vr(x)}")
        V(f"v_lshl_add_u32 {vr(x)}, {vr(g)}, 4, {vr(x)}")
        V(f"v_add_u32 {vr(PV6)}, {T6}, {vr(x)}")
        if c.zrow:
            V(f"v_add_u32 {vr(x)}, 2, {vr(g)}")
            V(f"v_and_b32 {vr(x)}, 3, {vr(x)}")
            V(f"v_lshlrev_b32 {vr(x)}, 4, {vr(x)}")
            V(f"v_add_u32 {vr(x)}, {ZR}, {vr(x)}")
            V(f"v_cmp_gt_u32 vcc, 8, {vr(m)}")
            V(f"v_lshlrev_b32 {vr(y)}, 2, {vr(lane)}")
            S(f"s_lshl_b32 {sr(sT0)}, {sr(sW)}, 8")
            V(f"v_cndmask_b32 {vr(PV6)}, {vr(x)}, {vr(PV6)}, vcc")
            S(f"s_add_u32 {sr(sT0)}, {sr(sT0)}, {ZR}")
            V(f"v_mov_b32 {vr(x)}, 0")
            V(f"v_add_u32 {vr(y)}, {sr(sT0)}, {vr(y)}")
            cur[0].append(I(f"ds_write_b32 {vr(y)}, {vr(x)}", "dsw"))
        V(f"v_mul_u32_u24 {vr(x)}, 208, {vr(rho)}")
        V(f"v_lshl_add_u32 {vr(PU)}, {vr(g)}, 4, {vr(x)}")
        V(f"v_lshl_add_u32 {vr(x)}, {vr(g)}, 3, {vr(x)}")
        V(f"v_add_u32 {vr(x)}, 192, {vr(x)}")
        V(f"v_lshlrev_b32 {vr(y)}, 3, {vr(m)}")
        V(f"v_add_u32 {vr(y)}, {Z}, {vr(y)}")
        V(f"v_cndmask_b32_e64 {vr(PT)}, {vr(x)}, {vr(y)}, {sr(sMask, 2)}")
        V(f"v_mov_b32 {vr(x)}, {WIN}")
        V(f"v_mov_b32 {vr(y)}, 2016")
        V(f"v_cndmask_b32_e64 {vr(D1)}, {vr(x)}, {vr(y)}, {sr(sMask, 2)}")
        V(f"v_mov_b32 {vr(x)}, {(-WIN) & 0xFFFFFFFF}")
        V(f"v_mov_b32 {vr(y)}, {(-1680) & 0xFFFFFFFF}")
        V(f"v_cndmask_b32_e64 {vr(x)}, {vr(x)}, {vr(y)}, {sr(sMask, 2)}")
        V(f"v_accvgpr_write_b32 {ar(s.ST_D2)}, {vr(x)}")
        if c.smix:
            S(f"s_mul_i32 {sr(sT0)}, {sr(sW)}, 6144")
            S(f"s_add_u32 {sr(sT0)}, {sr(sT0)}, 139264")
            V(f"v_lshlrev_b32 {vr(y)}, 4, {vr(lane)}")
            V(f"v_add_u32 {vr(y)}, {sr(sT0)}, {vr(y)}")
            V(f"v_accvgpr_write_b32 a88, {vr(y)}")
        if c.stpat == "oct":
            V(f"v_mul_u32_u24 {vr(x)}, 1664, {vr(j)}")
            V(f"v_lshl_add_u32 {vr(x)}, {vr(q)}, 4, {vr(x)}")
            V(f"v_accvgpr_write_b32 {ar(s.ST_XA)}, {vr(x)}")
        else:
            V(f"v_accvgpr_write_b32 {ar(s.ST_XA)}, {vr(XA)}")
        for e in range(0 if c.tail16 else 2 * c.ntr):
            V(f"v_accvgpr_write_b32 {ar(s.TR0 + 4 * e + 2)}, 0")
            V(f"v_accvgpr_write_b32 {ar(s.TR0 + 4 * e + 3)}, 0")
        for i in range(20, 104):
            V(f"v_mov_b32 {vr(C0 + i)}, 1.0")
        cur[0] = o
        stamp(0)
        k = 0
        for n, it in enumerate(items):
            o.extend(it)
            if n + 1 >= c.p3start:
                o.extend(fill[k:k + c.p3k]); k += c.p3k
        stamp(1)
        o.extend(fill[k:])
        if c.pw1:
            V(f"v_add_u32 {vr(TMP)}, {LSTR}, {vr(t[22])}")
        stamp(2)
        if not c.bias_in:
            w_ = I(None, "wait"); w_.wait = dict(vm=["BI"], lg=False); o.append(w_)
            o.extend(s.bias_ops())
        stamp(3)
        w_ = I(None, "wait"); w_.wait = dict(vm=["WA", "WB", "V0", "T6", "T6b", "X0"] + [f"X{f}" for f in range(1, c.x0wait + 1)], lg=False, lg0=True); o.append(w_)
        stamp(4)
        o.append(I("s_barrier", "barrier"))
        if c.delayb:
            S(f"s_mov_b32 s69, {c.delayb}")
            o.append(I("L_dlyb:", "label"))
            for _ in range(8):
                S("s_nop 0")
            S("s_sub_u32 s69, s69, 1")
            S("s_cmp_lg_u32 s69, 0")
            S("s_cbranch_scc1 L_dlyb")
        if c.stamps:
            S(f"s_memtime s[64:65]")
            if c.stamps == "rt":
                S(f"s_memrealtime s[80:81]")
            S("s_waitcnt lgkmcnt(0)")
        for T in range(c.LA):
            o.append(s.slot_desc(T, True)[1])
            if T == s.g1_slot_of(0, 5):
                o.append(I(f"v_subrev_u32 {vr(PV)}, {WIN}, {vr(PV)}", "valu"))
        w_ = I(None, "wait"); w_.wait = dict(vm=[], lg=True); o.append(w_)
        return o

    def bias_ops(s):
        o = []
        for k in range(4):
            r = s.BI_R + 2 * k; A_, B_ = s.BI_QA, s.BI_QB; ad = s.BI_AD + k
            o.append(I(f"v_lshlrev_b32 {vr(A_)}, 16, {vr(r)}", "valu"))
            o.append(I(f"v_lshlrev_b32 {vr(A_ + 2)}, 16, {vr(r + 1)}", "valu"))
            o.append(I(f"v_and_b32 {vr(B_)}, 0xffff0000, {vr(r)}", "valu"))
            o.append(I(f"v_and_b32 {vr(B_ + 2)}, 0xffff0000, {vr(r + 1)}", "valu"))
            o.append(I(f"ds_write_b128 {vr(ad)}, {vr(A_, 4)}", "dsw"))
            o.append(I(f"ds_write_b128 {vr(ad)}, {vr(B_, 4)} offset:208", "dsw"))
        for i in range(20):
            o.append(I(f"v_mov_b32 {vr(C0 + i)}, 1.0", "valu"))
        return o

    def resolve(s, trace, res=None, final=True):
        if res is None:
            res = {}
        vm_idx = []
        lastgrp = {}
        nvm = 0
        nds = 0
        areg_ds = {}
        inst = []
        for pos, x in enumerate(trace):
            if x.kind in ("dma", "vload", "store"):
                nvm += 1
                if x.grp:
                    lastgrp[x.grp] = nvm
            elif x.kind in ("dsr", "dsw"):
                if x.kind == "dsr":
                    areg_ds[x.areg] = nds
                nds += 1
            elif x.kind == "wait":
                vmN = None
                if x.wait["vm"]:
                    need = 0
                    for g in x.wait["vm"]:
                        if g not in lastgrp:
                            continue
                        need = max(need, lastgrp[g])
                    vmN = nvm - need
                inst.append((pos, x, vmN, nds))
            elif x.kind == "mfma":
                x_need = areg_ds.get(x.areg)
                assert x_need is not None, x.txt
                trace_need.append(x_need) if False else None
        need_at = [None] * len(trace)
        areg_ds = {}; nds = 0
        for pos, x in enumerate(trace):
            if x.kind in ("dsr", "dsw"):
                if x.kind == "dsr":
                    areg_ds[x.areg] = nds
                nds += 1
            elif x.kind == "mfma":
                need_at[pos] = areg_ds[x.areg]
        lgw = [(pos, x, vmN, nds_) for (pos, x, vmN, nds_) in inst if x.wait["lg"] or x.wait.get("lg0")]
        lgN = {}
        for k, (pos, x, vmN, nds_) in enumerate(lgw):
            end = lgw[k + 1][0] if k + 1 < len(lgw) else len(trace)
            need = [need_at[p] for p in range(pos, end) if need_at[p] is not None]
            if x.wait.get("lg0"):
                N = 0
            elif need:
                mx = max(need)
                assert mx < nds_, ("read issued after its wait", pos, x.wait)
                N = nds_ - 1 - mx
            else:
                N = None
            lgN[pos] = N
        for (pos, x, vmN, nds_) in inst:
            r = res.setdefault(id(x), dict(x=x, vm=None, lg=None))
            if vmN is not None:
                r["vm"] = vmN if r["vm"] is None else min(r["vm"], vmN)
            N = lgN.get(pos)
            if N is not None:
                r["lg"] = N if r["lg"] is None else min(r["lg"], N)
        if not final:
            return
        for r in res.values():
            x = r["x"]; parts = []
            if r["vm"] is not None:
                assert r["vm"] <= 63
                parts.append(f"vmcnt({r['vm']})")
            if r["lg"] is not None:
                parts.append(f"lgkmcnt({min(r['lg'], 15)})")
            x.txt = ("s_waitcnt " + " ".join(parts)) if parts else None
            x.cmt = ",".join(x.wait["vm"])

    def kernel(s):
        c = s.c
        if c.alt is not None:
            c._hdr = True
        pro = {1: s.prologue, 2: s.prologue2, 3: s.prologue3}[c.pro]()
        g1f = s.lin(s.build("g1first"))
        g2l = s.lin(s.build("g2last"))
        proB = g1fB = None
        if c.alt is not None:
            import copy
            c2 = copy.copy(c)
            for k_, v_ in c.alt.items():
                assert hasattr(c, k_), k_
                setattr(c2, k_, v_)
            gB = Gen(c2)
            proB = gB.prologue3()
            g1fB = gB.lin(gB.build("g1first"))
            assert c.wvloop
        if c.wvloop:
            ncopy = len(c.wshift)
            loops = [s.lin(s.build("loop", wave=w)) for w in range(ncopy)]
            res = {}
            for w in range(ncopy):
                if proB is not None:
                    s.resolve(proB + g1fB + loops[w] * (c.nlayers - 1) + g2l, res, final=False)
                s.resolve(pro + g1f + loops[w] * (c.nlayers - 1) + g2l, res, final=(w == ncopy - 1))
            loop = loops[0]
        else:
            loop = s.lin(s.build("loop"))
            trace = pro + g1f + loop * (c.nlayers - 1) + g2l
            s.resolve(trace)
        L = []
        A = L.append
        hdr = open("standalone__cross_network_dcn_v2__recsys.s.ref").read().split("\n")
        for ln in hdr:
            if ln.startswith("; @launch"):
                A(f"; @launch grid=(256,1,1) block=(256,1,1) lds={163840 if c.smix else LDS + (1024 if c.zrow else 0)}")
            elif ln.startswith(";"):
                A(ln)
            else:
                break
        A('.amdgcn_target "amdgcn-amd-amdhsa--gfx950"')
        A(".text"); A(f".globl {KN}"); A(".p2align 8"); A(f".type {KN},@function"); A(f"{KN}:")

        def emit(lst):
            for x in lst:
                if x.txt is None:
                    continue
                if x.kind == "label":
                    A(x.txt); continue
                A("  " + x.txt + (f"   ; {x.cmt}" if x.cmt else ""))
        if c.delay0:
            if c.dly_bit is not None:
                A(f"  s_bitcmp1_b32 s2, {c.dly_bit}")
                A("  s_cbranch_scc0 L_dly0e")
            A(f"  s_mov_b32 s69, {c.delay0}")
            A("L_dly0:")
            for _ in range(8):
                A("  v_mov_b32 v1, v0")
            A("  s_sub_u32 s69, s69, 1")
            A("  s_cmp_lg_u32 s69, 0")
            A("  s_cbranch_scc1 L_dly0")
            A("L_dly0e:")
        if c.alt is not None:
            A("  s_cmp_ge_u32 s2, 256")
            A("  s_cbranch_scc1 L_end")
            A(f"  s_getpc_b64 {sr(S_M, 2)}")
            A("L_pc:")
            if c.alt_mask:
                A(f"  s_and_b32 s3, s2, {c.alt_mask[0]}")
                A(f"  s_cmp_eq_u32 s3, {c.alt_mask[1]}")
                A(f"  s_cbranch_scc{0 if c.alt_mask[2] else 1} L_alt")
            else:
                A(f"  s_bitcmp1_b32 s2, {c.alt_bit}")
                A("  s_cbranch_scc1 L_alt")
        emit(pro)
        A("; ---- G1 first"); emit(g1f)
        if c.alt is not None:
            A("L_join:")
        if c.stamps:
            A("  s_memtime s[74:75]")
            if c.stamps == "rt":
                A("  s_memrealtime s[82:83]")
            A("  s_waitcnt lgkmcnt(0)")
        if "vmwait" in c.drop:
            import re
            for x in loop:
                if x.kind == "wait" and x.txt:
                    x.txt = re.sub(r"vmcnt\(\d+\) ?", "", x.txt)
                    if x.txt.strip() == "s_waitcnt":
                        x.txt = None
        def flt(lst):
            o_ = []; k_ = 0
            if c.smix and ("h" in c.smix or "d" in c.smix):
                import re
                im = -1; prevA = None
                for x in lst:
                    if x.kind == "mfma":
                        im += 1
                        m_ = re.search(r"a\[\d+:\d+\]", x.txt)
                        if im & 1 and prevA and "h" in c.smix:
                            x = I(x.txt.replace(m_.group(0), prevA), "mfma", areg=x.areg)
                        else:
                            prevA = m_.group(0)
                    elif x.kind == "dsr" and x.areg < 88 and im & 1:
                        continue
                    o_.append(x)
                return o_
            for x in lst:
                if x.kind in c.drop:
                    continue
                if c.drophalf and x.kind == "dsr":
                    k_ += 1
                    if k_ % c.drophalf:
                        continue
                o_.append(x)
            return o_
        if c.wvloop:
            if ncopy == 2:
                A(f"  s_and_b32 s3, s{sW}, 1"); A(f"  s_cbranch_scc1 L_loop1")
            else:
                for w in range(1, 4):
                    A(f"  s_cmp_eq_u32 s{sW}, {w}"); A(f"  s_cbranch_scc1 L_loop{w}")
            for w in range(ncopy):
                A(f"; ---- loop of wave {w}"); A(f"L_loop{w}:")
                if c.itst:
                    A("  s_mov_b32 s91, s90"); A("  s_mov_b32 s90, s89"); A("  s_mov_b32 s89, s88"); A("  s_mov_b32 s88, s86")
                    A("  s_memrealtime s[86:87]")
                emit(flt(loops[w]))
                A(f"  s_cbranch_scc0 L_loop{w}")
                if w < ncopy - 1:
                    A("  s_branch L_g2l")
            A("L_g2l:")
        else:
            A("; ---- loop"); A("L_loop:"); emit([x for x in loop if x.kind not in c.drop])
            A("  s_cbranch_scc0 L_loop")
        if c.stamps:
            A("  s_memtime s[76:77]")
            if c.stamps == "rt":
                A("  s_memrealtime s[84:85]")
            A("  s_waitcnt lgkmcnt(0)")
        if c.delaym:
            A(f"  s_mov_b32 s69, {c.delaym}")
            A("L_dlym:")
            for _ in range(8):
                A("  s_nop 0")
            A("  s_sub_u32 s69, s69, 1")
            A("  s_cmp_lg_u32 s69, 0")
            A("  s_cbranch_scc1 L_dlym")
        if c.nost_bit == -1:
            A(f"  s_mov_b32 s{S_O + 2}, 0")
        elif c.nost_bit is not None:
            A(f"  s_bitcmp1_b32 s2, {c.nost_bit}")
            A(f"  s_cselect_b32 s{S_O + 2}, 0, s{S_O + 2}")
        A("; ---- G2 last"); emit(g2l)
        if c.delay:
            A(f"  s_mov_b32 s69, {c.delay}")
            A("L_dly:")
            for _ in range(8):
                A("  v_mov_b32 v0, v1")
            A("  s_sub_u32 s69, s69, 1")
            A("  s_cmp_lg_u32 s69, 0")
            A("  s_cbranch_scc1 L_dly")
        if c.stamps:
            A("  s_memtime s[66:67]")
            A("  s_waitcnt vmcnt(0) lgkmcnt(0)")
            A("  s_memtime s[78:79]")
            A("  s_memrealtime s[72:73]")
            A("  s_waitcnt lgkmcnt(0)")
            for k, reg in enumerate((62, 64, 74, 76, 66, 78, 80, 82, 84, 86, 88, 90) + ((89,) if c.itst else ())):
                A(f"  s_sub_u32 s{reg}, s{reg}, " + ("s70" if (c.stamps == "rt" and reg >= 80) else "s60"))
            A(f"  s_mov_b32 s{sDbg + 2}, 0x100000"); A(f"  s_mov_b32 s{sDbg + 3}, 0x20000")
            A(f"  s_lshl_b32 s68, s2, 2"); A(f"  s_add_u32 s68, s68, s{sW}"); A("  s_lshl_b32 s68, s68, 6")
            for k, reg in enumerate((62, 64, 74, 76, 66, 78, 70, 72, 80, 82, 84, 86, 88, 90, 89 if c.itst else 60, 60)):
                A(f"  v_mov_b32 v{k}, s{reg}")
            A("  v_mov_b32 v16, 0")
            if c.dbg:
                A(f"  s_mov_b32 s{sDbg + 2}, 256")
                A("  v_mov_b32 v20, s72"); A("  s_sub_u32 s73, -1, s70"); A("  v_mov_b32 v21, s73")
                A("  s_mov_b64 exec, 1")
                A(f"  buffer_atomic_umax v20, v16, s[{sDbg}:{sDbg + 3}], 0 offen")
                A(f"  buffer_atomic_umax v21, v16, s[{sDbg}:{sDbg + 3}], 0 offen offset:4")
                A("  s_sub_u32 s73, s72, s70"); A("  v_mov_b32 v22, s73")
                A(f"  buffer_atomic_umax v22, v16, s[{sDbg}:{sDbg + 3}], 0 offen offset:8")
                for k, r in enumerate((62, 64, 74, 76, 66, 78, 80, 82, 84)):
                    A(f"  v_mov_b32 v23, s{r}")
                    A(f"  buffer_atomic_umax v23, v16, s[{sDbg}:{sDbg + 3}], 0 offen offset:{12 + 4 * k}")
                    A("  s_nop 1")
                A("  s_mov_b64 exec, -1")
            else:
              for k in range(4):
                A(f"  buffer_store_dwordx4 v[{4 * k}:{4 * k + 3}], v16, s[{sDbg}:{sDbg + 3}], s68 offen offset:{16 * k}")
        if c.lstamps:
            nls = len(c.lstamps)
            A(f"  s_memtime s[{64 + 2 * nls}:{65 + 2 * nls}]")
            A("  s_waitcnt vmcnt(0) lgkmcnt(0)")
            A(f"  s_memtime s[{66 + 2 * nls}:{67 + 2 * nls}]")
            A(f"  s_load_dwordx2 s[{sDbg}:{sDbg + 1}], s[0:1], 48")
            A("  s_waitcnt lgkmcnt(0)")
            A(f"  s_mov_b32 s{sDbg + 2}, 0x100000"); A(f"  s_mov_b32 s{sDbg + 3}, 0x20000")
            A(f"  s_lshl_b32 s61, s2, 2"); A(f"  s_add_u32 s61, s61, s{sW}"); A("  s_lshl_b32 s61, s61, 6")
            for k in range(16):
                A(f"  v_mov_b32 v{k}, s{64 + 2 * min(k, len(c.lstamps) + 1)}")
            A("  v_mov_b32 v16, 0")
            for k in range(4):
                A(f"  buffer_store_dwordx4 v[{4 * k}:{4 * k + 3}], v16, s[{sDbg}:{sDbg + 3}], s61 offen offset:{16 * k}")
        A("L_end:"); A("  s_endpgm")
        if c.alt is not None:
            A("; ---- second start-up path"); A("L_alt:"); emit(proB)
            A("; ---- G1 first, second path"); emit(g1fB)
            A("  s_branch L_join"); A("L_fin:")
        A('.section .rodata,"a"'); A(".p2align 6"); A(f".amdhsa_kernel {KN}")
        nv = 256 + s.NA
        A(f"  .amdhsa_next_free_vgpr {nv}"); A("  .amdhsa_next_free_sgpr 102"); A("  .amdhsa_accum_offset 256")
        A("  .amdhsa_group_segment_fixed_size 0"); A("  .amdhsa_kernarg_size 56"); A("  .amdhsa_user_sgpr_count 2")
        A("  .amdhsa_user_sgpr_kernarg_segment_ptr 1"); A("  .amdhsa_system_sgpr_workgroup_id_x 1"); A(".end_amdhsa_kernel")
        s.sizes = dict(pro=len(pro), g1f=len(g1f), loop=len(loop), g2l=len(g2l))
        s.parts = dict(pro=pro, g1f=g1f, loop=loop, g2l=g2l)
        return "\n".join(L) + "\n"


def est_cycles(lst):
    cyc = 0; sc = 0; vc = 0; started = False
    for x in lst:
        if x.txt is None:
            continue
        if x.kind == "mfma":
            if started:
                cyc += 16 + 4 * (max(0, sc - 1) + max(0, vc - 2))
            started = True; sc = 0; vc = 0
        elif x.kind in ("salu", "wait", "barrier"):
            sc += 1
        else:
            vc += 1
    cyc += 16 + 4 * (max(0, sc - 1) + max(0, vc - 2))
    return cyc


if __name__ == "__main__":
    cfg = Cfg()
    out = "standalone__cross_network_dcn_v2__recsys.s"
    for a in sys.argv[1:]:
        if "=" in a:
            k, v = a.split("=", 1)
            if k == "out":
                out = v
            else:
                setattr(cfg, k, eval(v))
    g = Gen(cfg)
    txt = g.kernel()
    open(out, "w").write(txt)
    print("sizes", g.sizes, {k: est_cycles(v) for k, v in g.parts.items() if k != "pro"})
```

```python
import sys, json

KN = "standalone__cross_network_dcn_v2__recsys_kernel"
NL = 6
SLOT = 6656
WIN = 7 * SLOT
Z = 87040
T6 = Z + 6 * SLOT + 4032
LDS = 138240
ZR = 138240
LSTR = 86528
C0, X0, H0, XF = 0, 104, 208, 236
TMP, PV, PV6, PU, PT, DV, DU, D1 = 248, 249, 250, 251, 252, 253, 254, 255
S_X, S_U, S_V, S_B, S_O, S_M = 8, 12, 16, 20, 24, 28
(sW, sVb, sVs0, sVs1, sVs2, sWAs, sWAm, sWBs, sWBm, sT6s, sT6m, sMXs, sMXm, sUm, sLm, sCnt,
 sXo, sT0, sT1, sT2, sT3) = range(32, 53)
sMask = 54
sDbg = 56


class Cfg:
    LA = 12
    RING = 13
    NW = 4
    SWV = 8
    headint = True
    bars = [2, 20, 34, 54, 68, 91, 111, 131, 147, 163, 179]
    dma = {
        "V5": ([3, 7, 11], 54),
        "G0": ([21, 25, 29, 33], 68),
        "G1": ([37, 41, 45, 49], 91),
        "G2": ([55, 59, 63, 67], 111),
        "G3": ([71, 75, 79, 83], 131),
        "G4": ([92, 96, 100, 104], 147),
        "L": ([108], 163),
        "MX": ([113], 163),
        "T6": ([117], 179),
        "WA": ([121], 179),
        "WB": ([125], 179),
        "V0": ([132, 136, 140], 179),
        "V1": ([144, 148, 152], 2),
        "V2": ([156, 160, 164], 2),
        "V3": ([168, 172, 176], 20),
        "V4": ([180, 184, 188], 34),
    }
    stamps = False
    bars1 = [2, 14, 28, 42, 54, 68]
    dma1 = {
        "V1": ([], 2), "V2": ([], 14),
        "V3": ([0, 3, 6], 28), "V4": ([9, 12, 15], 42), "V5": ([18, 21, 24], 54),
        "G0": ([29, 32, 35, 38], 68), "G1": ([43, 46, 49, 52], 91),
        "G2": ([55, 59, 63, 67], 111), "G3": ([71, 75, 79, 83], 131),
    }
    p3order = "V0 WA WB T6 T6b X0 X1 BI PW V1 X2 X3 X4 V2 X5 X6 X7 X8 X9 X10 X11 X12"
    x0wait = 0
    delayb = 0
    tail16 = False
    zrow = False
    stwin = 0
    bias_in = False
    otmod = ""
    keep = ()
    keepmod = " sc1"
    keepld = False
    otld = None
    otouch = None
    xin = {}
    pl = ()
    pl1 = ()
    pw1 = ()
    p3start = 8
    p3k = 8
    pro = 2
    bi_early = True
    bias_at = (14, 60)
    pf_code = False
    delay = 0
    delay0 = 0
    delaym = 0
    lphase = "loop"
    wvloop = False
    wshift = (0, 1, 2, 3)
    lstamps = None
    dma_first = False
    dmamod = ""
    stmod = ""
    stsplit = 13
    stmod2 = ""
    stpat = ""
    xmod = ""
    pmod = ""
    dmamod0 = None
    dbg = False
    drop = ()
    pf_w = False
    nlayers = NL
    dly_bit = None
    alt = None
    alt_bit = 3
    alt_mask = None
    g2l_head = False
    g2l_first = 3
    dmaL = None
    barsL = None
    lrt = False
    delayj = 0
    xfill = 0
    ntr = 3
    headsnake = False
    g1snake = False
    g2snake = False
    itst = False
    smix = 0
    dmaw = None
    g1mode = "k"
    headn = 2
    g2chain = False
    _hdr = False
    pf_slice = 0
    pf_bytes = 18432
    nost_bit = None
    drophalf = 0


class I:
    __slots__ = ("txt", "kind", "grp", "areg", "wait", "cmt")

    def __init__(s, txt, kind, grp=None, areg=None, cmt=None):
        s.txt, s.kind, s.grp, s.areg, s.cmt = txt, kind, grp, areg, cmt
        s.wait = None


def vr(a, n=1):
    return f"v{a}" if n == 1 else f"v[{a}:{a + n - 1}]"


def ar(a, n=1):
    return f"a{a}" if n == 1 else f"a[{a}:{a + n - 1}]"


def sr(a, n=1):
    return f"s{a}" if n == 1 else f"s[{a}:{a + n - 1}]"


def cpos(p, tau):
    return C0 + 8 * p + 4 * tau


def xe(p, q):
    return X0 + 8 * p + q


def xo(p, q):
    return X0 + 8 * p + 4 + q


def xbuf(f):
    return XF + 4 * (f % 3)


class Gen:
    def __init__(s, cfg):
        s.c = cfg
        s.TR0 = 4 * cfg.RING
        s.ST = s.TR0 + 8 * cfg.ntr
        s.ST_XA, s.ST_D2 = s.ST, s.ST + 1
        s.NA = s.ST + 12
        if cfg.smix:
            s.NA = 128
        s.R2 = s.NA
        if cfg.g2l_head:
            s.NA += 4 * cfg.RING

    def g1_order(s, ks):
        if ks and (ks & 1) and s.c.g1snake:
            return list(range(6, -1, -1))
        return [1, 3, 5, 0, 2, 4, 6] if ks == 0 else list(range(7))

    def g1_seq(s):
        if getattr(s, "_seq", None) is None:
            if s.c.g1mode == "k":
                q = [(st, t) for st in range(13) for t in s.g1_order(st)]
            else:
                q = [(0, 1), (0, 3), (0, 5)]
                for j in range(5):
                    for t in (0, 2, 4, 6):
                        q += [(2 * j, t), (2 * j + 1, t)]
                    for t in (1, 3, 5):
                        q += [(2 * j + 1, t), (2 * j + 2, t)]
                for t in (2, 4, 6, 0):
                    q += [(10, t), (11, t)]
                q += [(12, 0), (11, 1), (12, 1), (12, 2), (11, 3), (12, 3), (12, 4), (11, 5), (12, 5), (12, 6)]
            assert len(q) == 91 and len(set(q)) == 91
            s._seq = q
        return s._seq

    def fuse(s, f):
        u = [i for i, (st, t) in enumerate(s.g1_seq()) if st == f]
        return u[0], u[-1]

    def pv_switch(s):
        if s.c.g1mode == "k":
            return max(s.g1_slot_of(s.c.SWV - 1, t) for t in range(6))
        return s.g1_slot_of(8, 5)

    def g2_order(s):
        o = []
        p0 = 0
        if s.c.headint:
            for ks in range(4):
                tl = [(p, tau) for p in range(s.c.headn) for tau in (0, 1)]
                if s.c.headsnake and (ks & 1):
                    tl.reverse()
                for p, tau in tl:
                    o.append((p, tau, ks))
            p0 = s.c.headn
        for p in range(p0, 13):
            if s.c.g2chain:
                for tau in (0, 1):
                    rev = s.c.g2snake and (tau == 0 if s.c.headsnake else tau == 1)
                    for ks in (range(3, -1, -1) if rev else range(4)):
                        o.append((p, tau, ks))
                continue
            for ks in range(4):
                for tau in (0, 1):
                    o.append((p, tau, ks))
        return o

    def ring(s, T):
        return 4 * (T % s.c.RING)

    def slot_desc(s, T, first=False):
        c = s.c
        if T < 91:
            st, t = s.g1_seq()[T]
            a = s.ring(T)
            if t < 6:
                ks, tau = t >> 1, t & 1
                if tau == 0:
                    if st < 12:
                        k = 2 * (st >> 1); ab = SLOT * (k + 1) + 2112 * ks + 64 * (st & 1); grp = f"V{k >> 1}"
                    else:
                        ab = Z + SLOT * ks + 4032; grp = "W"
                else:
                    if st == 0:
                        ab = Z + SLOT * ks + 4032 + 64; grp = "W"
                    else:
                        j = (st - 1) >> 1; k = 2 * j + 1
                        ab = SLOT * (k + 1) + 2112 * ks + 64 * ((st - 1) & 1); grp = f"V{j}"
                high = T > s.pv_switch() or (st == 0 and tau == 1)
                imm = ab - (WIN if high else 0)
                assert 0 <= imm < 65536, (T, imm)
                rd = I(f"ds_read_b128 {ar(a, 4)}, {vr(PV)} offset:{imm}", "dsr", areg=a)
            else:
                rd = I(f"ds_read_b128 {ar(a, 4)}, {vr(PV6)} offset:{64 * st}", "dsr", areg=a)
            D = H0 + 4 * t
            if first:
                B = xo(st, 0) if st < 10 else xbuf(st)
            else:
                B = xbuf(st)
            Cc = "0" if st == 0 else vr(D, 4)
            mf = I(f"v_mfma_f32_16x16x32_bf16 {vr(D, 4)}, {ar(a, 4)}, {vr(B, 4)}, {Cc}", "mfma", areg=a)
            return mf, rd
        p, tau, ks = s.g2_order()[T - 91]
        D = cpos(p, tau)
        if ks < 3:
            a = s.ring(T)
            imm = SLOT * (p % 7) + 208 * tau + 64 * ks
            rd = I(f"ds_read_b128 {ar(a, 4)}, {vr(PU)} offset:{imm}", "dsr", areg=a)
            B = H0 + 8 * ks
        else:
            a = s.TR0 + 4 * (2 * (p % c.ntr) + tau)
            imm = SLOT * (p % 7) + 208 * tau
            rd = I(f"ds_read_b64 {ar(a, 2)}, {vr(PT)} offset:{imm}", "dsr", areg=a)
            B = H0 + 24
        if ks == 3 and c.tail16:
            mf = I(f"v_mfma_f32_16x16x16_bf16 {vr(D, 4)}, {ar(a, 2)}, {vr(B, 2)}, {vr(D, 4)}", "mfma", areg=a)
        else:
            mf = I(f"v_mfma_f32_16x16x32_bf16 {vr(D, 4)}, {ar(a, 4)}, {vr(B, 4)}, {vr(D, 4)}", "mfma", areg=a)
        return mf, rd

    def g2_slot_of(s, p, tau, ks):
        return 91 + s.g2_order().index((p, tau, ks))

    def g1_slot_of(s, st, t):
        return s.g1_seq().index((st, t))

    def dma_items(s, g):
        V = lambda txt: I(txt.replace(" lds", getattr(s, "_dm", s.c.dmamod) + " lds"), "dma", grp=g)
        S = lambda txt: I(txt, "salu")
        if g[0] == "V":
            j = int(g[1]); out = []
            for ks in range(3):
                out.append((S(f"s_add_u32 m0, {sr(sVb)}, {13184 * j + 2112 * ks + SLOT}"),
                            V(f"buffer_load_dwordx4 {vr(DV)}, {sr(S_V, 4)}, {sr(sVs0 + ks)} offen offset:{128 * j} lds")))
            return out
        if g[0] == "G":
            n = int(g[1]); out = []
            for i in range(4):
                sc = S(f"s_add_u32 m0, {sr(sUm)}, {16384 * n}") if i == 0 else None
                out.append((sc, V(f"buffer_load_dwordx4 {vr(DU)}, {sr(S_U, 4)}, m0 offen offset:{1024 * i} lds")))
            return out
        if g == "L":
            return [(S(f"s_mov_b32 m0, {sr(sLm)}"), V(f"buffer_load_dwordx4 {vr(DU)}, {sr(S_U, 4)}, m0 offen lds"))]
        if g == "MX":
            return [(S(f"s_mov_b32 m0, {sr(sMXm)}"), V(f"buffer_load_dwordx4 {vr(DU)}, {sr(S_M, 4)}, {sr(sMXs)} offen lds"))]
        if g == "T6":
            return [(S(f"s_mov_b32 m0, {sr(sT6m)}"), V(f"buffer_load_dwordx4 {vr(DU)}, {sr(S_V, 4)}, {sr(sT6s)} offen lds"))]
        if g == "WA":
            return [(S(f"s_mov_b32 m0, {sr(sWAm)}"), V(f"buffer_load_dwordx4 {vr(DV)}, {sr(S_V, 4)}, {sr(sWAs)} offen offset:768 lds"))]
        if g == "WB":
            return [(S(f"s_mov_b32 m0, {sr(sWBm)}"), V(f"buffer_load_dwordx4 {vr(DV)}, {sr(S_V, 4)}, {sr(sWBs)} offen offset:768 lds"))]
        raise KeyError(g)

    def xfrag_ops(s, f, dst=None):
        b = xbuf(f) if dst is None else dst
        o = []
        for q in range(4):
            o.append(I(f"v_mul_f32 {vr(b + q)}, {vr(xe(f, q))}, {vr(cpos(f, 0) + q)}", "valu"))
            o.append(I(f"v_mul_f32 {vr(TMP)}, {vr(xo(f, q))}, {vr(cpos(f, 1) + q)}", "valu"))
            o.append(I(f"v_cvt_pk_bf16_f32 {vr(b + q)}, {vr(b + q)}, {vr(TMP)}", "valu"))
        return o

    def unpack_ops(s, f):
        src = xo(f, 0) if f < 10 else xbuf(f)
        o = []
        for q in range(4):
            o.append(I(f"v_lshlrev_b32 {vr(xe(f, q))}, 16, {vr(src + q)}", "valu"))
            o.append(I(f"v_and_b32 {vr(xo(f, q))}, 0xffff0000, {vr(src + q)}", "valu"))
        return o

    def hcvt_ops(s, ks):
        if ks < 3:
            b = H0 + 8 * ks
            return [I(f"v_cvt_pk_bf16_f32 {vr(b + q)}, {vr(b + q)}, {vr(b + 4 + q)}", "valu") for q in range(4)]
        b = H0 + 24
        o = [I(f"v_cvt_pk_bf16_f32 {vr(b)}, {vr(b)}, {vr(b + 1)}", "valu"),
             I(f"v_cvt_pk_bf16_f32 {vr(b + 1)}, {vr(b + 2)}, {vr(b + 3)}", "valu")]
        if not s.c.tail16:
            o += [I(f"v_mov_b32 {vr(b + 2)}, 0", "valu"), I(f"v_mov_b32 {vr(b + 3)}, 0", "valu")]
        o.append(I(f"v_cndmask_b32_e64 {vr(b)}, {vr(b)}, 0.5, {sr(sMask, 2)}", "valu"))
        if not s.c.zrow:
            o.append(I(f"v_cndmask_b32_e64 {vr(b + 1)}, {vr(b + 1)}, 0, {sr(sMask, 2)}", "valu"))
        return o

    class Phase:
        def __init__(s, T0, n):
            s.T0, s.n = T0, n
            s.m = [None] * n; s.r = [None] * n
            s.sc = [[] for _ in range(n)]
            s.vx = [[] for _ in range(n)]

        def load(s, i):
            return len(s.vx[i])

    def spread(s, ph, ops, lo, hi, deadline_groups=None):
        n = hi - lo + 1
        base = [ph.load(i) for i in range(lo, hi + 1)]
        tot = sum(base) + len(ops)
        lvl = 0
        while sum(max(0, lvl - b) for b in base) < len(ops):
            lvl += 1
        cap = [max(0, lvl - b) for b in base]
        excess = sum(cap) - len(ops)
        idxs = [i for i in range(n) if cap[i] > 0]
        if excess > 0:
            step = len(idxs) / excess
            for e in range(excess):
                cap[idxs[int((e + 0.5) * step)]] -= 1
        k = 0
        for i in range(n):
            for _ in range(cap[i]):
                ph.vx[lo + i].append(ops[k]); k += 1
        assert k == len(ops)

    def build(s, kind, wave=None):
        c = s.c
        LA = c.LA
        if kind == "g1first":
            Ts = list(range(0, 91))
        elif kind == "loop":
            Ts = list(range(91, 195)) + list(range(0, 91))
        else:
            Ts = list(range(91, 195))
        n = len(Ts)
        ph = s.Phase(Ts[0], n)
        ph.kind = kind
        ph.Ts = Ts
        pos = {T: i for i, T in enumerate(Ts)}
        first = kind == "g1first"
        last = kind == "g2last"
        for i, T in enumerate(Ts):
            ph.m[i] = s.slot_desc(T, first)[0]
            Tn = (T + LA) % 195
            if last and T + LA >= 195:
                ph.r[i] = None
            else:
                ph.r[i] = s.slot_desc(Tn, False)[1]

        def at(T):
            return pos.get(T % 195)

        slot_of = s.g2_slot_of
        if last and c.g2l_head:
            assert c.headint and c.headn == 2
            lo_ = s.g2_order()
            order_l = [(p, tau, ks) for p in (0, 1) for ks in range(4) for tau in (0, 1)] + lo_[16:]
            slot_of = lambda p, tau, ks: 91 + order_l.index((p, tau, ks))
            r2 = lambda T: s.R2 + 4 * (T % c.RING)
            for i, T in enumerate(Ts):
                it = order_l[i]
                mf = s.slot_desc(s.g2_slot_of(*it), False)[0]
                if T >= 107 and it[2] < 3:
                    mf = I(mf.txt.replace(ar(mf.areg, 4), ar(r2(T), 4)), "mfma", areg=r2(T))
                ph.m[i] = mf
                rd = ph.r[i]
                if rd is not None and T + LA >= 107 and order_l[i + LA][2] < 3:
                    ph.r[i] = I(rd.txt.replace(ar(rd.areg, 4), ar(r2(T + LA), 4)), "dsr", areg=r2(T + LA))

        p3 = first and c.pro == 3
        s._dm = c.dmamod0 if (first and c.dmamod0 is not None) else c.dmamod
        cdma = c.dma1 if p3 else c.dma
        cbars = c.bars1 if p3 else c.bars
        if last and c.dmaL:
            cdma = dict(c.dma); cdma.update(c.dmaL)
            cbars = c.barsL
        groups = dict(cdma)
        if last:
            for g in list(groups):
                if g not in ("G4", "L", "MX"):
                    del groups[g]
        m0_req = []
        dma_slots = []
        for g, (slots, arr) in groups.items():
            items = s.dma_items(g)
            if not slots:
                continue
            assert len(items) == len(slots), g
            ovr = wave is not None and c.dmaw and g in c.dmaw[wave]
            if ovr:
                slots = c.dmaw[wave][g]
            for (sc, v), T in zip(items, slots):
                if wave is not None and not ovr:
                    T = T + c.wshift[wave]
                i = at(T)
                if i is None:
                    continue
                ph.vx[i].append(v)
                dma_slots.append(i)
                if sc is not None:
                    m0_req.append((i, sc))
        dma_slots.sort()
        bars = [b for b in cbars if at(b) is not None]
        if last:
            need = set()
            for g in ("G1", "G2", "G3", "G4", "L", "MX"):
                need.add(cdma[g][1])
            bars = [b for b in bars if b in need or b == 91]
        fixed = {}
        for b in bars:
            i = at(b)
            ph.sc[i].append(I("s_barrier", "barrier"))
            arrivals = [g for g, (sl, arr) in cdma.items() if arr == b]
            if last:
                arrivals = [g for g in arrivals if g in ("G1", "G2", "G3", "G4", "L", "MX")]
            if arrivals:
                w = I(None, "wait"); w.wait = dict(vm=arrivals, lg=True)
                j = i - 1
                if j < 0:
                    ph.pre_wait = w
                else:
                    ph.sc[j].append(w)
        if kind in ("g1first", "loop"):
            nb = (Ts[-1] + 1) % 195
            if nb in c.bars:
                arrivals = [g for g, (sl, arr) in c.dma.items() if arr == nb]
                if arrivals:
                    w = I(None, "wait"); w.wait = dict(vm=arrivals, lg=True)
                    ph.sc[n - 1].append(w)
        if first:
            for st in range(1, 13):
                fr = st if st < 10 else None
                if p3:
                    grp = [f"X{st}"]
                elif st == 9:
                    grp = ["X9", "X10", "X11", "X12"]
                elif st > 9:
                    continue
                else:
                    grp = [f"X{st}"]
                if (c.pro == 2 or (p3 and c.bias_in)) and s.fuse(st)[0] - 1 < c.bias_at[0] <= (s.fuse(st + 1)[0] if st < 12 else 91) - 1:
                    grp = grp + ["BI"]
                j = s.fuse(st)[0] - 1
                ex = [x for x in ph.sc[j] if x.kind == "wait"]
                if ex:
                    ex[0].wait["vm"] = ex[0].wait["vm"] + grp
                else:
                    w = I(None, "wait"); w.wait = dict(vm=grp, lg=True)
                    ph.sc[j].append(w)
        for i, sc in sorted(m0_req, key=lambda x: x[0]):
            prev = max([d for d in dma_slots if d < i], default=-1)
            placed = False
            for j in range(i, prev, -1):
                if j >= 0 and not ph.sc[j]:
                    ph.sc[j].append(sc); placed = True; break
            if not placed:
                ph.sc[i].append(sc)
        if kind == "loop":
            ph.loopctl = True
        def put(T, ins):
            i = at(T)
            if i is not None:
                ph.vx[i].append(ins)
        rdslot = lambda T: (T - LA) % 195
        put(rdslot(s.pv_switch()), I(f"v_add_u32 {vr(PV)}, {WIN}, {vr(PV)}", "valu"))
        if not last:
            if not first:
                put(rdslot(s.g1_slot_of(0, 5)), I(f"v_subrev_u32 {vr(PV)}, {WIN}, {vr(PV)}", "valu"))
        if not first:
            lastPU6 = max(s.g2_slot_of(6, t, k) for t in (0, 1) for k in range(3))
            put(rdslot(lastPU6), I(f"v_add_u32 {vr(PU)}, {WIN}, {vr(PU)}", "valu"))
            put(rdslot(s.g2_slot_of(6, 1, 3)), I(f"v_add_u32 {vr(PT)}, {vr(PT)}, {vr(D1)}", "valu"))
            if not last:
                lastPU12 = s.g2_slot_of(12, 1, 3) if not c.g2snake else max(s.g2_slot_of(12, t, k) for t in (0, 1) for k in range(3))
                put(rdslot(lastPU12), I(f"v_subrev_u32 {vr(PU)}, {WIN}, {vr(PU)}", "valu"))
        if kind == "loop":
            put(0, I(f"v_accvgpr_read_b32 {vr(TMP)}, {ar(s.ST_D2)}", "valu"))
            put(1, I(f"v_add_u32 {vr(PT)}, {vr(PT)}, {vr(TMP)}", "valu"))
            put(2, I(f"v_add_u32 {vr(DU)}, {LSTR}, {vr(DU)}", "valu"))
        if kind == "loop":
            for T in c.keep:
                if c.keepld:
                    put(T, I(f"buffer_load_dword {ar(s.ST + 9)}, off, {sr(sDbg, 4)}, s7{c.keepmod}", "vload", grp="KP"))
                    put(T + 1, I(f"s_add_u32 s7, s7, 0x100000", "salu"))
                else:
                    put(T, I(f"buffer_store_dword {vr(D1)}, off, {sr(sDbg, 4)}, s7{c.keepmod}", "store", grp="KP"))
            for k_, (T, mat) in enumerate(c.pl):
                put(T, I(f"buffer_load_dword {ar(s.ST + 10 + k_)}, {vr(DU)}, {sr(S_V if mat == 'V' else S_U, 4)}, {'s6' if T >= 91 else 's5'} offen{c.pmod}", "vload", grp="PW"))
        if kind in ("loop", "g1first"):
            put(86, I(f"v_add_u32 {vr(DV)}, {LSTR}, {vr(DV)}", "valu"))
        if c.smix and kind == "loop":
            F = c.smix
            put(84, I(f"v_accvgpr_read_b32 {vr(TMP)}, a88", "valu"))
            if "w" in F:
                for t_ in range(7):
                    put(87 + t_, I(f"ds_write_b128 {vr(TMP)}, {vr(H0 + 4 * t_, 4)} offset:{1024 * (t_ % 6)}", "dsw"))
                for t_ in range(6):
                    put(103 + t_, I(f"ds_write_b128 {vr(TMP)}, {vr(H0 + 8 * (t_ % 3), 4)} offset:{1024 * t_}", "dsw"))
            if "b" in F:
                ph.sc[at(94)].append(I("s_waitcnt lgkmcnt(0)", "salu"))
                ph.sc[at(95)].append(I("s_barrier", "barrier"))
                ph.sc[at(110)].append(I("s_waitcnt lgkmcnt(0)", "salu"))
            if "r" in F:
                for t_ in range(7):
                    put(96 + t_, I(f"ds_read_b128 {ar(92 + 4 * t_, 4)}, {vr(TMP)} offset:{1024 * (t_ % 6)}", "dsr", areg=92 + 4 * t_))
                for t_ in range(6):
                    put(112 + t_, I(f"ds_read_b128 {ar(92 + 4 * t_, 4)}, {vr(TMP)} offset:{1024 * t_}", "dsr", areg=92 + 4 * t_))
            if "2" in F:
                ph.sc[at(103)].append(I("s_waitcnt lgkmcnt(0)", "salu"))
                ph.sc[at(119)].append(I("s_waitcnt lgkmcnt(0)", "salu"))
            if "v" in F:
                fr = [H0 + 4 + (i & 3) + 8 * ((i >> 2) % 3) for i in range(39)]
                xo_ = [I(f"v_add_f32 {vr(fr[i])}, {vr(C0 + 2 * i)}, {vr(X0 + 2 * i)}", "valu") for i in range(39)]
                s.spread(ph, xo_, at(104), at(190))
        h0 = s.hcvt_ops(0); h1 = s.hcvt_ops(1); h2 = s.hcvt_ops(2); h3 = s.hcvt_ops(3)
        use = [min(slot_of(p, t, k) for p in range(13) for t in (0, 1)) for k in range(4)]
        ab = c.g1mode != "k"
        if kind in ("loop", "g1first"):
            for k, op in enumerate(h0):
                ph.vx[at((86 if ab else 88) + k // 2)].append(op)
            if ab:
                for k, op in enumerate(h1):
                    ph.vx[at(89 + k // 2)].append(op)
        if kind in ("loop", "g2last"):
            for ops, early, u in ((h1, 91, use[1]), (h2, 92, use[2]), (h3, 93, use[3]))[(1 if ab else 0):]:
                lo = max(early, getattr(s, "_hlast", 91))
                hi = u - 2
                if lo > hi:
                    lo = early
                s.spread(ph, ops, at(lo), at(hi))
                s._hlast = hi + 1 if hi + 1 <= 195 else lo
            s._hlast = 91
        if kind == "loop":
            done = [max(s.g2_slot_of(f, t, k) for t in (0, 1) for k in range(4)) + 3 for f in range(3)]
            if c.headint and c.headn == 2:
                lo = max(done[1], use[3])
                ops = s.xfrag_ops(0) + s.xfrag_ops(1) + s.xfrag_ops(2)
                lo = max(lo, done[0])
                if c.smix:
                    lo = 120
                s.spread(ph, ops[:24], at(lo), at(lo + 39))
                s.spread(ph, ops[24:], at(max(lo + 40, done[2])), at(190))
            else:
                lo = max(done[0], use[3])
                w_ = (190 - lo + 1) // 3
                for f in range(3):
                    a0 = lo + f * w_
                    assert a0 >= done[f]
                    s.spread(ph, s.xfrag_ops(f), at(a0), at(a0 + w_ - 1))
            for f in range(3, 13):
                if ab:
                    a0 = 10 + 7 * (f - 3); a1 = a0 + 6
                else:
                    a0 = 7 + (76 * (f - 3) + 5) // 10
                    a1 = 7 + (76 * (f - 2) + 5) // 10 - 1
                assert a0 > s.fuse(f - 3)[1] and a1 <= s.fuse(f)[0] - 2, (f, a0, a1)
                s.spread(ph, s.xfrag_ops(f), at(a0), at(a1))
        if first:
            for f in range(0, 10):
                lo = s.fuse(f)[1] + 1
                hi = min(lo + 6, 83)
                s.spread(ph, s.unpack_ops(f), at(lo), at(hi))
            if p3:
                for f in (10, 11, 12):
                    f0 = s.fuse(f)[0]
                    s.spread(ph, s.unpack_ops(f), at(f0), at(min(f0 + 6, 87) if f < 12 else 90))
            else:
                s.spread(ph, s.unpack_ops(10) + s.unpack_ops(11) + s.unpack_ops(12), at(63), at(87))
            if p3 and c.otld is not None:
                put(c.otld, I(f"buffer_load_dword {ar(s.ST + 7)}, {vr(TMP)}, {sr(S_O, 4)}, {sr(sXo)} offen{c.otmod}", "vload", grp="OT"))
            if p3 and c.otouch is not None:
                put(c.otouch, I(f"buffer_store_dword {vr(D1)}, {vr(TMP)}, {sr(S_O, 4)}, {sr(sXo)} offen{c.otmod}", "store", grp="OT"))
            if p3:
                for f, T in c.xin.items():
                    dst = xo(f, 0) if f < 10 else xbuf(f)
                    put(T, I(f"buffer_load_dwordx4 {vr(dst, 4)}, {vr(TMP)}, {sr(S_X, 4)}, {sr(sXo)} offen offset:{64 * f}{c.xmod}", "vload", grp=f"X{f}"))
                for k_, (T, mat) in enumerate(c.pl1):
                    put(T, I(f"buffer_load_dword {ar(s.ST + 8 + k_)}, {vr(DU)}, {sr(S_V if mat == 'V' else S_U, 4)}, s5 offen{c.pmod}", "vload", grp="PW"))
                for k_, (T, mat) in enumerate(c.pw1):
                    put(T, I(f"buffer_load_dword {ar(s.ST + 6 + k_)}, {vr(TMP)}, {sr(S_V if mat == 'V' else S_U, 4)}, s98 offen{c.pmod}", "vload", grp="PW"))
            if c.pro == 2 or (p3 and c.bias_in):
                bo = s.bias_ops()
                if "biasw" in c.drop:
                    bo = [x for x in bo if x.kind != "dsw"]
                s.spread(ph, bo, at(c.bias_at[0]), at(c.bias_at[1]))
        if last:
            put(92, I(f"v_accvgpr_read_b32 {vr(DV)}, {ar(s.ST_XA)}", "valu"))
            ph.tail = []
            prev = use[3] - 1
            for f in range(13):
                done = max(slot_of(f, t, k) for t in (0, 1) for k in range(4)) + 3
                ops = s.xfrag_ops(f)
                if c.stwin and f >= c.stwin:
                    w = I(None, "wait"); w.wait = dict(vm=[f"S{f - c.stwin}"], lg=False); ops.append(w)
                ops = ops + [I(f"buffer_store_dwordx4 {vr(xbuf(f), 4)}, {vr(DV)}, {sr(S_O, 4)}, {sr(sXo)} offen offset:{(128 if c.stpat == 'oct' else 64) * f}{c.stmod if f < c.stsplit else c.stmod2}", "store", grp=f"S{f}")]
                lo = max(done, prev + 1)
                hi = min(194, max(lo + 5, done + 7))
                if f == 0 and c.g2l_head:
                    hi = lo + c.g2l_first
                if lo > 194 or f == 12:
                    if not ph.tail:
                        ph.tail.append(I("s_nop 5", "salu"))
                    ph.tail += ops
                    continue
                s.spread(ph, ops, at(lo), at(hi))
                prev = hi
        s.place_lg(ph)
        return ph

    def place_lg(s, ph):
        c = s.c
        n = ph.n
        has = [any(x.kind == "wait" for x in ph.sc[i]) for i in range(n)]
        i = 0
        lastw = -1
        j = -1
        while j < n - 1:
            cand = list(range(j + 1, min(j + c.NW, n - 1) + 1))
            nxt = None
            ex = [x for x in cand if has[x]]
            if ex:
                nxt = ex[0]
            else:
                fr = [x for x in cand if not ph.sc[x]]
                nxt = fr[-1] if fr else cand[-1]
                w = I(None, "wait"); w.wait = dict(vm=[], lg=True)
                ph.sc[nxt].insert(0, w) if not fr else ph.sc[nxt].append(w)
                has[nxt] = True
            j = nxt
            if j >= n - 1:
                break

    def lin(s, ph):
        out = []
        for i in range(ph.n):
            out.append(ph.m[i])
            if s.c.lstamps and ph.kind == s.c.lphase and ph.Ts[i] in s.c.lstamps:
                k = s.c.lstamps.index(ph.Ts[i])
                out.append(I(f"{'s_memrealtime' if s.c.lrt else 's_memtime'} s[{64 + 2 * k}:{65 + 2 * k}]", "salu"))
            sc = list(ph.sc[i])
            sc.sort(key=lambda x: {"wait": 0, "barrier": 1}.get(x.kind, 2))
            shadow = sc[:1]; rest = sc[1:]
            out += shadow
            pre = [x for x in rest if x.kind != "wait"]
            post = [x for x in rest if x.kind == "wait"]
            out += pre
            if getattr(ph, "loopctl", False) and i == ph.n - 1:
                out.append(I(f"s_sub_u32 {sr(sCnt)}, {sr(sCnt)}, 1", "salu"))
            vx = list(ph.vx[i])
            if s.c.dma_first:
                d = [x for x in vx if x.kind == "dma"]
                if d and (shadow and shadow[0].kind == "salu" and "m0" in shadow[0].txt):
                    pass
                elif d:
                    out += d; vx = [x for x in vx if x.kind != "dma"]
            if ph.r[i] is not None:
                out.append(ph.r[i])
            out += vx
            out += post
        out += getattr(ph, "tail", [])
        return out

    def prologue(s):
        c = s.c
        o = []
        S = lambda t: o.append(I(t, "salu"))
        V = lambda t: o.append(I(t, "valu"))
        t = [H0 + i for i in range(28)]
        S(f"s_cmp_ge_u32 s2, 256")
        S(f"s_cbranch_scc1 L_end")
        if c.pf_code:
            S(f"s_getpc_b64 {sr(S_M, 2)}")
            o.append(I("L_pc:", "label"))
            S(f"s_mov_b32 {sr(S_M + 2)}, L_end-L_pc")
            S(f"s_mov_b32 {sr(S_M + 3)}, 0x20000")
            V(f"v_lshlrev_b32 {vr(TMP)}, 6, v0")
            o.append(I(f"buffer_load_dword {ar(s.ST + 4)}, {vr(TMP)}, {sr(S_M, 4)}, 0 offen", "vload", grp="PC"))
        S(f"s_load_dwordx2 {sr(S_X, 2)}, s[0:1], 0")
        S(f"s_load_dwordx2 {sr(S_U, 2)}, s[0:1], 8")
        S(f"s_load_dwordx2 {sr(S_V, 2)}, s[0:1], 16")
        S(f"s_load_dwordx2 {sr(S_B, 2)}, s[0:1], 24")
        S(f"s_load_dwordx2 {sr(S_O, 2)}, s[0:1], 32")
        if c.stamps:
            S(f"s_load_dwordx2 {sr(sDbg, 2)}, s[0:1], {40 if c.dbg else 48}")
            S(f"s_memtime s[60:61]")
            S(f"s_memrealtime s[70:71]")
        lane, w, g, m = t[0], t[1], t[2], t[3]
        V(f"v_lshrrev_b32 {vr(w)}, 6, v0")
        V(f"v_and_b32 {vr(lane)}, 63, v0")
        V(f"v_readfirstlane_b32 {sr(sW)}, {vr(w)}")
        V(f"v_lshrrev_b32 {vr(g)}, 4, {vr(lane)}")
        V(f"v_and_b32 {vr(m)}, 15, {vr(lane)}")
        j, q, x, y = t[4], t[5], t[6], t[7]
        V(f"v_lshrrev_b32 {vr(j)}, 3, {vr(lane)}")
        V(f"v_and_b32 {vr(q)}, 7, {vr(lane)}")
        V(f"v_lshrrev_b32 {vr(x)}, 2, {vr(j)}")
        V(f"v_and_b32 {vr(y)}, 3, {vr(j)}")
        V(f"v_lshlrev_b32 {vr(x)}, 2, {vr(x)}")
        V(f"v_add_u32 {vr(x)}, {vr(x)}, {vr(y)}")
        V(f"v_mul_u32_u24 {vr(x)}, {2 * 832}, {vr(x)}")
        V(f"v_lshrrev_b32 {vr(y)}, 1, {vr(j)}")
        V(f"v_xor_b32 {vr(y)}, {vr(y)}, {vr(q)}")
        V(f"v_lshl_add_u32 {vr(DV)}, {vr(y)}, 4, {vr(x)}")
        V(f"v_lshlrev_b32 {vr(DU)}, 4, {vr(lane)}")
        XA = t[8]
        V(f"v_mul_u32_u24 {vr(XA)}, 832, {vr(m)}")
        V(f"v_lshl_add_u32 {vr(XA)}, {vr(g)}, 4, {vr(XA)}")
        S(f"s_and_b32 {sr(sT0)}, {sr(sW)}, 1")
        S(f"s_lshr_b32 {sr(sT1)}, {sr(sW)}, 1")
        S(f"s_mul_i32 {sr(sVb)}, {sr(sT0)}, {SLOT}")
        S(f"s_mul_i32 {sr(sT2)}, {sr(sT1)}, 1088")
        S(f"s_add_u32 {sr(sVb)}, {sr(sVb)}, {sr(sT2)}")
        S(f"s_mul_i32 {sr(sVs0)}, {sr(sT0)}, {832 + 64}")
        S(f"s_mul_i32 {sr(sT2)}, {sr(sT1)}, {16 * 832}")
        S(f"s_add_u32 {sr(sVs0)}, {sr(sVs0)}, {sr(sT2)}")
        S(f"s_add_u32 {sr(sVs0 + 1)}, {sr(sVs0)}, {32 * 832}")
        S(f"s_add_u32 {sr(sVs0 + 2)}, {sr(sVs0)}, {64 * 832}")
        S(f"s_mul_i32 {sr(sWAs)}, {sr(sW)}, {16 * 832}")
        S(f"s_mul_i32 {sr(sWAm)}, {sr(sT1)}, {SLOT}")
        S(f"s_mul_i32 {sr(sT2)}, {sr(sT0)}, 1088")
        S(f"s_add_u32 {sr(sWAm)}, {sr(sWAm)}, {sr(sT2)}")
        S(f"s_add_u32 {sr(sWAm)}, {sr(sWAm)}, {Z + 4032 - 768}")
        S(f"s_mul_i32 {sr(sWBs)}, {sr(sT0)}, {16 * 832}")
        S(f"s_add_u32 {sr(sWBs)}, {sr(sWBs)}, {64 * 832}")
        S(f"s_add_u32 {sr(sWBm)}, {sr(sT2)}, {Z + 2 * SLOT + 4032 - 768}")
        S(f"s_lshl_b32 {sr(sT3)}, {sr(sW)}, 10")
        S(f"s_add_u32 {sr(sT6m)}, {sr(sT3)}, {T6}")
        S(f"s_add_u32 {sr(sT6s)}, {sr(sT3)}, {96 * 832 + LSTR}")
        S(f"s_add_u32 {sr(sLm)}, {sr(sT3)}, 81920")
        S(f"s_lshl_b32 {sr(sUm)}, {sr(sW)}, 12")
        S(f"s_add_u32 {sr(sMXs)}, {sr(sT3)}, {96 * 832 + LSTR + 4096}")
        S(f"s_add_u32 {sr(sMXm)}, {sr(sT3)}, {T6 + 4096}")
        S(f"s_cmp_eq_u32 {sr(sW)}, 3")
        S(f"s_cselect_b32 {sr(sMXs)}, 86016, {sr(sMXs)}")
        S(f"s_cselect_b32 {sr(sMXm)}, 86016, {sr(sMXm)}")
        S(f"s_lshl_b32 {sr(sXo)}, s2, 2")
        S(f"s_add_u32 {sr(sXo)}, {sr(sXo)}, {sr(sW)}")
        S(f"s_mul_i32 {sr(sXo)}, {sr(sXo)}, {16 * 832}")
        S(f"s_mov_b32 {sr(sMask)}, 0")
        S(f"s_mov_b32 {sr(sMask + 1)}, -1")
        S(f"s_mov_b32 {sr(sCnt)}, {c.nlayers - 2}")
        S(f"s_min_u32 {sr(sT2)}, {sr(sW)}, 2")
        S(f"s_lshl_b32 {sr(sT2)}, {sr(sT2)}, 10")
        S(f"s_add_u32 {sr(sT0)}, {sr(sT3)}, {96 * 832}")
        S(f"s_add_u32 {sr(sT1)}, {sr(sT2)}, {96 * 832 + 4096}")
        S(f"s_add_u32 {sr(sT2)}, {sr(sT2)}, {T6 + 4096}")
        bh, bt, bg, bl = t[9], t[10], t[11], t[12]
        V(f"v_min_u32 {vr(w)}, 2, {vr(w)}") if False else None
        S(f"s_min_u32 {sr(sT3)}, {sr(sW)}, 2")
        V(f"v_lshrrev_b32 {vr(bh)}, 5, {vr(lane)}")
        V(f"v_and_b32 {vr(bt)}, 1, {vr(g)}")
        V(f"v_lshl_add_u32 {vr(bh)}, {sr(sT3)}, 1, {vr(bh)}")
        rho = t[13]
        V(f"v_lshrrev_b32 {vr(x)}, 2, {vr(m)}")
        V(f"v_and_b32 {vr(y)}, 3, {vr(m)}")
        V(f"v_lshlrev_b32 {vr(x)}, 2, {vr(x)}")
        V(f"v_add_u32 {vr(x)}, {vr(x)}, {vr(y)}")
        V(f"v_lshlrev_b32 {vr(rho)}, 1, {vr(x)}")
        V(f"v_add_u32 {vr(x)}, {vr(rho)}, {vr(bt)}")
        V(f"v_mul_u32_u24 {vr(bg)}, 832, {vr(bh)}")
        V(f"v_lshl_add_u32 {vr(bg)}, {vr(x)}, 1, {vr(bg)}")
        V(f"v_mul_u32_u24 {vr(bl)}, 336, {vr(bh)}")
        V(f"v_mul_u32_u24 {vr(x)}, 208, {vr(bt)}")
        V(f"v_add_u32 {vr(bl)}, {vr(bl)}, {vr(x)}")
        V(f"v_lshl_add_u32 {vr(bl)}, {vr(m)}, 3, {vr(bl)}")
        V(f"v_add_u32 {vr(bl)}, {Z}, {vr(bl)}")
        V(f"v_mul_u32_u24 {vr(x)}, 208, {vr(rho)}")
        V(f"v_lshl_add_u32 {vr(PU)}, {vr(g)}, 4, {vr(x)}")
        V(f"v_lshl_add_u32 {vr(x)}, {vr(g)}, 3, {vr(x)}")
        V(f"v_add_u32 {vr(x)}, 192, {vr(x)}")
        V(f"v_lshlrev_b32 {vr(y)}, 3, {vr(m)}")
        V(f"v_add_u32 {vr(y)}, {Z}, {vr(y)}")
        V(f"v_cndmask_b32_e64 {vr(PT)}, {vr(x)}, {vr(y)}, {sr(sMask, 2)}")
        V(f"v_mov_b32 {vr(x)}, {WIN}")
        V(f"v_mov_b32 {vr(y)}, 2016")
        V(f"v_cndmask_b32_e64 {vr(D1)}, {vr(x)}, {vr(y)}, {sr(sMask, 2)}")
        V(f"v_mov_b32 {vr(x)}, {(-WIN) & 0xFFFFFFFF}")
        V(f"v_mov_b32 {vr(y)}, {(-1680) & 0xFFFFFFFF}")
        V(f"v_cndmask_b32_e64 {vr(x)}, {vr(x)}, {vr(y)}, {sr(sMask, 2)}")
        V(f"v_accvgpr_write_b32 {ar(s.ST_D2)}, {vr(x)}")
        V(f"v_accvgpr_write_b32 {ar(s.ST_XA)}, {vr(XA)}")
        V(f"v_and_b32 {vr(x)}, 7, {vr(m)}")
        V(f"v_lshrrev_b32 {vr(y)}, 1, {vr(x)}")
        V(f"v_xor_b32 {vr(y)}, {vr(y)}, {vr(g)}")
        V(f"v_lshlrev_b32 {vr(y)}, 4, {vr(y)}")
        V(f"v_lshl_add_u32 {vr(y)}, {vr(x)}, 7, {vr(y)}")
        V(f"v_lshrrev_b32 {vr(x)}, 3, {vr(m)}")
        V(f"v_mul_u32_u24 {vr(x)}, 1088, {vr(x)}")
        V(f"v_add_u32 {vr(y)}, {vr(y)}, {vr(x)}")
        V(f"v_add_u32 {vr(PV)}, {WIN}, {vr(y)}")
        V(f"v_lshrrev_b32 {vr(x)}, 3, {vr(m)}")
        V(f"v_mul_u32_u24 {vr(x)}, 12, {vr(x)}")
        V(f"v_xor_b32 {vr(x)}, {vr(x)}, {vr(m)}")
        V(f"v_mul_u32_u24 {vr(x)}, 832, {vr(x)}")
        V(f"v_lshl_add_u32 {vr(x)}, {vr(g)}, 4, {vr(x)}")
        V(f"v_add_u32 {vr(PV6)}, {T6}, {vr(x)}")
        XAk, bgk, blk = XF + 8, XF + 9, XF + 10
        XAk, bgk, blk = TMP, t[27], t[26]
        V(f"v_mov_b32 {vr(XAk)}, {vr(XA)}")
        V(f"v_mov_b32 {vr(bgk)}, {vr(bg)}")
        V(f"v_mov_b32 {vr(blk)}, {vr(bl)}")
        for i in range(26):
            V(f"v_mov_b32 {vr(H0 + i)}, 0")
        S("s_waitcnt lgkmcnt(0)")
        if c.stamps:
            S(f"s_memtime s[62:63]")
        for base, n in ((S_X, 16384 * 832), (S_U, NL * LSTR), (S_V, NL * LSTR), (S_B, NL * 832), (S_O, 16384 * 832)):
            S(f"s_mov_b32 {sr(base + 2)}, {n}")
            S(f"s_mov_b32 {sr(base + 3)}, 0x20000")
        S(f"s_cmp_eq_u32 {sr(sW)}, 3")
        S(f"s_cselect_b32 {sr(S_M)}, {sr(S_U)}, {sr(S_V)}")
        S(f"s_cselect_b32 {sr(S_M + 1)}, {sr(S_U + 1)}, {sr(S_V + 1)}")
        S(f"s_mov_b32 {sr(S_M + 2)}, {NL * LSTR}")
        S(f"s_mov_b32 {sr(S_M + 3)}, 0x20000")

        def dma(g):
            for sc, v in s.dma_items(g):
                if sc is not None:
                    o.append(sc)
                    o.append(I("s_nop 0", "salu"))
                o.append(v)

        def xload(f):
            dst = xo(f, 0) if f < 10 else xbuf(f)
            o.append(I(f"buffer_load_dwordx4 {vr(dst, 4)}, {vr(XAk)}, {sr(S_X, 4)}, {sr(sXo)} offen offset:{64 * f}{c.xmod}", "vload", grp=f"X{f}"))

        def stamp(k):
            if c.stamps and c.stamps != "rt":
                S(f"s_memtime s[{80 + 2 * k}:{81 + 2 * k}]")
        stamp(0)
        dma("WA"); dma("WB"); dma("V0")
        S(f"s_mov_b32 m0, {sr(sT6m)}"); S("s_nop 0")
        o.append(I(f"buffer_load_dwordx4 {vr(DU)}, {sr(S_V, 4)}, {sr(sT0)} offen lds", "dma", grp="T6"))
        S(f"s_mov_b32 m0, {sr(sT2)}"); S("s_nop 0")
        o.append(I(f"buffer_load_dwordx4 {vr(DU)}, {sr(S_V, 4)}, {sr(sT1)} offen lds", "dma", grp="T6b"))
        xload(0); xload(1)
        for p in range(13):
            o.append(I(f"buffer_load_short_d16_hi {vr(H0 + 2 * p)}, {vr(bgk)}, {sr(S_B, 4)}, 0 offen offset:{64 * p}", "vload", grp="BI"))
        if c.pf_w:
            S(f"s_lshr_b32 {sr(sT3)}, s2, 3")
            S(f"s_and_b32 {sr(sT3)}, {sr(sT3)}, 31")
            S(f"s_mul_i32 {sr(sT3)}, {sr(sT3)}, {NL * LSTR // 32}")
            V(f"v_lshlrev_b32 {vr(1)}, 2, {vr(DU)}")
            S(f"s_lshl_b32 {sr(sCnt)}, {sr(sW)}, 12")
            S(f"s_add_u32 {sr(sT3)}, {sr(sT3)}, {sr(sCnt)}")
            S(f"s_mov_b32 {sr(sCnt)}, {c.nlayers - 2}")
            PFD = s.ST + 2
            o.append(I(f"buffer_load_dword {ar(PFD)}, {vr(1)}, {sr(S_V, 4)}, {sr(sT3)} offen", "vload", grp="PW"))
            o.append(I(f"buffer_load_dword {ar(PFD + 1)}, {vr(1)}, {sr(S_U, 4)}, {sr(sT3)} offen", "vload", grp="PW"))
        dma("V1"); xload(2); xload(3)
        dma("V2"); xload(4); xload(5)
        dma("V3"); xload(6); xload(7)
        dma("V4")
        for f in range(8, 13):
            xload(f)
        stamp(1)
        for i in range(104):
            V(f"v_mov_b32 {vr(C0 + i)}, 1.0")
        for e in range(6):
            V(f"v_accvgpr_write_b32 {ar(s.TR0 + 4 * e + 2)}, 0")
            V(f"v_accvgpr_write_b32 {ar(s.TR0 + 4 * e + 3)}, 0")
        stamp(2)
        w = I(None, "wait"); w.wait = dict(vm=["BI"], lg=False); o.append(w)
        stamp(3)
        if c.stamps:
            S("s_waitcnt lgkmcnt(0)")
        for p in range(13):
            imm = SLOT * (p % 7) + (2016 if p >= 7 else 0)
            o.append(I(f"ds_write_b64 {vr(blk)}, {vr(H0 + 2 * p, 2)} offset:{imm}", "dsw"))
        if c.stamps:
            S("s_waitcnt lgkmcnt(0)")
        stamp(4)
        w = I(None, "wait"); w.wait = dict(vm=["WA", "WB", "V0", "T6", "T6b", "X0"], lg=False, lg0=True); o.append(w)
        stamp(5)
        o.append(I("s_barrier", "barrier"))
        if c.stamps:
            S(f"s_memtime s[64:65]")
            if c.stamps == "rt":
                S(f"s_memrealtime s[80:81]")
            S("s_waitcnt lgkmcnt(0)")
        for T in range(c.LA):
            o.append(s.slot_desc(T, True)[1])
            if T == s.g1_slot_of(0, 5):
                o.append(I(f"v_subrev_u32 {vr(PV)}, {WIN}, {vr(PV)}", "valu"))
        w = I(None, "wait"); w.wait = dict(vm=[], lg=True); o.append(w)
        return o

    BI_R, BI_QA, BI_QB, BI_AD = 0, 8, 12, 16

    def prologue2(s):
        c = s.c
        o = []
        S = lambda t: o.append(I(t, "salu"))
        V = lambda t: o.append(I(t, "valu"))
        t = [H0 + i for i in range(28)]
        S(f"s_cmp_ge_u32 s2, 256")
        S(f"s_cbranch_scc1 L_end")
        S(f"s_load_dwordx2 {sr(S_X, 2)}, s[0:1], 0")
        S(f"s_load_dwordx2 {sr(S_V, 2)}, s[0:1], 16")
        S(f"s_load_dwordx2 {sr(S_U, 2)}, s[0:1], 8")
        S(f"s_load_dwordx2 {sr(S_B, 2)}, s[0:1], 24")
        S(f"s_load_dwordx2 {sr(S_O, 2)}, s[0:1], 32")
        if c.stamps:
            S(f"s_load_dwordx2 {sr(sDbg, 2)}, s[0:1], {40 if c.dbg else 48}")
            S(f"s_memtime s[60:61]")
            S(f"s_memrealtime s[70:71]")
        lane, w, g, m = t[0], t[1], t[2], t[3]
        V(f"v_lshrrev_b32 {vr(w)}, 6, v0")
        V(f"v_and_b32 {vr(lane)}, 63, v0")
        V(f"v_readfirstlane_b32 {sr(sW)}, {vr(w)}")
        if c.pf_code:
            S(f"s_getpc_b64 {sr(S_M, 2)}")
            o.append(I("L_pc:", "label"))
            S(f"s_mov_b32 {sr(S_M + 2)}, L_end-L_pc")
            S(f"s_mov_b32 {sr(S_M + 3)}, 0x20000")
            V(f"v_lshlrev_b32 {vr(t[20])}, 6, v0")
            o.append(I(f"buffer_load_dword {ar(s.ST + 4)}, {vr(t[20])}, {sr(S_M, 4)}, 0 offen", "vload", grp="PC"))
            if c.wvloop:
                V(f"v_add_u32 {vr(t[20])}, 16384, {vr(t[20])}")
                o.append(I(f"buffer_load_dword {ar(s.ST + 5)}, {vr(t[20])}, {sr(S_M, 4)}, 0 offen", "vload", grp="PC"))
        V(f"v_lshrrev_b32 {vr(g)}, 4, {vr(lane)}")
        V(f"v_and_b32 {vr(m)}, 15, {vr(lane)}")
        j, q, x, y = t[4], t[5], t[6], t[7]
        V(f"v_lshrrev_b32 {vr(j)}, 3, {vr(lane)}")
        V(f"v_and_b32 {vr(q)}, 7, {vr(lane)}")
        V(f"v_mul_u32_u24 {vr(x)}, {2 * 832}, {vr(j)}")
        V(f"v_lshrrev_b32 {vr(y)}, 1, {vr(j)}")
        V(f"v_xor_b32 {vr(y)}, {vr(y)}, {vr(q)}")
        V(f"v_lshl_add_u32 {vr(DV)}, {vr(y)}, 4, {vr(x)}")
        V(f"v_lshlrev_b32 {vr(DU)}, 4, {vr(lane)}")
        XA = TMP
        V(f"v_mul_u32_u24 {vr(XA)}, 832, {vr(m)}")
        V(f"v_lshl_add_u32 {vr(XA)}, {vr(g)}, 4, {vr(XA)}")
        S(f"s_and_b32 {sr(sT0)}, {sr(sW)}, 1")
        S(f"s_lshr_b32 {sr(sT1)}, {sr(sW)}, 1")
        S(f"s_mul_i32 {sr(sVb)}, {sr(sT0)}, {SLOT}")
        S(f"s_mul_i32 {sr(sT2)}, {sr(sT1)}, 1088")
        S(f"s_add_u32 {sr(sVb)}, {sr(sVb)}, {sr(sT2)}")
        S(f"s_mul_i32 {sr(sVs0)}, {sr(sT0)}, {832 + 64}")
        S(f"s_mul_i32 {sr(sT2)}, {sr(sT1)}, {16 * 832}")
        S(f"s_add_u32 {sr(sVs0)}, {sr(sVs0)}, {sr(sT2)}")
        S(f"s_add_u32 {sr(sVs0 + 1)}, {sr(sVs0)}, {32 * 832}")
        S(f"s_add_u32 {sr(sVs0 + 2)}, {sr(sVs0)}, {64 * 832}")
        S(f"s_mul_i32 {sr(sWAs)}, {sr(sW)}, {16 * 832}")
        S(f"s_mul_i32 {sr(sWAm)}, {sr(sT1)}, {SLOT}")
        S(f"s_mul_i32 {sr(sT2)}, {sr(sT0)}, 1088")
        S(f"s_add_u32 {sr(sWAm)}, {sr(sWAm)}, {sr(sT2)}")
        S(f"s_add_u32 {sr(sWAm)}, {sr(sWAm)}, {Z + 4032 - 768}")
        S(f"s_mul_i32 {sr(sWBs)}, {sr(sT0)}, {16 * 832}")
        S(f"s_add_u32 {sr(sWBs)}, {sr(sWBs)}, {64 * 832}")
        S(f"s_add_u32 {sr(sWBm)}, {sr(sT2)}, {Z + 2 * SLOT + 4032 - 768}")
        S(f"s_lshl_b32 {sr(sT3)}, {sr(sW)}, 10")
        S(f"s_add_u32 {sr(sT6m)}, {sr(sT3)}, {T6}")
        S(f"s_add_u32 {sr(sLm)}, {sr(sT3)}, 81920")
        S(f"s_add_u32 {sr(sT6s)}, {sr(sT3)}, {96 * 832 + LSTR}")
        S(f"s_add_u32 {sr(sMXs)}, {sr(sT3)}, {96 * 832 + LSTR + 4096}")
        S(f"s_add_u32 {sr(sMXm)}, {sr(sT3)}, {T6 + 4096}")
        S(f"s_add_u32 {sr(sT0)}, {sr(sT3)}, {96 * 832}")
        S(f"s_min_u32 {sr(sT2)}, {sr(sW)}, 2")
        S(f"s_lshl_b32 {sr(sT2)}, {sr(sT2)}, 10")
        S(f"s_add_u32 {sr(sT1)}, {sr(sT2)}, {96 * 832 + 4096}")
        S(f"s_add_u32 {sr(sT2)}, {sr(sT2)}, {T6 + 4096}")
        S(f"s_lshl_b32 {sr(sXo)}, s2, 2")
        S(f"s_add_u32 {sr(sXo)}, {sr(sXo)}, {sr(sW)}")
        S(f"s_mul_i32 {sr(sXo)}, {sr(sXo)}, {16 * 832}")
        for base, n in ((S_X, 16384 * 832), (S_V, NL * LSTR), (S_U, NL * LSTR), (S_B, NL * 832), (S_O, 16384 * 832)):
            S(f"s_mov_b32 {sr(base + 2)}, {n}")
            S(f"s_mov_b32 {sr(base + 3)}, 0x20000")
        S("s_waitcnt lgkmcnt(0)")
        if c.stamps:
            S(f"s_memtime s[62:63]")

        def stamp(k):
            if c.stamps and c.stamps != "rt":
                S(f"s_memtime s[{80 + 2 * k}:{81 + 2 * k}]")

        def dma(gname):
            for sc, v in s.dma_items(gname):
                if sc is not None:
                    o.append(sc)
                    o.append(I("s_nop 0", "salu"))
                o.append(v)

        def xload(f):
            dst = xo(f, 0) if f < 10 else xbuf(f)
            o.append(I(f"buffer_load_dwordx4 {vr(dst, 4)}, {vr(XA)}, {sr(S_X, 4)}, {sr(sXo)} offen offset:{64 * f}{c.xmod}", "vload", grp=f"X{f}"))

        stamp(0)
        dma("WA"); dma("WB"); dma("V0")
        S(f"s_mov_b32 m0, {sr(sT6m)}"); S("s_nop 0")
        o.append(I(f"buffer_load_dwordx4 {vr(DU)}, {sr(S_V, 4)}, {sr(sT0)} offen lds", "dma", grp="T6"))
        S(f"s_mov_b32 m0, {sr(sT2)}"); S("s_nop 0")
        o.append(I(f"buffer_load_dwordx4 {vr(DU)}, {sr(S_V, 4)}, {sr(sT1)} offen lds", "dma", grp="T6b"))
        xload(0); xload(1)

        def pfw():
            S(f"s_lshr_b32 {sr(sT3)}, s2, 3")
            S(f"s_and_b32 {sr(sT3)}, {sr(sT3)}, 31")
            S(f"s_mul_i32 {sr(sT3)}, {sr(sT3)}, {NL * LSTR // 32}")
            V(f"v_lshlrev_b32 {vr(t[21])}, 2, {vr(DU)}")
            S(f"s_lshl_b32 {sr(sT0)}, {sr(sW)}, 12")
            S(f"s_add_u32 {sr(sT3)}, {sr(sT3)}, {sr(sT0)}")
            PFD = s.ST + 2
            o.append(I(f"buffer_load_dword {ar(PFD)}, {vr(t[21])}, {sr(S_V, 4)}, {sr(sT3)} offen", "vload", grp="PW"))
            o.append(I(f"buffer_load_dword {ar(PFD + 1)}, {vr(t[21])}, {sr(S_U, 4)}, {sr(sT3)} offen", "vload", grp="PW"))
        bl, bm, bg = t[8], t[9], t[10]
        def biloads():
            V(f"v_lshrrev_b32 {vr(bl)}, 3, {vr(lane)}")
            V(f"v_min_u32 {vr(bl)}, 5, {vr(bl)}")
            V(f"v_and_b32 {vr(bm)}, 7, {vr(lane)}")
            V(f"v_mul_u32_u24 {vr(bg)}, 832, {vr(bl)}")
            V(f"v_lshl_add_u32 {vr(bg)}, {vr(bm)}, 3, {vr(bg)}")
            S(f"s_lshl_b32 {sr(sT0)}, {sr(sW)}, 6")
            for k in range(4):
                so = sr(sT0) if k < 3 else "0"
                o.append(I(f"buffer_load_dwordx2 {vr(s.BI_R + 2 * k, 2)}, {vr(bg)}, {sr(S_B, 4)}, {so} offen offset:{256 * k}", "vload", grp="BI"))
        if c.bi_early:
            biloads()
        if c.pf_w == 1:
            pfw()
        dma("V1"); xload(2); xload(3)
        dma("V2"); xload(4); xload(5)
        dma("V3"); xload(6); xload(7)
        dma("V4")
        for f in range(8, 13):
            xload(f)
        if c.pf_w == 2:
            pfw()
        if not c.bi_early:
            biloads()
        stamp(1)
        V(f"v_mul_u32_u24 {vr(bl)}, 336, {vr(bl)}")
        V(f"v_lshl_add_u32 {vr(bl)}, {vr(bm)}, 4, {vr(bl)}")
        V(f"v_add_u32 {vr(bl)}, {Z}, {vr(bl)}")
        S(f"s_mul_i32 {sr(sT0)}, {sr(sW)}, {SLOT}")
        V(f"v_add_u32 {vr(s.BI_AD)}, {sr(sT0)}, {vr(bl)}")
        S(f"s_add_u32 {sr(sT1)}, {sr(sT0)}, {4 * SLOT}")
        S(f"s_cmp_eq_u32 {sr(sW)}, 3")
        S(f"s_cselect_b32 {sr(sT1)}, 2016, {sr(sT1)}")
        V(f"v_add_u32 {vr(s.BI_AD + 1)}, {sr(sT1)}, {vr(bl)}")
        S(f"s_add_u32 {sr(sT1)}, {sr(sT0)}, {SLOT + 2016}")
        V(f"v_add_u32 {vr(s.BI_AD + 2)}, {sr(sT1)}, {vr(bl)}")
        V(f"v_add_u32 {vr(s.BI_AD + 3)}, {5 * SLOT + 2016}, {vr(bl)}")
        for r in (s.BI_QA + 1, s.BI_QA + 3, s.BI_QB + 1, s.BI_QB + 3):
            V(f"v_mov_b32 {vr(r)}, 0")
        S(f"s_lshl_b32 {sr(sUm)}, {sr(sW)}, 12")
        S(f"s_cmp_eq_u32 {sr(sW)}, 3")
        S(f"s_cselect_b32 {sr(sMXs)}, 86016, {sr(sMXs)}")
        S(f"s_cselect_b32 {sr(sMXm)}, 86016, {sr(sMXm)}")
        S(f"s_cselect_b32 {sr(S_M)}, {sr(S_U)}, {sr(S_V)}")
        S(f"s_cselect_b32 {sr(S_M + 1)}, {sr(S_U + 1)}, {sr(S_V + 1)}")
        S(f"s_mov_b32 {sr(S_M + 2)}, {NL * LSTR}")
        S(f"s_mov_b32 {sr(S_M + 3)}, 0x20000")
        S(f"s_mov_b32 {sr(sMask)}, 0")
        S(f"s_mov_b32 {sr(sMask + 1)}, -1")
        S(f"s_mov_b32 {sr(sCnt)}, {c.nlayers - 2}")
        rho = t[13]
        V(f"v_lshrrev_b32 {vr(x)}, 2, {vr(m)}")
        V(f"v_and_b32 {vr(y)}, 3, {vr(m)}")
        V(f"v_lshlrev_b32 {vr(x)}, 2, {vr(x)}")
        V(f"v_add_u32 {vr(x)}, {vr(x)}, {vr(y)}")
        V(f"v_lshlrev_b32 {vr(rho)}, 1, {vr(x)}")
        V(f"v_and_b32 {vr(x)}, 7, {vr(m)}")
        V(f"v_lshrrev_b32 {vr(y)}, 1, {vr(x)}")
        V(f"v_xor_b32 {vr(y)}, {vr(y)}, {vr(g)}")
        V(f"v_lshlrev_b32 {vr(y)}, 4, {vr(y)}")
        V(f"v_lshl_add_u32 {vr(y)}, {vr(x)}, 7, {vr(y)}")
        V(f"v_lshrrev_b32 {vr(x)}, 3, {vr(m)}")
        V(f"v_mul_u32_u24 {vr(x)}, 1088, {vr(x)}")
        V(f"v_add_u32 {vr(y)}, {vr(y)}, {vr(x)}")
        V(f"v_add_u32 {vr(PV)}, {WIN}, {vr(y)}")
        V(f"v_lshrrev_b32 {vr(x)}, 3, {vr(m)}")
        V(f"v_mul_u32_u24 {vr(x)}, 12, {vr(x)}")
        V(f"v_xor_b32 {vr(x)}, {vr(x)}, {vr(m)}")
        V(f"v_mul_u32_u24 {vr(x)}, 832, {vr(x)}")
        V(f"v_lshl_add_u32 {vr(x)}, {vr(g)}, 4, {vr(x)}")
        V(f"v_add_u32 {vr(PV6)}, {T6}, {vr(x)}")
        V(f"v_mul_u32_u24 {vr(x)}, 208, {vr(rho)}")
        V(f"v_lshl_add_u32 {vr(PU)}, {vr(g)}, 4, {vr(x)}")
        V(f"v_lshl_add_u32 {vr(x)}, {vr(g)}, 3, {vr(x)}")
        V(f"v_add_u32 {vr(x)}, 192, {vr(x)}")
        V(f"v_lshlrev_b32 {vr(y)}, 3, {vr(m)}")
        V(f"v_add_u32 {vr(y)}, {Z}, {vr(y)}")
        V(f"v_cndmask_b32_e64 {vr(PT)}, {vr(x)}, {vr(y)}, {sr(sMask, 2)}")
        V(f"v_mov_b32 {vr(x)}, {WIN}")
        V(f"v_mov_b32 {vr(y)}, 2016")
        V(f"v_cndmask_b32_e64 {vr(D1)}, {vr(x)}, {vr(y)}, {sr(sMask, 2)}")
        V(f"v_mov_b32 {vr(x)}, {(-WIN) & 0xFFFFFFFF}")
        V(f"v_mov_b32 {vr(y)}, {(-1680) & 0xFFFFFFFF}")
        V(f"v_cndmask_b32_e64 {vr(x)}, {vr(x)}, {vr(y)}, {sr(sMask, 2)}")
        V(f"v_accvgpr_write_b32 {ar(s.ST_D2)}, {vr(x)}")
        V(f"v_accvgpr_write_b32 {ar(s.ST_XA)}, {vr(XA)}")
        for e in range(6):
            V(f"v_accvgpr_write_b32 {ar(s.TR0 + 4 * e + 2)}, 0")
            V(f"v_accvgpr_write_b32 {ar(s.TR0 + 4 * e + 3)}, 0")
        for i in range(20, 104):
            V(f"v_mov_b32 {vr(C0 + i)}, 1.0")
        stamp(2)
        w_ = I(None, "wait"); w_.wait = dict(vm=["WA", "WB", "V0", "T6", "T6b", "X0"], lg=False); o.append(w_)
        stamp(3)
        if c.stamps and c.stamps != "rt":
            S("s_waitcnt lgkmcnt(0)")
        o.append(I("s_barrier", "barrier"))
        if c.stamps:
            S(f"s_memtime s[64:65]")
            if c.stamps == "rt":
                S(f"s_memrealtime s[80:81]")
            S("s_waitcnt lgkmcnt(0)")
        for T in range(c.LA):
            o.append(s.slot_desc(T, True)[1])
            if T == s.g1_slot_of(0, 5):
                o.append(I(f"v_subrev_u32 {vr(PV)}, {WIN}, {vr(PV)}", "valu"))
        w_ = I(None, "wait"); w_.wait = dict(vm=[], lg=True); o.append(w_)
        return o

    def prologue3(s):
        c = s.c
        o = []
        cur = [o]
        S = lambda t: cur[0].append(I(t, "salu"))
        V = lambda t: cur[0].append(I(t, "valu"))
        t = [H0 + i for i in range(28)]
        sP = list(range(92, 100))
        if not c._hdr:
            S(f"s_cmp_ge_u32 s2, 256")
            S(f"s_cbranch_scc1 L_end")
        S(f"s_load_dwordx2 {sr(S_V, 2)}, s[0:1], 16")
        S(f"s_load_dwordx2 {sr(S_X, 2)}, s[0:1], 0")
        S(f"s_load_dwordx2 {sr(S_U, 2)}, s[0:1], 8")
        S(f"s_load_dwordx2 {sr(S_B, 2)}, s[0:1], 24")
        S(f"s_load_dwordx2 {sr(S_O, 2)}, s[0:1], 32")
        if c.keep and not c.stamps:
            S(f"s_load_dwordx2 {sr(sDbg, 2)}, s[0:1], 48")
        if c.stamps:
            S(f"s_load_dwordx2 {sr(sDbg, 2)}, s[0:1], {40 if c.dbg else 48}")
            S(f"s_memtime s[60:61]")
            S(f"s_memrealtime s[70:71]")
        lane, w, g, m = t[0], t[1], t[2], t[3]
        V(f"v_lshrrev_b32 {vr(w)}, 6, v0")
        V(f"v_and_b32 {vr(lane)}, 63, v0")
        V(f"v_readfirstlane_b32 {sr(sW)}, {vr(w)}")
        if c.pf_code:
            if not c._hdr:
                S(f"s_getpc_b64 {sr(S_M, 2)}")
                o.append(I("L_pc:", "label"))
            S(f"s_mov_b32 {sr(S_M + 2)}, {'L_fin' if c._hdr else 'L_end'}-L_pc")
            S(f"s_mov_b32 {sr(S_M + 3)}, 0x20000")
            if c.pf_slice:
                pfl = -(-c.pf_bytes // (c.pf_slice * 256))
                assert pfl <= 31
                S(f"s_lshr_b32 s4, s2, 3")
                S(f"s_and_b32 s4, s4, {c.pf_slice - 1}")
                S(f"s_lshl_b32 s4, s4, 2")
                S(f"s_add_u32 s4, s4, {sr(sW)}")
                S(f"s_mul_i32 s4, s4, {64 * pfl}")
                V(f"v_lshlrev_b32 {vr(t[20])}, 6, {vr(lane)}")
                S(f"s_mov_b64 exec, {hex((1 << pfl) - 1)}")
                o.append(I(f"buffer_load_dword {ar(s.ST + 4)}, {vr(t[20])}, {sr(S_M, 4)}, s4 offen", "vload", grp="PC"))
                S(f"s_mov_b64 exec, -1")
            else:
                V(f"v_lshlrev_b32 {vr(t[20])}, 6, v0")
                o.append(I(f"buffer_load_dword {ar(s.ST + 4)}, {vr(t[20])}, {sr(S_M, 4)}, 0 offen", "vload", grp="PC"))
                for k in range(1, c.pf_code):
                    V(f"v_add_u32 {vr(t[20])}, 16384, {vr(t[20])}")
                    o.append(I(f"buffer_load_dword {ar(s.ST + 4 + k)}, {vr(t[20])}, {sr(S_M, 4)}, 0 offen", "vload", grp="PC"))
        V(f"v_lshrrev_b32 {vr(g)}, 4, {vr(lane)}")
        V(f"v_and_b32 {vr(m)}, 15, {vr(lane)}")
        j, q, x, y = t[4], t[5], t[6], t[7]
        V(f"v_lshrrev_b32 {vr(j)}, 3, {vr(lane)}")
        V(f"v_and_b32 {vr(q)}, 7, {vr(lane)}")
        V(f"v_mul_u32_u24 {vr(x)}, {2 * 832}, {vr(j)}")
        V(f"v_lshrrev_b32 {vr(y)}, 1, {vr(j)}")
        V(f"v_xor_b32 {vr(y)}, {vr(y)}, {vr(q)}")
        V(f"v_lshl_add_u32 {vr(DV)}, {vr(y)}, 4, {vr(x)}")
        V(f"v_lshlrev_b32 {vr(DU)}, 4, {vr(lane)}")
        XA = TMP
        V(f"v_mul_u32_u24 {vr(XA)}, 832, {vr(m)}")
        V(f"v_lshl_add_u32 {vr(XA)}, {vr(g)}, 4, {vr(XA)}")
        bl, bm, bg = t[8], t[9], t[10]
        V(f"v_min_u32 {vr(bl)}, 5, {vr(j)}")
        V(f"v_mul_u32_u24 {vr(bg)}, 832, {vr(bl)}")
        V(f"v_lshl_add_u32 {vr(bg)}, {vr(q)}, 3, {vr(bg)}")
        V(f"v_lshlrev_b32 {vr(t[21])}, 2, {vr(DU)}")
        V(f"v_mul_u32_u24 {vr(t[22])}, 373, {vr(lane)}")
        V(f"v_lshrrev_b32 {vr(t[22])}, 12, {vr(t[22])}")
        V(f"v_mul_u32_u24 {vr(t[23])}, 11, {vr(t[22])}")
        V(f"v_sub_u32 {vr(t[23])}, {vr(lane)}, {vr(t[23])}")
        V(f"v_mul_u32_u24 {vr(t[22])}, {LSTR}, {vr(t[22])}")
        V(f"v_lshl_add_u32 {vr(t[22])}, {vr(t[23])}, 6, {vr(t[22])}")
        S(f"s_and_b32 {sr(sT0)}, {sr(sW)}, 1")
        S(f"s_lshr_b32 {sr(sT1)}, {sr(sW)}, 1")
        S(f"s_mul_i32 {sr(sVb)}, {sr(sT0)}, {SLOT}")
        S(f"s_mul_i32 {sr(sT2)}, {sr(sT1)}, 1088")
        S(f"s_add_u32 {sr(sVb)}, {sr(sVb)}, {sr(sT2)}")
        S(f"s_mul_i32 {sr(sVs0)}, {sr(sT0)}, {832 + 64}")
        S(f"s_mul_i32 {sr(sT2)}, {sr(sT1)}, {16 * 832}")
        S(f"s_add_u32 {sr(sVs0)}, {sr(sVs0)}, {sr(sT2)}")
        S(f"s_add_u32 {sr(sVs0 + 1)}, {sr(sVs0)}, {32 * 832}")
        S(f"s_add_u32 {sr(sVs0 + 2)}, {sr(sVs0)}, {64 * 832}")
        S(f"s_mul_i32 {sr(sWAs)}, {sr(sW)}, {16 * 832}")
        S(f"s_mul_i32 {sr(sWAm)}, {sr(sT1)}, {SLOT}")
        S(f"s_mul_i32 {sr(sT2)}, {sr(sT0)}, 1088")
        S(f"s_add_u32 {sr(sWAm)}, {sr(sWAm)}, {sr(sT2)}")
        S(f"s_add_u32 {sr(sWAm)}, {sr(sWAm)}, {Z + 4032 - 768}")
        S(f"s_mul_i32 {sr(sWBs)}, {sr(sT0)}, {16 * 832}")
        S(f"s_add_u32 {sr(sWBs)}, {sr(sWBs)}, {64 * 832}")
        S(f"s_add_u32 {sr(sWBm)}, {sr(sT2)}, {Z + 2 * SLOT + 4032 - 768}")
        S(f"s_lshl_b32 {sr(sT3)}, {sr(sW)}, 10")
        S(f"s_add_u32 {sr(sT6m)}, {sr(sT3)}, {T6}")
        S(f"s_add_u32 {sr(sLm)}, {sr(sT3)}, 81920")
        S(f"s_add_u32 {sr(sT6s)}, {sr(sT3)}, {96 * 832 + LSTR}")
        S(f"s_add_u32 {sr(sMXs)}, {sr(sT3)}, {96 * 832 + LSTR + 4096}")
        S(f"s_add_u32 {sr(sMXm)}, {sr(sT3)}, {T6 + 4096}")
        S(f"s_add_u32 {sr(sP[0])}, {sr(sT3)}, {96 * 832}")
        S(f"s_min_u32 {sr(sP[2])}, {sr(sW)}, 2")
        S(f"s_lshl_b32 {sr(sP[2])}, {sr(sP[2])}, 10")
        S(f"s_add_u32 {sr(sP[1])}, {sr(sP[2])}, {96 * 832 + 4096}")
        S(f"s_add_u32 {sr(sP[2])}, {sr(sP[2])}, {T6 + 4096}")
        S(f"s_lshl_b32 {sr(sXo)}, s2, 2")
        S(f"s_add_u32 {sr(sXo)}, {sr(sXo)}, {sr(sW)}")
        S(f"s_mul_i32 {sr(sXo)}, {sr(sXo)}, {16 * 832}")
        S(f"s_lshl_b32 {sr(sP[3])}, {sr(sW)}, 6")
        S(f"s_lshr_b32 {sr(sP[4])}, s2, 3")
        S(f"s_and_b32 {sr(sP[4])}, {sr(sP[4])}, 31")
        S(f"s_mul_i32 {sr(sP[4])}, {sr(sP[4])}, {NL * LSTR // 32}")
        S(f"s_lshl_b32 {sr(sP[5])}, {sr(sW)}, 12")
        S(f"s_add_u32 {sr(sP[4])}, {sr(sP[4])}, {sr(sP[5])}")
        S(f"s_lshr_b32 {sr(sP[6])}, s2, 3")
        S(f"s_and_b32 {sr(sP[6])}, {sr(sP[6])}, 31")
        S(f"s_mul_i32 {sr(sP[6])}, {sr(sP[6])}, {LSTR // 32}")
        S(f"s_mul_i32 {sr(sP[5])}, {sr(sW)}, {LSTR // 128}")
        S(f"s_add_u32 {sr(sP[6])}, {sr(sP[6])}, {sr(sP[5])}")
        S(f"s_lshr_b32 s4, s2, 3")
        S(f"s_and_b32 s4, s4, 31")
        S(f"s_lshl_b32 s4, s4, 2")
        S(f"s_add_u32 s4, s4, {sr(sW)}")
        S(f"s_mul_i32 s4, s4, {LSTR // 128}")
        S(f"s_and_b32 s4, s4, 0xffffffc0")
        S(f"s_add_u32 s5, s4, {LSTR}")
        S(f"s_add_u32 s6, s4, {2 * LSTR}")
        if c.keep:
            S(f"s_lshl_b32 s7, s2, 2")
            S(f"s_add_u32 s7, s7, {sr(sW)}")
            S(f"s_lshl_b32 s7, s7, 7")
            S(f"s_add_u32 s7, s7, 0x10000")
            S(f"s_mov_b32 {sr(sDbg + 2)}, 0x8000000")
            S(f"s_mov_b32 {sr(sDbg + 3)}, 0x20000")
        for base, n in ((S_V, NL * LSTR), (S_X, 16384 * 832), (S_U, NL * LSTR), (S_B, NL * 832), (S_O, 16384 * 832)):
            S(f"s_mov_b32 {sr(base + 2)}, {n}")
            S(f"s_mov_b32 {sr(base + 3)}, 0x20000")
        S("s_waitcnt lgkmcnt(0)")
        if c.stamps:
            S(f"s_memtime s[62:63]")

        def stamp(k):
            if c.stamps and c.stamps != "rt":
                S(f"s_memtime s[{80 + 2 * k}:{81 + 2 * k}]")

        s._dm = c.dmamod0 if c.dmamod0 is not None else c.dmamod
        items = []
        M0 = lambda txt: [I(txt, "salu"), I("s_nop 0", "salu")]
        for tok in c.p3order.split():
            if tok == "T6":
                items.append(M0(f"s_mov_b32 m0, {sr(sT6m)}") + [I(f"buffer_load_dwordx4 {vr(DU)}, {sr(S_V, 4)}, {sr(sP[0])} offen{s._dm} lds", "dma", grp="T6")])
            elif tok == "T6b":
                items.append(M0(f"s_mov_b32 m0, {sr(sP[2])}") + [I(f"buffer_load_dwordx4 {vr(DU)}, {sr(S_V, 4)}, {sr(sP[1])} offen{s._dm} lds", "dma", grp="T6b")])
            elif tok[0] == "X":
                f = int(tok[1:])
                dst = xo(f, 0) if f < 10 else xbuf(f)
                items.append([I(f"buffer_load_dwordx4 {vr(dst, 4)}, {vr(XA)}, {sr(S_X, 4)}, {sr(sXo)} offen offset:{64 * f}{c.xmod}", "vload", grp=f"X{f}")])
            elif tok == "BI":
                for k in range(4):
                    so = sr(sP[3]) if k < 3 else "0"
                    items.append([I(f"buffer_load_dwordx2 {vr(s.BI_R + 2 * k, 2)}, {vr(bg)}, {sr(S_B, 4)}, {so} offen offset:{256 * k}", "vload", grp="BI")])
            elif tok == "PW":
                if c.pf_w:
                    PFD = s.ST + 2
                    items.append([I(f"buffer_load_dword {ar(PFD)}, {vr(t[21])}, {sr(S_V, 4)}, {sr(sP[4])} offen{c.pmod}", "vload", grp="PW")])
                    items.append([I(f"buffer_load_dword {ar(PFD + 1)}, {vr(t[21])}, {sr(S_U, 4)}, {sr(sP[4])} offen{c.pmod}", "vload", grp="PW")])
            elif tok[0] == "Q":
                ly = int(tok[1]); srd = S_V if tok[2] == "V" else S_U
                items.append([I(f"buffer_load_dword {ar(s.ST + 2 + 2 * ly + (tok[2] == 'U'))}, {vr(DU)}, {sr(srd, 4)}, s{4 + ly} offen{c.pmod}", "vload", grp="PW")])
            elif tok[:2] == "P0":
                nl = int(tok[3:] or 1)
                srd = S_V if tok[2] == "V" else S_U
                items.append([I(f"s_mov_b64 exec, {hex((1 << (11 * nl)) - 1)}", "salu"),
                              I(f"buffer_load_dword {ar(s.ST + (2 if tok[2] == 'V' else 3))}, {vr(t[22])}, {sr(srd, 4)}, {sr(sP[6])} offen{c.pmod}", "vload", grp="PW"),
                              I(f"s_mov_b64 exec, -1", "salu")])
            else:
                for sc, v in s.dma_items(tok):
                    items.append((M0(sc.txt) if sc is not None else []) + [v])
        fill = []
        cur[0] = fill
        V(f"v_mul_u32_u24 {vr(bl)}, 336, {vr(bl)}")
        V(f"v_lshl_add_u32 {vr(bl)}, {vr(q)}, 4, {vr(bl)}")
        V(f"v_add_u32 {vr(bl)}, {Z}, {vr(bl)}")
        S(f"s_mul_i32 {sr(sT0)}, {sr(sW)}, {SLOT}")
        V(f"v_add_u32 {vr(s.BI_AD)}, {sr(sT0)}, {vr(bl)}")
        S(f"s_add_u32 {sr(sT1)}, {sr(sT0)}, {4 * SLOT}")
        S(f"s_cmp_eq_u32 {sr(sW)}, 3")
        S(f"s_cselect_b32 {sr(sT1)}, 2016, {sr(sT1)}")
        V(f"v_add_u32 {vr(s.BI_AD + 1)}, {sr(sT1)}, {vr(bl)}")
        S(f"s_add_u32 {sr(sT1)}, {sr(sT0)}, {SLOT + 2016}")
        V(f"v_add_u32 {vr(s.BI_AD + 2)}, {sr(sT1)}, {vr(bl)}")
        V(f"v_add_u32 {vr(s.BI_AD + 3)}, {5 * SLOT + 2016}, {vr(bl)}")
        for r in (s.BI_QA + 1, s.BI_QA + 3, s.BI_QB + 1, s.BI_QB + 3):
            V(f"v_mov_b32 {vr(r)}, 0")
        S(f"s_lshl_b32 {sr(sUm)}, {sr(sW)}, 12")
        S(f"s_cmp_eq_u32 {sr(sW)}, 3")
        S(f"s_cselect_b32 {sr(sMXs)}, 86016, {sr(sMXs)}")
        S(f"s_cselect_b32 {sr(sMXm)}, 86016, {sr(sMXm)}")
        S(f"s_cselect_b32 {sr(S_M)}, {sr(S_U)}, {sr(S_V)}")
        S(f"s_cselect_b32 {sr(S_M + 1)}, {sr(S_U + 1)}, {sr(S_V + 1)}")
        S(f"s_mov_b32 {sr(S_M + 2)}, {NL * LSTR}")
        S(f"s_mov_b32 {sr(S_M + 3)}, 0x20000")
        S(f"s_mov_b32 {sr(sMask)}, 0")
        S(f"s_mov_b32 {sr(sMask + 1)}, -1")
        S(f"s_mov_b32 {sr(sCnt)}, {c.nlayers - 2}")
        rho = t[13]
        V(f"v_lshrrev_b32 {vr(x)}, 2, {vr(m)}")
        V(f"v_and_b32 {vr(y)}, 3, {vr(m)}")
        V(f"v_lshlrev_b32 {vr(x)}, 2, {vr(x)}")
        V(f"v_add_u32 {vr(x)}, {vr(x)}, {vr(y)}")
        V(f"v_lshlrev_b32 {vr(rho)}, 1, {vr(x)}")
        V(f"v_and_b32 {vr(x)}, 7, {vr(m)}")
        V(f"v_lshrrev_b32 {vr(y)}, 1, {vr(x)}")
        V(f"v_xor_b32 {vr(y)}, {vr(y)}, {vr(g)}")
        V(f"v_lshlrev_b32 {vr(y)}, 4, {vr(y)}")
        V(f"v_lshl_add_u32 {vr(y)}, {vr(x)}, 7, {vr(y)}")
        V(f"v_lshrrev_b32 {vr(x)}, 3, {vr(m)}")
        V(f"v_mul_u32_u24 {vr(x)}, 1088, {vr(x)}")
        V(f"v_add_u32 {vr(y)}, {vr(y)}, {vr(x)}")
        V(f"v_add_u32 {vr(PV)}, {WIN}, {vr(y)}")
        V(f"v_lshrrev_b32 {vr(x)}, 3, {vr(m)}")
        V(f"v_mul_u32_u24 {vr(x)}, 12, {vr(x)}")
        V(f"v_xor_b32 {vr(x)}, {vr(x)}, {vr(m)}")
        V(f"v_mul_u32_u24 {vr(x)}, 832, {vr(x)}")
        V(f"v_lshl_add_u32 {vr(x)}, {vr(g)}, 4, {vr(x)}")
        V(f"v_add_u32 {vr(PV6)}, {T6}, {vr(x)}")
        if c.zrow:
            V(f"v_add_u32 {vr(x)}, 2, {vr(g)}")
            V(f"v_and_b32 {vr(x)}, 3, {vr(x)}")
            V(f"v_lshlrev_b32 {vr(x)}, 4, {vr(x)}")
            V(f"v_add_u32 {vr(x)}, {ZR}, {vr(x)}")
            V(f"v_cmp_gt_u32 vcc, 8, {vr(m)}")
            V(f"v_lshlrev_b32 {vr(y)}, 2, {vr(lane)}")
            S(f"s_lshl_b32 {sr(sT0)}, {sr(sW)}, 8")
            V(f"v_cndmask_b32 {vr(PV6)}, {vr(x)}, {vr(PV6)}, vcc")
            S(f"s_add_u32 {sr(sT0)}, {sr(sT0)}, {ZR}")
            V(f"v_mov_b32 {vr(x)}, 0")
            V(f"v_add_u32 {vr(y)}, {sr(sT0)}, {vr(y)}")
            cur[0].append(I(f"ds_write_b32 {vr(y)}, {vr(x)}", "dsw"))
        V(f"v_mul_u32_u24 {vr(x)}, 208, {vr(rho)}")
        V(f"v_lshl_add_u32 {vr(PU)}, {vr(g)}, 4, {vr(x)}")
        V(f"v_lshl_add_u32 {vr(x)}, {vr(g)}, 3, {vr(x)}")
        V(f"v_add_u32 {vr(x)}, 192, {vr(x)}")
        V(f"v_lshlrev_b32 {vr(y)}, 3, {vr(m)}")
        V(f"v_add_u32 {vr(y)}, {Z}, {vr(y)}")
        V(f"v_cndmask_b32_e64 {vr(PT)}, {vr(x)}, {vr(y)}, {sr(sMask, 2)}")
        V(f"v_mov_b32 {vr(x)}, {WIN}")
        V(f"v_mov_b32 {vr(y)}, 2016")
        V(f"v_cndmask_b32_e64 {vr(D1)}, {vr(x)}, {vr(y)}, {sr(sMask, 2)}")
        V(f"v_mov_b32 {vr(x)}, {(-WIN) & 0xFFFFFFFF}")
        V(f"v_mov_b32 {vr(y)}, {(-1680) & 0xFFFFFFFF}")
        V(f"v_cndmask_b32_e64 {vr(x)}, {vr(x)}, {vr(y)}, {sr(sMask, 2)}")
        V(f"v_accvgpr_write_b32 {ar(s.ST_D2)}, {vr(x)}")
        if c.smix:
            S(f"s_mul_i32 {sr(sT0)}, {sr(sW)}, 6144")
            S(f"s_add_u32 {sr(sT0)}, {sr(sT0)}, 139264")
            V(f"v_lshlrev_b32 {vr(y)}, 4, {vr(lane)}")
            V(f"v_add_u32 {vr(y)}, {sr(sT0)}, {vr(y)}")
            V(f"v_accvgpr_write_b32 a88, {vr(y)}")
        if c.stpat == "oct":
            V(f"v_mul_u32_u24 {vr(x)}, 1664, {vr(j)}")
            V(f"v_lshl_add_u32 {vr(x)}, {vr(q)}, 4, {vr(x)}")
            V(f"v_accvgpr_write_b32 {ar(s.ST_XA)}, {vr(x)}")
        else:
            V(f"v_accvgpr_write_b32 {ar(s.ST_XA)}, {vr(XA)}")
        for e in range(0 if c.tail16 else 2 * c.ntr):
            V(f"v_accvgpr_write_b32 {ar(s.TR0 + 4 * e + 2)}, 0")
            V(f"v_accvgpr_write_b32 {ar(s.TR0 + 4 * e + 3)}, 0")
        for i in range(c.xfill):
            V(f"v_mul_f32 {vr(C0 + 20 + i % 80)}, {vr((DV, PV, PU, PV6)[i & 3])}, {vr((PT, DU, D1, PV)[(i >> 2) & 3])}")
        for i in range(20, 104):
            V(f"v_mov_b32 {vr(C0 + i)}, 1.0")
        cur[0] = o
        stamp(0)
        k = 0
        for n, it in enumerate(items):
            o.extend(it)
            if n + 1 >= c.p3start:
                o.extend(fill[k:k + c.p3k]); k += c.p3k
        stamp(1)
        o.extend(fill[k:])
        if c.pw1:
            V(f"v_add_u32 {vr(TMP)}, {LSTR}, {vr(t[22])}")
        stamp(2)
        if not c.bias_in:
            w_ = I(None, "wait"); w_.wait = dict(vm=["BI"], lg=False); o.append(w_)
            o.extend(s.bias_ops())
        stamp(3)
        w_ = I(None, "wait"); w_.wait = dict(vm=["WA", "WB", "V0", "T6", "T6b", "X0"] + [f"X{f}" for f in range(1, c.x0wait + 1)], lg=False, lg0=True); o.append(w_)
        stamp(4)
        o.append(I("s_barrier", "barrier"))
        if c.delayb:
            S(f"s_mov_b32 s69, {c.delayb}")
            o.append(I("L_dlyb:", "label"))
            for _ in range(8):
                S("s_nop 0")
            S("s_sub_u32 s69, s69, 1")
            S("s_cmp_lg_u32 s69, 0")
            S("s_cbranch_scc1 L_dlyb")
        if c.stamps:
            S(f"s_memtime s[64:65]")
            if c.stamps == "rt":
                S(f"s_memrealtime s[80:81]")
            S("s_waitcnt lgkmcnt(0)")
        for T in range(c.LA):
            o.append(s.slot_desc(T, True)[1])
            if T == s.g1_slot_of(0, 5):
                o.append(I(f"v_subrev_u32 {vr(PV)}, {WIN}, {vr(PV)}", "valu"))
        w_ = I(None, "wait"); w_.wait = dict(vm=[], lg=True); o.append(w_)
        return o

    def bias_ops(s):
        o = []
        for k in range(4):
            r = s.BI_R + 2 * k; A_, B_ = s.BI_QA, s.BI_QB; ad = s.BI_AD + k
            o.append(I(f"v_lshlrev_b32 {vr(A_)}, 16, {vr(r)}", "valu"))
            o.append(I(f"v_lshlrev_b32 {vr(A_ + 2)}, 16, {vr(r + 1)}", "valu"))
            o.append(I(f"v_and_b32 {vr(B_)}, 0xffff0000, {vr(r)}", "valu"))
            o.append(I(f"v_and_b32 {vr(B_ + 2)}, 0xffff0000, {vr(r + 1)}", "valu"))
            o.append(I(f"ds_write_b128 {vr(ad)}, {vr(A_, 4)}", "dsw"))
            o.append(I(f"ds_write_b128 {vr(ad)}, {vr(B_, 4)} offset:208", "dsw"))
        for i in range(20):
            o.append(I(f"v_mov_b32 {vr(C0 + i)}, 1.0", "valu"))
        return o

    def resolve(s, trace, res=None, final=True):
        if res is None:
            res = {}
        vm_idx = []
        lastgrp = {}
        nvm = 0
        nds = 0
        areg_ds = {}
        inst = []
        for pos, x in enumerate(trace):
            if x.kind in ("dma", "vload", "store"):
                nvm += 1
                if x.grp:
                    lastgrp[x.grp] = nvm
            elif x.kind in ("dsr", "dsw"):
                if x.kind == "dsr":
                    areg_ds[x.areg] = nds
                nds += 1
            elif x.kind == "wait":
                vmN = None
                if x.wait["vm"]:
                    need = 0
                    for g in x.wait["vm"]:
                        if g not in lastgrp:
                            continue
                        need = max(need, lastgrp[g])
                    vmN = nvm - need
                inst.append((pos, x, vmN, nds))
            elif x.kind == "mfma":
                x_need = areg_ds.get(x.areg)
                assert x_need is not None, x.txt
                trace_need.append(x_need) if False else None
        need_at = [None] * len(trace)
        areg_ds = {}; nds = 0
        for pos, x in enumerate(trace):
            if x.kind in ("dsr", "dsw"):
                if x.kind == "dsr":
                    areg_ds[x.areg] = nds
                nds += 1
            elif x.kind == "mfma":
                need_at[pos] = areg_ds[x.areg]
        lgw = [(pos, x, vmN, nds_) for (pos, x, vmN, nds_) in inst if x.wait["lg"] or x.wait.get("lg0")]
        lgN = {}
        for k, (pos, x, vmN, nds_) in enumerate(lgw):
            end = lgw[k + 1][0] if k + 1 < len(lgw) else len(trace)
            need = [need_at[p] for p in range(pos, end) if need_at[p] is not None]
            if x.wait.get("lg0"):
                N = 0
            elif need:
                mx = max(need)
                assert mx < nds_, ("read issued after its wait", pos, x.wait)
                N = nds_ - 1 - mx
            else:
                N = None
            lgN[pos] = N
        for (pos, x, vmN, nds_) in inst:
            r = res.setdefault(id(x), dict(x=x, vm=None, lg=None))
            if vmN is not None:
                r["vm"] = vmN if r["vm"] is None else min(r["vm"], vmN)
            N = lgN.get(pos)
            if N is not None:
                r["lg"] = N if r["lg"] is None else min(r["lg"], N)
        if not final:
            return
        for r in res.values():
            x = r["x"]; parts = []
            if r["vm"] is not None:
                assert r["vm"] <= 63
                parts.append(f"vmcnt({r['vm']})")
            if r["lg"] is not None:
                parts.append(f"lgkmcnt({min(r['lg'], 15)})")
            x.txt = ("s_waitcnt " + " ".join(parts)) if parts else None
            x.cmt = ",".join(x.wait["vm"])

    def kernel(s):
        c = s.c
        if c.alt is not None:
            c._hdr = True
        pro = {1: s.prologue, 2: s.prologue2, 3: s.prologue3}[c.pro]()
        g1f = s.lin(s.build("g1first"))
        g2l = s.lin(s.build("g2last"))
        proB = g1fB = None
        if c.alt is not None:
            import copy
            c2 = copy.copy(c)
            for k_, v_ in c.alt.items():
                assert hasattr(c, k_), k_
                setattr(c2, k_, v_)
            gB = Gen(c2)
            proB = gB.prologue3()
            g1fB = gB.lin(gB.build("g1first"))
            assert c.wvloop
        if c.wvloop:
            ncopy = len(c.wshift)
            loops = [s.lin(s.build("loop", wave=w)) for w in range(ncopy)]
            res = {}
            for w in range(ncopy):
                if proB is not None:
                    s.resolve(proB + g1fB + loops[w] * (c.nlayers - 1) + g2l, res, final=False)
                s.resolve(pro + g1f + loops[w] * (c.nlayers - 1) + g2l, res, final=(w == ncopy - 1))
            loop = loops[0]
        else:
            loop = s.lin(s.build("loop"))
            trace = pro + g1f + loop * (c.nlayers - 1) + g2l
            s.resolve(trace)
        L = []
        A = L.append
        hdr = open("standalone__cross_network_dcn_v2__recsys.s.ref").read().split("\n")
        for ln in hdr:
            if ln.startswith("; @launch"):
                A(f"; @launch grid=(256,1,1) block=(256,1,1) lds={163840 if c.smix else LDS + (1024 if c.zrow else 0)}")
            elif ln.startswith(";"):
                A(ln)
            else:
                break
        A('.amdgcn_target "amdgcn-amd-amdhsa--gfx950"')
        A(".text"); A(f".globl {KN}"); A(".p2align 8"); A(f".type {KN},@function"); A(f"{KN}:")

        def emit(lst):
            for x in lst:
                if x.txt is None:
                    continue
                if x.kind == "label":
                    A(x.txt); continue
                A("  " + x.txt + (f"   ; {x.cmt}" if x.cmt else ""))
        if c.delay0:
            if c.dly_bit is not None:
                A(f"  s_bitcmp1_b32 s2, {c.dly_bit}")
                A("  s_cbranch_scc0 L_dly0e")
            A(f"  s_mov_b32 s69, {c.delay0}")
            A("L_dly0:")
            for _ in range(8):
                A("  v_mov_b32 v1, v0")
            A("  s_sub_u32 s69, s69, 1")
            A("  s_cmp_lg_u32 s69, 0")
            A("  s_cbranch_scc1 L_dly0")
            A("L_dly0e:")
        if c.alt is not None:
            A("  s_cmp_ge_u32 s2, 256")
            A("  s_cbranch_scc1 L_end")
            A(f"  s_getpc_b64 {sr(S_M, 2)}")
            A("L_pc:")
            if c.alt_mask:
                A(f"  s_and_b32 s3, s2, {c.alt_mask[0]}")
                A(f"  s_cmp_eq_u32 s3, {c.alt_mask[1]}")
                A(f"  s_cbranch_scc{0 if c.alt_mask[2] else 1} L_alt")
            else:
                A(f"  s_bitcmp1_b32 s2, {c.alt_bit}")
                A("  s_cbranch_scc1 L_alt")
        emit(pro)
        A("; ---- G1 first"); emit(g1f)
        if c.alt is not None:
            A("L_join:")
        if c.delayj:
            A(f"  s_mov_b32 s69, {c.delayj}")
            A("L_dlyj:")
            for _ in range(8):
                A("  s_nop 0")
            A("  s_sub_u32 s69, s69, 1")
            A("  s_cmp_lg_u32 s69, 0")
            A("  s_cbranch_scc1 L_dlyj")
        if c.stamps:
            A("  s_memtime s[74:75]")
            if c.stamps == "rt":
                A("  s_memrealtime s[82:83]")
            A("  s_waitcnt lgkmcnt(0)")
        if "vmwait" in c.drop:
            import re
            for x in loop:
                if x.kind == "wait" and x.txt:
                    x.txt = re.sub(r"vmcnt\(\d+\) ?", "", x.txt)
                    if x.txt.strip() == "s_waitcnt":
                        x.txt = None
        def flt(lst):
            o_ = []; k_ = 0
            if c.smix and ("h" in c.smix or "d" in c.smix):
                import re
                im = -1; prevA = None
                for x in lst:
                    if x.kind == "mfma":
                        im += 1
                        m_ = re.search(r"a\[\d+:\d+\]", x.txt)
                        if im & 1 and prevA and "h" in c.smix:
                            x = I(x.txt.replace(m_.group(0), prevA), "mfma", areg=x.areg)
                        else:
                            prevA = m_.group(0)
                    elif x.kind == "dsr" and x.areg < 88 and im & 1:
                        continue
                    o_.append(x)
                return o_
            for x in lst:
                if x.kind in c.drop:
                    continue
                if c.drophalf and x.kind == "dsr":
                    k_ += 1
                    if k_ % c.drophalf:
                        continue
                o_.append(x)
            return o_
        if c.wvloop:
            if ncopy == 2:
                A(f"  s_and_b32 s3, s{sW}, 1"); A(f"  s_cbranch_scc1 L_loop1")
            else:
                for w in range(1, 4):
                    A(f"  s_cmp_eq_u32 s{sW}, {w}"); A(f"  s_cbranch_scc1 L_loop{w}")
            for w in range(ncopy):
                A(f"; ---- loop of wave {w}"); A(f"L_loop{w}:")
                if c.itst:
                    A("  s_mov_b32 s91, s90"); A("  s_mov_b32 s90, s89"); A("  s_mov_b32 s89, s88"); A("  s_mov_b32 s88, s86")
                    A("  s_memrealtime s[86:87]")
                emit(flt(loops[w]))
                A(f"  s_cbranch_scc0 L_loop{w}")
                if w < ncopy - 1:
                    A("  s_branch L_g2l")
            A("L_g2l:")
        else:
            A("; ---- loop"); A("L_loop:"); emit([x for x in loop if x.kind not in c.drop])
            A("  s_cbranch_scc0 L_loop")
        if c.stamps:
            A("  s_memtime s[76:77]")
            if c.stamps == "rt":
                A("  s_memrealtime s[84:85]")
            A("  s_waitcnt lgkmcnt(0)")
        if c.delaym:
            A(f"  s_mov_b32 s69, {c.delaym}")
            A("L_dlym:")
            for _ in range(8):
                A("  s_nop 0")
            A("  s_sub_u32 s69, s69, 1")
            A("  s_cmp_lg_u32 s69, 0")
            A("  s_cbranch_scc1 L_dlym")
        if c.nost_bit == -1:
            A(f"  s_mov_b32 s{S_O + 2}, 0")
        elif c.nost_bit is not None:
            A(f"  s_bitcmp1_b32 s2, {c.nost_bit}")
            A(f"  s_cselect_b32 s{S_O + 2}, 0, s{S_O + 2}")
        A("; ---- G2 last"); emit(g2l)
        if c.delay:
            A(f"  s_mov_b32 s69, {c.delay}")
            A("L_dly:")
            for _ in range(8):
                A("  v_mov_b32 v0, v1")
            A("  s_sub_u32 s69, s69, 1")
            A("  s_cmp_lg_u32 s69, 0")
            A("  s_cbranch_scc1 L_dly")
        if c.stamps:
            A("  s_memtime s[66:67]")
            A("  s_waitcnt vmcnt(0) lgkmcnt(0)")
            A("  s_memtime s[78:79]")
            A("  s_memrealtime s[72:73]")
            A("  s_waitcnt lgkmcnt(0)")
            for k, reg in enumerate((62, 64, 74, 76, 66, 78, 80, 82, 84, 86, 88, 90) + ((89,) if c.itst else ())):
                A(f"  s_sub_u32 s{reg}, s{reg}, " + ("s70" if (c.stamps == "rt" and reg >= 80) else "s60"))
            A(f"  s_mov_b32 s{sDbg + 2}, 0x100000"); A(f"  s_mov_b32 s{sDbg + 3}, 0x20000")
            A(f"  s_lshl_b32 s68, s2, 2"); A(f"  s_add_u32 s68, s68, s{sW}"); A("  s_lshl_b32 s68, s68, 6")
            for k, reg in enumerate((62, 64, 74, 76, 66, 78, 70, 72, 80, 82, 84, 86, 88, 90, 89 if c.itst else 60, 60)):
                A(f"  v_mov_b32 v{k}, s{reg}")
            A("  v_mov_b32 v16, 0")
            if c.dbg:
                A(f"  s_mov_b32 s{sDbg + 2}, 256")
                A("  v_mov_b32 v20, s72"); A("  s_sub_u32 s73, -1, s70"); A("  v_mov_b32 v21, s73")
                A("  s_mov_b64 exec, 1")
                A(f"  buffer_atomic_umax v20, v16, s[{sDbg}:{sDbg + 3}], 0 offen")
                A(f"  buffer_atomic_umax v21, v16, s[{sDbg}:{sDbg + 3}], 0 offen offset:4")
                A("  s_sub_u32 s73, s72, s70"); A("  v_mov_b32 v22, s73")
                A(f"  buffer_atomic_umax v22, v16, s[{sDbg}:{sDbg + 3}], 0 offen offset:8")
                for k, r in enumerate((62, 64, 74, 76, 66, 78, 80, 82, 84)):
                    A(f"  v_mov_b32 v23, s{r}")
                    A(f"  buffer_atomic_umax v23, v16, s[{sDbg}:{sDbg + 3}], 0 offen offset:{12 + 4 * k}")
                    A("  s_nop 1")
                A("  s_mov_b64 exec, -1")
            else:
              for k in range(4):
                A(f"  buffer_store_dwordx4 v[{4 * k}:{4 * k + 3}], v16, s[{sDbg}:{sDbg + 3}], s68 offen offset:{16 * k}")
        if c.lstamps:
            nls = len(c.lstamps)
            mt = "s_memrealtime" if c.lrt else "s_memtime"
            A(f"  {mt} s[{64 + 2 * nls}:{65 + 2 * nls}]")
            A("  s_waitcnt vmcnt(0) lgkmcnt(0)")
            A(f"  {mt} s[{66 + 2 * nls}:{67 + 2 * nls}]")
            A(f"  s_load_dwordx2 s[{sDbg}:{sDbg + 1}], s[0:1], 48")
            A("  s_waitcnt lgkmcnt(0)")
            A(f"  s_mov_b32 s{sDbg + 2}, 0x100000"); A(f"  s_mov_b32 s{sDbg + 3}, 0x20000")
            A(f"  s_lshl_b32 s61, s2, 2"); A(f"  s_add_u32 s61, s61, s{sW}"); A("  s_lshl_b32 s61, s61, 6")
            for k in range(16):
                A(f"  v_mov_b32 v{k}, s{64 + 2 * min(k, len(c.lstamps) + 1)}")
            A("  v_mov_b32 v16, 0")
            for k in range(4):
                A(f"  buffer_store_dwordx4 v[{4 * k}:{4 * k + 3}], v16, s[{sDbg}:{sDbg + 3}], s61 offen offset:{16 * k}")
        A("L_end:"); A("  s_endpgm")
        if c.alt is not None:
            A("; ---- second start-up path"); A("L_alt:"); emit(proB)
            A("; ---- G1 first, second path"); emit(g1fB)
            A("  s_branch L_join"); A("L_fin:")
        A('.section .rodata,"a"'); A(".p2align 6"); A(f".amdhsa_kernel {KN}")
        nv = 256 + s.NA
        A(f"  .amdhsa_next_free_vgpr {nv}"); A("  .amdhsa_next_free_sgpr 102"); A("  .amdhsa_accum_offset 256")
        A("  .amdhsa_group_segment_fixed_size 0"); A("  .amdhsa_kernarg_size 56"); A("  .amdhsa_user_sgpr_count 2")
        A("  .amdhsa_user_sgpr_kernarg_segment_ptr 1"); A("  .amdhsa_system_sgpr_workgroup_id_x 1"); A(".end_amdhsa_kernel")
        s.sizes = dict(pro=len(pro), g1f=len(g1f), loop=len(loop), g2l=len(g2l))
        s.parts = dict(pro=pro, g1f=g1f, loop=loop, g2l=g2l)
        return "\n".join(L) + "\n"


def est_cycles(lst):
    cyc = 0; sc = 0; vc = 0; started = False
    for x in lst:
        if x.txt is None:
            continue
        if x.kind == "mfma":
            if started:
                cyc += 16 + 4 * (max(0, sc - 1) + max(0, vc - 2))
            started = True; sc = 0; vc = 0
        elif x.kind in ("salu", "wait", "barrier"):
            sc += 1
        else:
            vc += 1
    cyc += 16 + 4 * (max(0, sc - 1) + max(0, vc - 2))
    return cyc


if __name__ == "__main__":
    cfg = Cfg()
    out = "standalone__cross_network_dcn_v2__recsys.s"
    for a in sys.argv[1:]:
        if "=" in a:
            k, v = a.split("=", 1)
            if k == "out":
                out = v
            else:
                setattr(cfg, k, eval(v))
    g = Gen(cfg)
    txt = g.kernel()
    open(out, "w").write(txt)
    print("sizes", g.sizes, {k: est_cycles(v) for k, v in g.parts.items() if k != "pro"})
```

```python
import sys, collections
sys.path.insert(0,'gen')
import gen
def cfg(opts):
    c=gen.Cfg()
    base=dict(pro=3,pf_code=1,pf_slice=16,pf_w=False,stmod=" sc1",pl=[(105,"V"),(68,"U")],pl1=[(53,"V"),(84,"U")],p3order="V0 WA WB T6 T6b X0 X1 Q0V Q0U BI V1 X2 X3 X4 V2 X5 X6 X7 X8 X9 X10 X11 X12",wvloop=True,wshift=(0,2),zrow=True)
    base.update(opts)
    for k,v in base.items(): setattr(c,k,v)
    return c
def show(opts, part='loop'):
    g=gen.Gen(cfg(opts)); g.kernel()
    lst=g.parts[part]
    rows=[]; cur=None
    for x in lst:
        if x.txt is None: continue
        if x.kind=='mfma':
            cur=collections.Counter(); rows.append(cur)
        elif cur is not None:
            k={'salu':'s','wait':'s','barrier':'s'}.get(x.kind,'v')
            cur[k]+=1; cur[x.kind]+=1
    tot=collections.Counter()
    for r in rows: tot.update(r)
    print(dict(tot), 'est', gen.est_cycles(lst))
    line=''
    for i,r in enumerate(rows):
        T=(i+91)%195 if part=='loop' else i
        line+=f"{T}:{r['v']}v{r['s']}s "
        if (i+1)%13==0: print(line); line=''
    print(line)
    ex=sum(max(0,r['v']-2) for r in rows); exs=sum(max(0,r['s']-1) for r in rows)
    print('excess v',ex,'excess s',exs, 'free v', sum(max(0,2-r['v']) for r in rows))
if __name__=='__main__':
    o={}
    for a in sys.argv[1:]:
        k,v=a.split('=',1); o[k]=eval(v)
    show(o)
```

```python
import sys, json

KN = "standalone__cross_network_dcn_v2__recsys_kernel"
NL = 6
SLOT = 6656
WIN = 7 * SLOT
Z = 87040
T6 = Z + 6 * SLOT + 4032
LDS = 138240
ZR = 138240
LSTR = 86528
C0, X0, H0, XF = 0, 104, 208, 236
TMP, PV, PV6, PU, PT, DV, DU, D1 = 248, 249, 250, 251, 252, 253, 254, 255
S_X, S_U, S_V, S_B, S_O, S_M = 8, 12, 16, 20, 24, 28
(sW, sVb, sVs0, sVs1, sVs2, sWAs, sWAm, sWBs, sWBm, sT6s, sT6m, sMXs, sMXm, sUm, sLm, sCnt,
 sXo, sT0, sT1, sT2, sT3) = range(32, 53)
sMask = 54
sDbg = 56


class Cfg:
    LA = 12
    RING = 13
    NW = 4
    SWV = 8
    headint = True
    bars = [2, 20, 34, 54, 68, 91, 111, 131, 147, 163, 179]
    dma = {
        "V5": ([3, 7, 11], 54),
        "G0": ([21, 25, 29, 33], 68),
        "G1": ([37, 41, 45, 49], 91),
        "G2": ([55, 59, 63, 67], 111),
        "G3": ([71, 75, 79, 83], 131),
        "G4": ([92, 96, 100, 104], 147),
        "L": ([108], 163),
        "MX": ([113], 163),
        "T6": ([117], 179),
        "WA": ([121], 179),
        "WB": ([125], 179),
        "V0": ([132, 136, 140], 179),
        "V1": ([144, 148, 152], 2),
        "V2": ([156, 160, 164], 2),
        "V3": ([168, 172, 176], 20),
        "V4": ([180, 184, 188], 34),
    }
    stamps = False
    bars1 = [2, 14, 28, 42, 54, 68]
    dma1 = {
        "V1": ([], 2), "V2": ([], 14),
        "V3": ([0, 3, 6], 28), "V4": ([9, 12, 15], 42), "V5": ([18, 21, 24], 54),
        "G0": ([29, 32, 35, 38], 68), "G1": ([43, 46, 49, 52], 91),
        "G2": ([55, 59, 63, 67], 111), "G3": ([71, 75, 79, 83], 131),
    }
    p3order = "V0 WA WB T6 T6b X0 X1 BI PW V1 X2 X3 X4 V2 X5 X6 X7 X8 X9 X10 X11 X12"
    x0wait = 0
    delayb = 0
    tail16 = False
    zrow = False
    stwin = 0
    bias_in = False
    otmod = ""
    keep = ()
    keepmod = " sc1"
    keepld = False
    otld = None
    otouch = None
    xin = {}
    pl = ()
    pl1 = ()
    pw1 = ()
    p3start = 8
    p3k = 8
    pro = 2
    bi_early = True
    bias_at = (14, 60)
    pf_code = False
    delay = 0
    delay0 = 0
    delaym = 0
    lphase = "loop"
    wvloop = False
    wshift = (0, 1, 2, 3)
    lstamps = None
    dma_first = False
    dmamod = ""
    stmod = ""
    stsplit = 13
    stmod2 = ""
    stpat = ""
    xmod = ""
    pmod = ""
    dmamod0 = None
    dbg = False
    drop = ()
    pf_w = False
    nlayers = NL
    dly_bit = None
    alt = None
    alt_bit = 3
    alt_mask = None
    g2l_head = False
    g2l_first = 3
    dmaL = None
    barsL = None
    lrt = False
    delayj = 0
    xfill = 0
    ntr = 3
    headsnake = False
    g1snake = False
    g2snake = False
    itst = False
    smix = 0
    dmaw = None
    g1mode = "k"
    headn = 2
    g2chain = False
    _hdr = False
    pf_slice = 0
    pf_bytes = 18432
    nost_bit = None
    pad = 0
    p3trim = False
    split = None
    drophalf = 0


class I:
    __slots__ = ("txt", "kind", "grp", "areg", "wait", "cmt")

    def __init__(s, txt, kind, grp=None, areg=None, cmt=None):
        s.txt, s.kind, s.grp, s.areg, s.cmt = txt, kind, grp, areg, cmt
        s.wait = None


def vr(a, n=1):
    return f"v{a}" if n == 1 else f"v[{a}:{a + n - 1}]"


def ar(a, n=1):
    return f"a{a}" if n == 1 else f"a[{a}:{a + n - 1}]"


def sr(a, n=1):
    return f"s{a}" if n == 1 else f"s[{a}:{a + n - 1}]"


def cpos(p, tau):
    return C0 + 8 * p + 4 * tau


def xe(p, q):
    return X0 + 8 * p + q


def xo(p, q):
    return X0 + 8 * p + 4 + q


def xbuf(f):
    return XF + 4 * (f % 3)


class Gen:
    def __init__(s, cfg):
        s.c = cfg
        s.TR0 = 4 * cfg.RING
        s.ST = s.TR0 + 8 * cfg.ntr
        s.ST_XA, s.ST_D2 = s.ST, s.ST + 1
        s.NA = s.ST + 12
        if cfg.smix:
            s.NA = 128
        s.R2 = s.NA
        if cfg.g2l_head:
            s.NA += 4 * cfg.RING

    def g1_order(s, ks):
        if ks and (ks & 1) and s.c.g1snake:
            return list(range(6, -1, -1))
        return [1, 3, 5, 0, 2, 4, 6] if ks == 0 else list(range(7))

    def g1_seq(s):
        if getattr(s, "_seq", None) is None:
            if s.c.g1mode == "k":
                q = [(st, t) for st in range(13) for t in s.g1_order(st)]
            else:
                q = [(0, 1), (0, 3), (0, 5)]
                for j in range(5):
                    for t in (0, 2, 4, 6):
                        q += [(2 * j, t), (2 * j + 1, t)]
                    for t in (1, 3, 5):
                        q += [(2 * j + 1, t), (2 * j + 2, t)]
                for t in (2, 4, 6, 0):
                    q += [(10, t), (11, t)]
                q += [(12, 0), (11, 1), (12, 1), (12, 2), (11, 3), (12, 3), (12, 4), (11, 5), (12, 5), (12, 6)]
            assert len(q) == 91 and len(set(q)) == 91
            s._seq = q
        return s._seq

    def fuse(s, f):
        u = [i for i, (st, t) in enumerate(s.g1_seq()) if st == f]
        return u[0], u[-1]

    def pv_switch(s):
        if s.c.g1mode == "k":
            return max(s.g1_slot_of(s.c.SWV - 1, t) for t in range(6))
        return s.g1_slot_of(8, 5)

    def g2_order(s):
        o = []
        p0 = 0
        if s.c.headint:
            for ks in range(4):
                tl = [(p, tau) for p in range(s.c.headn) for tau in (0, 1)]
                if s.c.headsnake and (ks & 1):
                    tl.reverse()
                for p, tau in tl:
                    o.append((p, tau, ks))
            p0 = s.c.headn
        for p in range(p0, 13):
            if s.c.g2chain:
                for tau in (0, 1):
                    rev = s.c.g2snake and (tau == 0 if s.c.headsnake else tau == 1)
                    for ks in (range(3, -1, -1) if rev else range(4)):
                        o.append((p, tau, ks))
                continue
            for ks in range(4):
                for tau in (0, 1):
                    o.append((p, tau, ks))
        return o

    def ring(s, T):
        return 4 * (T % s.c.RING)

    def slot_desc(s, T, first=False):
        c = s.c
        if T < 91:
            st, t = s.g1_seq()[T]
            a = s.ring(T)
            if t < 6:
                ks, tau = t >> 1, t & 1
                if tau == 0:
                    if st < 12:
                        k = 2 * (st >> 1); ab = SLOT * (k + 1) + 2112 * ks + 64 * (st & 1); grp = f"V{k >> 1}"
                    else:
                        ab = Z + SLOT * ks + 4032; grp = "W"
                else:
                    if st == 0:
                        ab = Z + SLOT * ks + 4032 + 64; grp = "W"
                    else:
                        j = (st - 1) >> 1; k = 2 * j + 1
                        ab = SLOT * (k + 1) + 2112 * ks + 64 * ((st - 1) & 1); grp = f"V{j}"
                high = T > s.pv_switch() or (st == 0 and tau == 1)
                imm = ab - (WIN if high else 0)
                assert 0 <= imm < 65536, (T, imm)
                rd = I(f"ds_read_b128 {ar(a, 4)}, {vr(PV)} offset:{imm}", "dsr", areg=a)
            else:
                rd = I(f"ds_read_b128 {ar(a, 4)}, {vr(PV6)} offset:{64 * st}", "dsr", areg=a)
            D = H0 + 4 * t
            if first:
                B = xo(st, 0) if st < 10 else xbuf(st)
            else:
                B = xbuf(st)
            Cc = "0" if st == 0 else vr(D, 4)
            mf = I(f"v_mfma_f32_16x16x32_bf16 {vr(D, 4)}, {ar(a, 4)}, {vr(B, 4)}, {Cc}", "mfma", areg=a)
            return mf, rd
        p, tau, ks = s.g2_order()[T - 91]
        D = cpos(p, tau)
        if ks < 3:
            a = s.ring(T)
            imm = SLOT * (p % 7) + 208 * tau + 64 * ks
            rd = I(f"ds_read_b128 {ar(a, 4)}, {vr(PU)} offset:{imm}", "dsr", areg=a)
            B = H0 + 8 * ks
        else:
            a = s.TR0 + 4 * (2 * (p % c.ntr) + tau)
            imm = SLOT * (p % 7) + 208 * tau
            rd = I(f"ds_read_b64 {ar(a, 2)}, {vr(PT)} offset:{imm}", "dsr", areg=a)
            B = H0 + 24
        if ks == 3 and c.tail16:
            mf = I(f"v_mfma_f32_16x16x16_bf16 {vr(D, 4)}, {ar(a, 2)}, {vr(B, 2)}, {vr(D, 4)}", "mfma", areg=a)
        else:
            mf = I(f"v_mfma_f32_16x16x32_bf16 {vr(D, 4)}, {ar(a, 4)}, {vr(B, 4)}, {vr(D, 4)}", "mfma", areg=a)
        return mf, rd

    def g2_slot_of(s, p, tau, ks):
        return 91 + s.g2_order().index((p, tau, ks))

    def g1_slot_of(s, st, t):
        return s.g1_seq().index((st, t))

    def dma_items(s, g):
        V = lambda txt: I(txt.replace(" lds", getattr(s, "_dm", s.c.dmamod) + " lds"), "dma", grp=g)
        S = lambda txt: I(txt, "salu")
        if g[0] == "V":
            j = int(g[1]); out = []
            for ks in range(3):
                out.append((S(f"s_add_u32 m0, {sr(sVb)}, {13184 * j + 2112 * ks + SLOT}"),
                            V(f"buffer_load_dwordx4 {vr(DV)}, {sr(S_V, 4)}, {sr(sVs0 + ks)} offen offset:{128 * j} lds")))
            return out
        if g[0] == "G":
            n = int(g[1]); out = []
            for i in range(4):
                sc = S(f"s_add_u32 m0, {sr(sUm)}, {16384 * n}") if i == 0 else None
                out.append((sc, V(f"buffer_load_dwordx4 {vr(DU)}, {sr(S_U, 4)}, m0 offen offset:{1024 * i} lds")))
            return out
        if g == "L":
            return [(S(f"s_mov_b32 m0, {sr(sLm)}"), V(f"buffer_load_dwordx4 {vr(DU)}, {sr(S_U, 4)}, m0 offen lds"))]
        if g == "MX":
            return [(S(f"s_mov_b32 m0, {sr(sMXm)}"), V(f"buffer_load_dwordx4 {vr(DU)}, {sr(S_M, 4)}, {sr(sMXs)} offen lds"))]
        if g == "T6":
            return [(S(f"s_mov_b32 m0, {sr(sT6m)}"), V(f"buffer_load_dwordx4 {vr(DU)}, {sr(S_V, 4)}, {sr(sT6s)} offen lds"))]
        if g == "WA":
            return [(S(f"s_mov_b32 m0, {sr(sWAm)}"), V(f"buffer_load_dwordx4 {vr(DV)}, {sr(S_V, 4)}, {sr(sWAs)} offen offset:768 lds"))]
        if g == "WB":
            return [(S(f"s_mov_b32 m0, {sr(sWBm)}"), V(f"buffer_load_dwordx4 {vr(DV)}, {sr(S_V, 4)}, {sr(sWBs)} offen offset:768 lds"))]
        raise KeyError(g)

    def xfrag_ops(s, f, dst=None):
        b = xbuf(f) if dst is None else dst
        o = []
        for q in range(4):
            o.append(I(f"v_mul_f32 {vr(b + q)}, {vr(xe(f, q))}, {vr(cpos(f, 0) + q)}", "valu"))
            o.append(I(f"v_mul_f32 {vr(TMP)}, {vr(xo(f, q))}, {vr(cpos(f, 1) + q)}", "valu"))
            o.append(I(f"v_cvt_pk_bf16_f32 {vr(b + q)}, {vr(b + q)}, {vr(TMP)}", "valu"))
        return o

    def unpack_ops(s, f):
        src = xo(f, 0) if f < 10 else xbuf(f)
        o = []
        for q in range(4):
            o.append(I(f"v_lshlrev_b32 {vr(xe(f, q))}, 16, {vr(src + q)}", "valu"))
            o.append(I(f"v_and_b32 {vr(xo(f, q))}, 0xffff0000, {vr(src + q)}", "valu"))
        return o

    def hcvt_ops(s, ks):
        if ks < 3:
            b = H0 + 8 * ks
            return [I(f"v_cvt_pk_bf16_f32 {vr(b + q)}, {vr(b + q)}, {vr(b + 4 + q)}", "valu") for q in range(4)]
        b = H0 + 24
        o = [I(f"v_cvt_pk_bf16_f32 {vr(b)}, {vr(b)}, {vr(b + 1)}", "valu"),
             I(f"v_cvt_pk_bf16_f32 {vr(b + 1)}, {vr(b + 2)}, {vr(b + 3)}", "valu")]
        if not s.c.tail16:
            o += [I(f"v_mov_b32 {vr(b + 2)}, 0", "valu"), I(f"v_mov_b32 {vr(b + 3)}, 0", "valu")]
        o.append(I(f"v_cndmask_b32_e64 {vr(b)}, {vr(b)}, 0.5, {sr(sMask, 2)}", "valu"))
        if not s.c.zrow:
            o.append(I(f"v_cndmask_b32_e64 {vr(b + 1)}, {vr(b + 1)}, 0, {sr(sMask, 2)}", "valu"))
        return o

    class Phase:
        def __init__(s, T0, n):
            s.T0, s.n = T0, n
            s.m = [None] * n; s.r = [None] * n
            s.sc = [[] for _ in range(n)]
            s.vx = [[] for _ in range(n)]

        def load(s, i):
            return len(s.vx[i])

    def spread(s, ph, ops, lo, hi, deadline_groups=None):
        n = hi - lo + 1
        base = [ph.load(i) for i in range(lo, hi + 1)]
        tot = sum(base) + len(ops)
        lvl = 0
        while sum(max(0, lvl - b) for b in base) < len(ops):
            lvl += 1
        cap = [max(0, lvl - b) for b in base]
        excess = sum(cap) - len(ops)
        idxs = [i for i in range(n) if cap[i] > 0]
        if excess > 0:
            step = len(idxs) / excess
            for e in range(excess):
                cap[idxs[int((e + 0.5) * step)]] -= 1
        k = 0
        for i in range(n):
            for _ in range(cap[i]):
                ph.vx[lo + i].append(ops[k]); k += 1
        assert k == len(ops)

    def build(s, kind, wave=None):
        c = s.c
        LA = c.LA
        if kind == "g1first":
            Ts = list(range(0, 91))
        elif kind == "loop":
            Ts = list(range(91, 195)) + list(range(0, 91))
        else:
            Ts = list(range(91, 195))
        n = len(Ts)
        ph = s.Phase(Ts[0], n)
        ph.kind = kind
        ph.Ts = Ts
        pos = {T: i for i, T in enumerate(Ts)}
        first = kind == "g1first"
        last = kind == "g2last"
        for i, T in enumerate(Ts):
            ph.m[i] = s.slot_desc(T, first)[0]
            Tn = (T + LA) % 195
            if last and T + LA >= 195:
                ph.r[i] = None
            else:
                ph.r[i] = s.slot_desc(Tn, False)[1]

        def at(T):
            return pos.get(T % 195)

        slot_of = s.g2_slot_of
        if last and c.g2l_head:
            assert c.headint and c.headn == 2
            lo_ = s.g2_order()
            order_l = [(p, tau, ks) for p in (0, 1) for ks in range(4) for tau in (0, 1)] + lo_[16:]
            slot_of = lambda p, tau, ks: 91 + order_l.index((p, tau, ks))
            r2 = lambda T: s.R2 + 4 * (T % c.RING)
            for i, T in enumerate(Ts):
                it = order_l[i]
                mf = s.slot_desc(s.g2_slot_of(*it), False)[0]
                if T >= 107 and it[2] < 3:
                    mf = I(mf.txt.replace(ar(mf.areg, 4), ar(r2(T), 4)), "mfma", areg=r2(T))
                ph.m[i] = mf
                rd = ph.r[i]
                if rd is not None and T + LA >= 107 and order_l[i + LA][2] < 3:
                    ph.r[i] = I(rd.txt.replace(ar(rd.areg, 4), ar(r2(T + LA), 4)), "dsr", areg=r2(T + LA))

        p3 = first and c.pro == 3
        s._dm = c.dmamod0 if (first and c.dmamod0 is not None) else c.dmamod
        cdma = c.dma1 if p3 else c.dma
        cbars = c.bars1 if p3 else c.bars
        if last and c.dmaL:
            cdma = dict(c.dma); cdma.update(c.dmaL)
            cbars = c.barsL
        groups = dict(cdma)
        if last:
            for g in list(groups):
                if g not in ("G4", "L", "MX"):
                    del groups[g]
        m0_req = []
        dma_slots = []
        for g, (slots, arr) in groups.items():
            items = s.dma_items(g)
            if not slots:
                continue
            assert len(items) == len(slots), g
            ovr = wave is not None and c.dmaw and g in c.dmaw[wave]
            if ovr:
                slots = c.dmaw[wave][g]
            for (sc, v), T in zip(items, slots):
                if wave is not None and not ovr:
                    T = T + c.wshift[wave]
                i = at(T)
                if i is None:
                    continue
                ph.vx[i].append(v)
                dma_slots.append(i)
                if sc is not None:
                    m0_req.append((i, sc))
        dma_slots.sort()
        bars = [b for b in cbars if at(b) is not None]
        if last:
            need = set()
            for g in ("G1", "G2", "G3", "G4", "L", "MX"):
                need.add(cdma[g][1])
            bars = [b for b in bars if b in need or b == 91]
        fixed = {}
        for b in bars:
            i = at(b)
            ph.sc[i].append(I("s_barrier", "barrier"))
            arrivals = [g for g, (sl, arr) in cdma.items() if arr == b]
            if last:
                arrivals = [g for g in arrivals if g in ("G1", "G2", "G3", "G4", "L", "MX")]
            if arrivals:
                w = I(None, "wait"); w.wait = dict(vm=arrivals, lg=True)
                j = i - 1
                if j < 0:
                    ph.pre_wait = w
                else:
                    ph.sc[j].append(w)
        if kind in ("g1first", "loop"):
            nb = (Ts[-1] + 1) % 195
            if nb in c.bars:
                arrivals = [g for g, (sl, arr) in c.dma.items() if arr == nb]
                if arrivals:
                    w = I(None, "wait"); w.wait = dict(vm=arrivals, lg=True)
                    ph.sc[n - 1].append(w)
        if first:
            for st in range(1, 13):
                fr = st if st < 10 else None
                if p3:
                    grp = [f"X{st}"]
                elif st == 9:
                    grp = ["X9", "X10", "X11", "X12"]
                elif st > 9:
                    continue
                else:
                    grp = [f"X{st}"]
                if (c.pro == 2 or (p3 and c.bias_in)) and s.fuse(st)[0] - 1 < c.bias_at[0] <= (s.fuse(st + 1)[0] if st < 12 else 91) - 1:
                    grp = grp + ["BI"]
                j = s.fuse(st)[0] - 1
                ex = [x for x in ph.sc[j] if x.kind == "wait"]
                if ex:
                    ex[0].wait["vm"] = ex[0].wait["vm"] + grp
                else:
                    w = I(None, "wait"); w.wait = dict(vm=grp, lg=True)
                    ph.sc[j].append(w)
        for i, sc in sorted(m0_req, key=lambda x: x[0]):
            prev = max([d for d in dma_slots if d < i], default=-1)
            placed = False
            for j in range(i, prev, -1):
                if j >= 0 and not ph.sc[j]:
                    ph.sc[j].append(sc); placed = True; break
            if not placed:
                ph.sc[i].append(sc)
        if kind == "loop":
            ph.loopctl = True
        def put(T, ins):
            i = at(T)
            if i is not None:
                ph.vx[i].append(ins)
        rdslot = lambda T: (T - LA) % 195
        put(rdslot(s.pv_switch()), I(f"v_add_u32 {vr(PV)}, {WIN}, {vr(PV)}", "valu"))
        if not last:
            if not first:
                put(rdslot(s.g1_slot_of(0, 5)), I(f"v_subrev_u32 {vr(PV)}, {WIN}, {vr(PV)}", "valu"))
        if not first:
            lastPU6 = max(s.g2_slot_of(6, t, k) for t in (0, 1) for k in range(3))
            put(rdslot(lastPU6), I(f"v_add_u32 {vr(PU)}, {WIN}, {vr(PU)}", "valu"))
            put(rdslot(s.g2_slot_of(6, 1, 3)), I(f"v_add_u32 {vr(PT)}, {vr(PT)}, {vr(D1)}", "valu"))
            if not last:
                lastPU12 = s.g2_slot_of(12, 1, 3) if not c.g2snake else max(s.g2_slot_of(12, t, k) for t in (0, 1) for k in range(3))
                put(rdslot(lastPU12), I(f"v_subrev_u32 {vr(PU)}, {WIN}, {vr(PU)}", "valu"))
        if kind == "loop":
            put(0, I(f"v_accvgpr_read_b32 {vr(TMP)}, {ar(s.ST_D2)}", "valu"))
            put(1, I(f"v_add_u32 {vr(PT)}, {vr(PT)}, {vr(TMP)}", "valu"))
            put(2, I(f"v_add_u32 {vr(DU)}, {LSTR}, {vr(DU)}", "valu"))
        if kind == "loop":
            for T in c.keep:
                if c.keepld:
                    put(T, I(f"buffer_load_dword {ar(s.ST + 9)}, off, {sr(sDbg, 4)}, s7{c.keepmod}", "vload", grp="KP"))
                    put(T + 1, I(f"s_add_u32 s7, s7, 0x100000", "salu"))
                else:
                    put(T, I(f"buffer_store_dword {vr(D1)}, off, {sr(sDbg, 4)}, s7{c.keepmod}", "store", grp="KP"))
            for k_, (T, mat) in enumerate(c.pl):
                put(T, I(f"buffer_load_dword {ar(s.ST + 10 + k_)}, {vr(DU)}, {sr(S_V if mat == 'V' else S_U, 4)}, {'s6' if T >= 91 else 's5'} offen{c.pmod}", "vload", grp="PW"))
        if kind in ("loop", "g1first"):
            put(86, I(f"v_add_u32 {vr(DV)}, {LSTR}, {vr(DV)}", "valu"))
        if c.smix and kind == "loop":
            F = c.smix
            put(84, I(f"v_accvgpr_read_b32 {vr(TMP)}, a88", "valu"))
            if "w" in F:
                for t_ in range(7):
                    put(87 + t_, I(f"ds_write_b128 {vr(TMP)}, {vr(H0 + 4 * t_, 4)} offset:{1024 * (t_ % 6)}", "dsw"))
                for t_ in range(6):
                    put(103 + t_, I(f"ds_write_b128 {vr(TMP)}, {vr(H0 + 8 * (t_ % 3), 4)} offset:{1024 * t_}", "dsw"))
            if "b" in F:
                ph.sc[at(94)].append(I("s_waitcnt lgkmcnt(0)", "salu"))
                ph.sc[at(95)].append(I("s_barrier", "barrier"))
                ph.sc[at(110)].append(I("s_waitcnt lgkmcnt(0)", "salu"))
            if "r" in F:
                for t_ in range(7):
                    put(96 + t_, I(f"ds_read_b128 {ar(92 + 4 * t_, 4)}, {vr(TMP)} offset:{1024 * (t_ % 6)}", "dsr", areg=92 + 4 * t_))
                for t_ in range(6):
                    put(112 + t_, I(f"ds_read_b128 {ar(92 + 4 * t_, 4)}, {vr(TMP)} offset:{1024 * t_}", "dsr", areg=92 + 4 * t_))
            if "2" in F:
                ph.sc[at(103)].append(I("s_waitcnt lgkmcnt(0)", "salu"))
                ph.sc[at(119)].append(I("s_waitcnt lgkmcnt(0)", "salu"))
            if "v" in F:
                fr = [H0 + 4 + (i & 3) + 8 * ((i >> 2) % 3) for i in range(39)]
                xo_ = [I(f"v_add_f32 {vr(fr[i])}, {vr(C0 + 2 * i)}, {vr(X0 + 2 * i)}", "valu") for i in range(39)]
                s.spread(ph, xo_, at(104), at(190))
        h0 = s.hcvt_ops(0); h1 = s.hcvt_ops(1); h2 = s.hcvt_ops(2); h3 = s.hcvt_ops(3)
        use = [min(slot_of(p, t, k) for p in range(13) for t in (0, 1)) for k in range(4)]
        ab = c.g1mode != "k"
        if kind in ("loop", "g1first"):
            for k, op in enumerate(h0):
                ph.vx[at((86 if ab else 88) + k // 2)].append(op)
            if ab:
                for k, op in enumerate(h1):
                    ph.vx[at(89 + k // 2)].append(op)
        if kind in ("loop", "g2last"):
            for ops, early, u in ((h1, 91, use[1]), (h2, 92, use[2]), (h3, 93, use[3]))[(1 if ab else 0):]:
                lo = max(early, getattr(s, "_hlast", 91))
                hi = u - 2
                if lo > hi:
                    lo = early
                s.spread(ph, ops, at(lo), at(hi))
                s._hlast = hi + 1 if hi + 1 <= 195 else lo
            s._hlast = 91
        if kind == "loop":
            done = [max(s.g2_slot_of(f, t, k) for t in (0, 1) for k in range(4)) + 3 for f in range(3)]
            if c.headint and c.headn == 2:
                lo = max(done[1], use[3])
                ops = s.xfrag_ops(0) + s.xfrag_ops(1) + s.xfrag_ops(2)
                lo = max(lo, done[0])
                if c.smix:
                    lo = 120
                s.spread(ph, ops[:24], at(lo), at(lo + 39))
                s.spread(ph, ops[24:], at(max(lo + 40, done[2])), at(190))
            else:
                lo = max(done[0], use[3])
                w_ = (190 - lo + 1) // 3
                for f in range(3):
                    a0 = lo + f * w_
                    assert a0 >= done[f]
                    s.spread(ph, s.xfrag_ops(f), at(a0), at(a0 + w_ - 1))
            for f in range(3, 13):
                if ab:
                    a0 = 10 + 7 * (f - 3); a1 = a0 + 6
                else:
                    a0 = 7 + (76 * (f - 3) + 5) // 10
                    a1 = 7 + (76 * (f - 2) + 5) // 10 - 1
                assert a0 > s.fuse(f - 3)[1] and a1 <= s.fuse(f)[0] - 2, (f, a0, a1)
                s.spread(ph, s.xfrag_ops(f), at(a0), at(a1))
        if first:
            for f in range(0, 10):
                lo = s.fuse(f)[1] + 1
                hi = min(lo + 6, 83)
                s.spread(ph, s.unpack_ops(f), at(lo), at(hi))
            if p3:
                for f in (10, 11, 12):
                    f0 = s.fuse(f)[0]
                    s.spread(ph, s.unpack_ops(f), at(f0), at(min(f0 + 6, 87) if f < 12 else 90))
            else:
                s.spread(ph, s.unpack_ops(10) + s.unpack_ops(11) + s.unpack_ops(12), at(63), at(87))
            if p3 and c.otld is not None:
                put(c.otld, I(f"buffer_load_dword {ar(s.ST + 7)}, {vr(TMP)}, {sr(S_O, 4)}, {sr(sXo)} offen{c.otmod}", "vload", grp="OT"))
            if p3 and c.otouch is not None:
                put(c.otouch, I(f"buffer_store_dword {vr(D1)}, {vr(TMP)}, {sr(S_O, 4)}, {sr(sXo)} offen{c.otmod}", "store", grp="OT"))
            if p3:
                for f, T in c.xin.items():
                    dst = xo(f, 0) if f < 10 else xbuf(f)
                    put(T, I(f"buffer_load_dwordx4 {vr(dst, 4)}, {vr(TMP)}, {sr(S_X, 4)}, {sr(sXo)} offen offset:{64 * f}{c.xmod}", "vload", grp=f"X{f}"))
                for k_, (T, mat) in enumerate(c.pl1):
                    put(T, I(f"buffer_load_dword {ar(s.ST + 8 + k_)}, {vr(DU)}, {sr(S_V if mat == 'V' else S_U, 4)}, s5 offen{c.pmod}", "vload", grp="PW"))
                for k_, (T, mat) in enumerate(c.pw1):
                    put(T, I(f"buffer_load_dword {ar(s.ST + 6 + k_)}, {vr(TMP)}, {sr(S_V if mat == 'V' else S_U, 4)}, s98 offen{c.pmod}", "vload", grp="PW"))
            if c.pro == 2 or (p3 and c.bias_in):
                bo = s.bias_ops()
                if "biasw" in c.drop:
                    bo = [x for x in bo if x.kind != "dsw"]
                s.spread(ph, bo, at(c.bias_at[0]), at(c.bias_at[1]))
        if last:
            put(92, I(f"v_accvgpr_read_b32 {vr(DV)}, {ar(s.ST_XA)}", "valu"))
            ph.tail = []
            prev = use[3] - 1
            for f in range(13):
                done = max(slot_of(f, t, k) for t in (0, 1) for k in range(4)) + 3
                ops = s.xfrag_ops(f)
                if c.stwin and f >= c.stwin:
                    w = I(None, "wait"); w.wait = dict(vm=[f"S{f - c.stwin}"], lg=False); ops.append(w)
                ops = ops + [I(f"buffer_store_dwordx4 {vr(xbuf(f), 4)}, {vr(DV)}, {sr(S_O, 4)}, {sr(sXo)} offen offset:{(128 if c.stpat == 'oct' else 64) * f}{c.stmod if f < c.stsplit else c.stmod2}", "store", grp=f"S{f}")]
                lo = max(done, prev + 1)
                hi = min(194, max(lo + 5, done + 7))
                if f == 0 and c.g2l_head:
                    hi = lo + c.g2l_first
                if lo > 194 or f == 12:
                    if not ph.tail:
                        ph.tail.append(I("s_nop 5", "salu"))
                    ph.tail += ops
                    continue
                s.spread(ph, ops, at(lo), at(hi))
                prev = hi
        s.place_lg(ph)
        return ph

    def place_lg(s, ph):
        c = s.c
        n = ph.n
        has = [any(x.kind == "wait" for x in ph.sc[i]) for i in range(n)]
        i = 0
        lastw = -1
        j = -1
        while j < n - 1:
            cand = list(range(j + 1, min(j + c.NW, n - 1) + 1))
            nxt = None
            ex = [x for x in cand if has[x]]
            if ex:
                nxt = ex[0]
            else:
                fr = [x for x in cand if not ph.sc[x]]
                nxt = fr[-1] if fr else cand[-1]
                w = I(None, "wait"); w.wait = dict(vm=[], lg=True)
                ph.sc[nxt].insert(0, w) if not fr else ph.sc[nxt].append(w)
                has[nxt] = True
            j = nxt
            if j >= n - 1:
                break

    def lin(s, ph):
        out = []
        for i in range(ph.n):
            out.append(ph.m[i])
            if s.c.lstamps and ph.kind == s.c.lphase and ph.Ts[i] in s.c.lstamps:
                k = s.c.lstamps.index(ph.Ts[i])
                out.append(I(f"{'s_memrealtime' if s.c.lrt else 's_memtime'} s[{64 + 2 * k}:{65 + 2 * k}]", "salu"))
            sc = list(ph.sc[i])
            sc.sort(key=lambda x: {"wait": 0, "barrier": 1}.get(x.kind, 2))
            shadow = sc[:1]; rest = sc[1:]
            out += shadow
            pre = [x for x in rest if x.kind != "wait"]
            post = [x for x in rest if x.kind == "wait"]
            out += pre
            if getattr(ph, "loopctl", False) and i == ph.n - 1:
                out.append(I(f"s_sub_u32 {sr(sCnt)}, {sr(sCnt)}, 1", "salu"))
            vx = list(ph.vx[i])
            if s.c.dma_first:
                d = [x for x in vx if x.kind == "dma"]
                if d and (shadow and shadow[0].kind == "salu" and "m0" in shadow[0].txt):
                    pass
                elif d:
                    out += d; vx = [x for x in vx if x.kind != "dma"]
            if ph.r[i] is not None:
                out.append(ph.r[i])
            out += vx
            out += post
        out += getattr(ph, "tail", [])
        return out

    def prologue(s):
        c = s.c
        o = []
        S = lambda t: o.append(I(t, "salu"))
        V = lambda t: o.append(I(t, "valu"))
        t = [H0 + i for i in range(28)]
        S(f"s_cmp_ge_u32 s2, 256")
        S(f"s_cbranch_scc1 L_end")
        if c.pf_code:
            S(f"s_getpc_b64 {sr(S_M, 2)}")
            o.append(I("L_pc:", "label"))
            S(f"s_mov_b32 {sr(S_M + 2)}, L_end-L_pc")
            S(f"s_mov_b32 {sr(S_M + 3)}, 0x20000")
            V(f"v_lshlrev_b32 {vr(TMP)}, 6, v0")
            o.append(I(f"buffer_load_dword {ar(s.ST + 4)}, {vr(TMP)}, {sr(S_M, 4)}, 0 offen", "vload", grp="PC"))
        S(f"s_load_dwordx2 {sr(S_X, 2)}, s[0:1], 0")
        S(f"s_load_dwordx2 {sr(S_U, 2)}, s[0:1], 8")
        S(f"s_load_dwordx2 {sr(S_V, 2)}, s[0:1], 16")
        S(f"s_load_dwordx2 {sr(S_B, 2)}, s[0:1], 24")
        S(f"s_load_dwordx2 {sr(S_O, 2)}, s[0:1], 32")
        if c.stamps:
            S(f"s_load_dwordx2 {sr(sDbg, 2)}, s[0:1], {40 if c.dbg else 48}")
            S(f"s_memtime s[60:61]")
            S(f"s_memrealtime s[70:71]")
        lane, w, g, m = t[0], t[1], t[2], t[3]
        V(f"v_lshrrev_b32 {vr(w)}, 6, v0")
        V(f"v_and_b32 {vr(lane)}, 63, v0")
        V(f"v_readfirstlane_b32 {sr(sW)}, {vr(w)}")
        V(f"v_lshrrev_b32 {vr(g)}, 4, {vr(lane)}")
        V(f"v_and_b32 {vr(m)}, 15, {vr(lane)}")
        j, q, x, y = t[4], t[5], t[6], t[7]
        V(f"v_lshrrev_b32 {vr(j)}, 3, {vr(lane)}")
        V(f"v_and_b32 {vr(q)}, 7, {vr(lane)}")
        V(f"v_lshrrev_b32 {vr(x)}, 2, {vr(j)}")
        V(f"v_and_b32 {vr(y)}, 3, {vr(j)}")
        V(f"v_lshlrev_b32 {vr(x)}, 2, {vr(x)}")
        V(f"v_add_u32 {vr(x)}, {vr(x)}, {vr(y)}")
        V(f"v_mul_u32_u24 {vr(x)}, {2 * 832}, {vr(x)}")
        V(f"v_lshrrev_b32 {vr(y)}, 1, {vr(j)}")
        V(f"v_xor_b32 {vr(y)}, {vr(y)}, {vr(q)}")
        V(f"v_lshl_add_u32 {vr(DV)}, {vr(y)}, 4, {vr(x)}")
        V(f"v_lshlrev_b32 {vr(DU)}, 4, {vr(lane)}")
        XA = t[8]
        V(f"v_mul_u32_u24 {vr(XA)}, 832, {vr(m)}")
        V(f"v_lshl_add_u32 {vr(XA)}, {vr(g)}, 4, {vr(XA)}")
        S(f"s_and_b32 {sr(sT0)}, {sr(sW)}, 1")
        S(f"s_lshr_b32 {sr(sT1)}, {sr(sW)}, 1")
        S(f"s_mul_i32 {sr(sVb)}, {sr(sT0)}, {SLOT}")
        S(f"s_mul_i32 {sr(sT2)}, {sr(sT1)}, 1088")
        S(f"s_add_u32 {sr(sVb)}, {sr(sVb)}, {sr(sT2)}")
        S(f"s_mul_i32 {sr(sVs0)}, {sr(sT0)}, {832 + 64}")
        S(f"s_mul_i32 {sr(sT2)}, {sr(sT1)}, {16 * 832}")
        S(f"s_add_u32 {sr(sVs0)}, {sr(sVs0)}, {sr(sT2)}")
        S(f"s_add_u32 {sr(sVs0 + 1)}, {sr(sVs0)}, {32 * 832}")
        S(f"s_add_u32 {sr(sVs0 + 2)}, {sr(sVs0)}, {64 * 832}")
        S(f"s_mul_i32 {sr(sWAs)}, {sr(sW)}, {16 * 832}")
        S(f"s_mul_i32 {sr(sWAm)}, {sr(sT1)}, {SLOT}")
        S(f"s_mul_i32 {sr(sT2)}, {sr(sT0)}, 1088")
        S(f"s_add_u32 {sr(sWAm)}, {sr(sWAm)}, {sr(sT2)}")
        S(f"s_add_u32 {sr(sWAm)}, {sr(sWAm)}, {Z + 4032 - 768}")
        S(f"s_mul_i32 {sr(sWBs)}, {sr(sT0)}, {16 * 832}")
        S(f"s_add_u32 {sr(sWBs)}, {sr(sWBs)}, {64 * 832}")
        S(f"s_add_u32 {sr(sWBm)}, {sr(sT2)}, {Z + 2 * SLOT + 4032 - 768}")
        S(f"s_lshl_b32 {sr(sT3)}, {sr(sW)}, 10")
        S(f"s_add_u32 {sr(sT6m)}, {sr(sT3)}, {T6}")
        S(f"s_add_u32 {sr(sT6s)}, {sr(sT3)}, {96 * 832 + LSTR}")
        S(f"s_add_u32 {sr(sLm)}, {sr(sT3)}, 81920")
        S(f"s_lshl_b32 {sr(sUm)}, {sr(sW)}, 12")
        S(f"s_add_u32 {sr(sMXs)}, {sr(sT3)}, {96 * 832 + LSTR + 4096}")
        S(f"s_add_u32 {sr(sMXm)}, {sr(sT3)}, {T6 + 4096}")
        S(f"s_cmp_eq_u32 {sr(sW)}, 3")
        S(f"s_cselect_b32 {sr(sMXs)}, 86016, {sr(sMXs)}")
        S(f"s_cselect_b32 {sr(sMXm)}, 86016, {sr(sMXm)}")
        S(f"s_lshl_b32 {sr(sXo)}, s2, 2")
        S(f"s_add_u32 {sr(sXo)}, {sr(sXo)}, {sr(sW)}")
        S(f"s_mul_i32 {sr(sXo)}, {sr(sXo)}, {16 * 832}")
        S(f"s_mov_b32 {sr(sMask)}, 0")
        S(f"s_mov_b32 {sr(sMask + 1)}, -1")
        S(f"s_mov_b32 {sr(sCnt)}, {c.nlayers - 2}")
        S(f"s_min_u32 {sr(sT2)}, {sr(sW)}, 2")
        S(f"s_lshl_b32 {sr(sT2)}, {sr(sT2)}, 10")
        S(f"s_add_u32 {sr(sT0)}, {sr(sT3)}, {96 * 832}")
        S(f"s_add_u32 {sr(sT1)}, {sr(sT2)}, {96 * 832 + 4096}")
        S(f"s_add_u32 {sr(sT2)}, {sr(sT2)}, {T6 + 4096}")
        bh, bt, bg, bl = t[9], t[10], t[11], t[12]
        V(f"v_min_u32 {vr(w)}, 2, {vr(w)}") if False else None
        S(f"s_min_u32 {sr(sT3)}, {sr(sW)}, 2")
        V(f"v_lshrrev_b32 {vr(bh)}, 5, {vr(lane)}")
        V(f"v_and_b32 {vr(bt)}, 1, {vr(g)}")
        V(f"v_lshl_add_u32 {vr(bh)}, {sr(sT3)}, 1, {vr(bh)}")
        rho = t[13]
        V(f"v_lshrrev_b32 {vr(x)}, 2, {vr(m)}")
        V(f"v_and_b32 {vr(y)}, 3, {vr(m)}")
        V(f"v_lshlrev_b32 {vr(x)}, 2, {vr(x)}")
        V(f"v_add_u32 {vr(x)}, {vr(x)}, {vr(y)}")
        V(f"v_lshlrev_b32 {vr(rho)}, 1, {vr(x)}")
        V(f"v_add_u32 {vr(x)}, {vr(rho)}, {vr(bt)}")
        V(f"v_mul_u32_u24 {vr(bg)}, 832, {vr(bh)}")
        V(f"v_lshl_add_u32 {vr(bg)}, {vr(x)}, 1, {vr(bg)}")
        V(f"v_mul_u32_u24 {vr(bl)}, 336, {vr(bh)}")
        V(f"v_mul_u32_u24 {vr(x)}, 208, {vr(bt)}")
        V(f"v_add_u32 {vr(bl)}, {vr(bl)}, {vr(x)}")
        V(f"v_lshl_add_u32 {vr(bl)}, {vr(m)}, 3, {vr(bl)}")
        V(f"v_add_u32 {vr(bl)}, {Z}, {vr(bl)}")
        V(f"v_mul_u32_u24 {vr(x)}, 208, {vr(rho)}")
        V(f"v_lshl_add_u32 {vr(PU)}, {vr(g)}, 4, {vr(x)}")
        V(f"v_lshl_add_u32 {vr(x)}, {vr(g)}, 3, {vr(x)}")
        V(f"v_add_u32 {vr(x)}, 192, {vr(x)}")
        V(f"v_lshlrev_b32 {vr(y)}, 3, {vr(m)}")
        V(f"v_add_u32 {vr(y)}, {Z}, {vr(y)}")
        V(f"v_cndmask_b32_e64 {vr(PT)}, {vr(x)}, {vr(y)}, {sr(sMask, 2)}")
        V(f"v_mov_b32 {vr(x)}, {WIN}")
        V(f"v_mov_b32 {vr(y)}, 2016")
        V(f"v_cndmask_b32_e64 {vr(D1)}, {vr(x)}, {vr(y)}, {sr(sMask, 2)}")
        V(f"v_mov_b32 {vr(x)}, {(-WIN) & 0xFFFFFFFF}")
        V(f"v_mov_b32 {vr(y)}, {(-1680) & 0xFFFFFFFF}")
        V(f"v_cndmask_b32_e64 {vr(x)}, {vr(x)}, {vr(y)}, {sr(sMask, 2)}")
        V(f"v_accvgpr_write_b32 {ar(s.ST_D2)}, {vr(x)}")
        V(f"v_accvgpr_write_b32 {ar(s.ST_XA)}, {vr(XA)}")
        V(f"v_and_b32 {vr(x)}, 7, {vr(m)}")
        V(f"v_lshrrev_b32 {vr(y)}, 1, {vr(x)}")
        V(f"v_xor_b32 {vr(y)}, {vr(y)}, {vr(g)}")
        V(f"v_lshlrev_b32 {vr(y)}, 4, {vr(y)}")
        V(f"v_lshl_add_u32 {vr(y)}, {vr(x)}, 7, {vr(y)}")
        V(f"v_lshrrev_b32 {vr(x)}, 3, {vr(m)}")
        V(f"v_mul_u32_u24 {vr(x)}, 1088, {vr(x)}")
        V(f"v_add_u32 {vr(y)}, {vr(y)}, {vr(x)}")
        V(f"v_add_u32 {vr(PV)}, {WIN}, {vr(y)}")
        V(f"v_lshrrev_b32 {vr(x)}, 3, {vr(m)}")
        V(f"v_mul_u32_u24 {vr(x)}, 12, {vr(x)}")
        V(f"v_xor_b32 {vr(x)}, {vr(x)}, {vr(m)}")
        V(f"v_mul_u32_u24 {vr(x)}, 832, {vr(x)}")
        V(f"v_lshl_add_u32 {vr(x)}, {vr(g)}, 4, {vr(x)}")
        V(f"v_add_u32 {vr(PV6)}, {T6}, {vr(x)}")
        XAk, bgk, blk = XF + 8, XF + 9, XF + 10
        XAk, bgk, blk = TMP, t[27], t[26]
        V(f"v_mov_b32 {vr(XAk)}, {vr(XA)}")
        V(f"v_mov_b32 {vr(bgk)}, {vr(bg)}")
        V(f"v_mov_b32 {vr(blk)}, {vr(bl)}")
        for i in range(26):
            V(f"v_mov_b32 {vr(H0 + i)}, 0")
        S("s_waitcnt lgkmcnt(0)")
        if c.stamps:
            S(f"s_memtime s[62:63]")
        for base, n in ((S_X, 16384 * 832), (S_U, NL * LSTR), (S_V, NL * LSTR), (S_B, NL * 832), (S_O, 16384 * 832)):
            S(f"s_mov_b32 {sr(base + 2)}, {n}")
            S(f"s_mov_b32 {sr(base + 3)}, 0x20000")
        S(f"s_cmp_eq_u32 {sr(sW)}, 3")
        S(f"s_cselect_b32 {sr(S_M)}, {sr(S_U)}, {sr(S_V)}")
        S(f"s_cselect_b32 {sr(S_M + 1)}, {sr(S_U + 1)}, {sr(S_V + 1)}")
        S(f"s_mov_b32 {sr(S_M + 2)}, {NL * LSTR}")
        S(f"s_mov_b32 {sr(S_M + 3)}, 0x20000")

        def dma(g):
            for sc, v in s.dma_items(g):
                if sc is not None:
                    o.append(sc)
                    o.append(I("s_nop 0", "salu"))
                o.append(v)

        def xload(f):
            dst = xo(f, 0) if f < 10 else xbuf(f)
            o.append(I(f"buffer_load_dwordx4 {vr(dst, 4)}, {vr(XAk)}, {sr(S_X, 4)}, {sr(sXo)} offen offset:{64 * f}{c.xmod}", "vload", grp=f"X{f}"))

        def stamp(k):
            if c.stamps and c.stamps != "rt":
                S(f"s_memtime s[{80 + 2 * k}:{81 + 2 * k}]")
        stamp(0)
        dma("WA"); dma("WB"); dma("V0")
        S(f"s_mov_b32 m0, {sr(sT6m)}"); S("s_nop 0")
        o.append(I(f"buffer_load_dwordx4 {vr(DU)}, {sr(S_V, 4)}, {sr(sT0)} offen lds", "dma", grp="T6"))
        S(f"s_mov_b32 m0, {sr(sT2)}"); S("s_nop 0")
        o.append(I(f"buffer_load_dwordx4 {vr(DU)}, {sr(S_V, 4)}, {sr(sT1)} offen lds", "dma", grp="T6b"))
        xload(0); xload(1)
        for p in range(13):
            o.append(I(f"buffer_load_short_d16_hi {vr(H0 + 2 * p)}, {vr(bgk)}, {sr(S_B, 4)}, 0 offen offset:{64 * p}", "vload", grp="BI"))
        if c.pf_w:
            S(f"s_lshr_b32 {sr(sT3)}, s2, 3")
            S(f"s_and_b32 {sr(sT3)}, {sr(sT3)}, 31")
            S(f"s_mul_i32 {sr(sT3)}, {sr(sT3)}, {NL * LSTR // 32}")
            V(f"v_lshlrev_b32 {vr(1)}, 2, {vr(DU)}")
            S(f"s_lshl_b32 {sr(sCnt)}, {sr(sW)}, 12")
            S(f"s_add_u32 {sr(sT3)}, {sr(sT3)}, {sr(sCnt)}")
            S(f"s_mov_b32 {sr(sCnt)}, {c.nlayers - 2}")
            PFD = s.ST + 2
            o.append(I(f"buffer_load_dword {ar(PFD)}, {vr(1)}, {sr(S_V, 4)}, {sr(sT3)} offen", "vload", grp="PW"))
            o.append(I(f"buffer_load_dword {ar(PFD + 1)}, {vr(1)}, {sr(S_U, 4)}, {sr(sT3)} offen", "vload", grp="PW"))
        dma("V1"); xload(2); xload(3)
        dma("V2"); xload(4); xload(5)
        dma("V3"); xload(6); xload(7)
        dma("V4")
        for f in range(8, 13):
            xload(f)
        stamp(1)
        for i in range(104):
            V(f"v_mov_b32 {vr(C0 + i)}, 1.0")
        for e in range(6):
            V(f"v_accvgpr_write_b32 {ar(s.TR0 + 4 * e + 2)}, 0")
            V(f"v_accvgpr_write_b32 {ar(s.TR0 + 4 * e + 3)}, 0")
        stamp(2)
        w = I(None, "wait"); w.wait = dict(vm=["BI"], lg=False); o.append(w)
        stamp(3)
        if c.stamps:
            S("s_waitcnt lgkmcnt(0)")
        for p in range(13):
            imm = SLOT * (p % 7) + (2016 if p >= 7 else 0)
            o.append(I(f"ds_write_b64 {vr(blk)}, {vr(H0 + 2 * p, 2)} offset:{imm}", "dsw"))
        if c.stamps:
            S("s_waitcnt lgkmcnt(0)")
        stamp(4)
        w = I(None, "wait"); w.wait = dict(vm=["WA", "WB", "V0", "T6", "T6b", "X0"], lg=False, lg0=True); o.append(w)
        stamp(5)
        o.append(I("s_barrier", "barrier"))
        if c.stamps:
            S(f"s_memtime s[64:65]")
            if c.stamps == "rt":
                S(f"s_memrealtime s[80:81]")
            S("s_waitcnt lgkmcnt(0)")
        for T in range(c.LA):
            o.append(s.slot_desc(T, True)[1])
            if T == s.g1_slot_of(0, 5):
                o.append(I(f"v_subrev_u32 {vr(PV)}, {WIN}, {vr(PV)}", "valu"))
        w = I(None, "wait"); w.wait = dict(vm=[], lg=True); o.append(w)
        return o

    BI_R, BI_QA, BI_QB, BI_AD = 0, 8, 12, 16

    def prologue2(s):
        c = s.c
        o = []
        S = lambda t: o.append(I(t, "salu"))
        V = lambda t: o.append(I(t, "valu"))
        t = [H0 + i for i in range(28)]
        S(f"s_cmp_ge_u32 s2, 256")
        S(f"s_cbranch_scc1 L_end")
        S(f"s_load_dwordx2 {sr(S_X, 2)}, s[0:1], 0")
        S(f"s_load_dwordx2 {sr(S_V, 2)}, s[0:1], 16")
        S(f"s_load_dwordx2 {sr(S_U, 2)}, s[0:1], 8")
        S(f"s_load_dwordx2 {sr(S_B, 2)}, s[0:1], 24")
        S(f"s_load_dwordx2 {sr(S_O, 2)}, s[0:1], 32")
        if c.stamps:
            S(f"s_load_dwordx2 {sr(sDbg, 2)}, s[0:1], {40 if c.dbg else 48}")
            S(f"s_memtime s[60:61]")
            S(f"s_memrealtime s[70:71]")
        lane, w, g, m = t[0], t[1], t[2], t[3]
        V(f"v_lshrrev_b32 {vr(w)}, 6, v0")
        V(f"v_and_b32 {vr(lane)}, 63, v0")
        V(f"v_readfirstlane_b32 {sr(sW)}, {vr(w)}")
        if c.pf_code:
            S(f"s_getpc_b64 {sr(S_M, 2)}")
            o.append(I("L_pc:", "label"))
            S(f"s_mov_b32 {sr(S_M + 2)}, L_end-L_pc")
            S(f"s_mov_b32 {sr(S_M + 3)}, 0x20000")
            V(f"v_lshlrev_b32 {vr(t[20])}, 6, v0")
            o.append(I(f"buffer_load_dword {ar(s.ST + 4)}, {vr(t[20])}, {sr(S_M, 4)}, 0 offen", "vload", grp="PC"))
            if c.wvloop:
                V(f"v_add_u32 {vr(t[20])}, 16384, {vr(t[20])}")
                o.append(I(f"buffer_load_dword {ar(s.ST + 5)}, {vr(t[20])}, {sr(S_M, 4)}, 0 offen", "vload", grp="PC"))
        V(f"v_lshrrev_b32 {vr(g)}, 4, {vr(lane)}")
        V(f"v_and_b32 {vr(m)}, 15, {vr(lane)}")
        j, q, x, y = t[4], t[5], t[6], t[7]
        V(f"v_lshrrev_b32 {vr(j)}, 3, {vr(lane)}")
        V(f"v_and_b32 {vr(q)}, 7, {vr(lane)}")
        V(f"v_mul_u32_u24 {vr(x)}, {2 * 832}, {vr(j)}")
        V(f"v_lshrrev_b32 {vr(y)}, 1, {vr(j)}")
        V(f"v_xor_b32 {vr(y)}, {vr(y)}, {vr(q)}")
        V(f"v_lshl_add_u32 {vr(DV)}, {vr(y)}, 4, {vr(x)}")
        V(f"v_lshlrev_b32 {vr(DU)}, 4, {vr(lane)}")
        XA = TMP
        V(f"v_mul_u32_u24 {vr(XA)}, 832, {vr(m)}")
        V(f"v_lshl_add_u32 {vr(XA)}, {vr(g)}, 4, {vr(XA)}")
        S(f"s_and_b32 {sr(sT0)}, {sr(sW)}, 1")
        S(f"s_lshr_b32 {sr(sT1)}, {sr(sW)}, 1")
        S(f"s_mul_i32 {sr(sVb)}, {sr(sT0)}, {SLOT}")
        S(f"s_mul_i32 {sr(sT2)}, {sr(sT1)}, 1088")
        S(f"s_add_u32 {sr(sVb)}, {sr(sVb)}, {sr(sT2)}")
        S(f"s_mul_i32 {sr(sVs0)}, {sr(sT0)}, {832 + 64}")
        S(f"s_mul_i32 {sr(sT2)}, {sr(sT1)}, {16 * 832}")
        S(f"s_add_u32 {sr(sVs0)}, {sr(sVs0)}, {sr(sT2)}")
        S(f"s_add_u32 {sr(sVs0 + 1)}, {sr(sVs0)}, {32 * 832}")
        S(f"s_add_u32 {sr(sVs0 + 2)}, {sr(sVs0)}, {64 * 832}")
        S(f"s_mul_i32 {sr(sWAs)}, {sr(sW)}, {16 * 832}")
        S(f"s_mul_i32 {sr(sWAm)}, {sr(sT1)}, {SLOT}")
        S(f"s_mul_i32 {sr(sT2)}, {sr(sT0)}, 1088")
        S(f"s_add_u32 {sr(sWAm)}, {sr(sWAm)}, {sr(sT2)}")
        S(f"s_add_u32 {sr(sWAm)}, {sr(sWAm)}, {Z + 4032 - 768}")
        S(f"s_mul_i32 {sr(sWBs)}, {sr(sT0)}, {16 * 832}")
        S(f"s_add_u32 {sr(sWBs)}, {sr(sWBs)}, {64 * 832}")
        S(f"s_add_u32 {sr(sWBm)}, {sr(sT2)}, {Z + 2 * SLOT + 4032 - 768}")
        S(f"s_lshl_b32 {sr(sT3)}, {sr(sW)}, 10")
        S(f"s_add_u32 {sr(sT6m)}, {sr(sT3)}, {T6}")
        S(f"s_add_u32 {sr(sLm)}, {sr(sT3)}, 81920")
        S(f"s_add_u32 {sr(sT6s)}, {sr(sT3)}, {96 * 832 + LSTR}")
        S(f"s_add_u32 {sr(sMXs)}, {sr(sT3)}, {96 * 832 + LSTR + 4096}")
        S(f"s_add_u32 {sr(sMXm)}, {sr(sT3)}, {T6 + 4096}")
        S(f"s_add_u32 {sr(sT0)}, {sr(sT3)}, {96 * 832}")
        S(f"s_min_u32 {sr(sT2)}, {sr(sW)}, 2")
        S(f"s_lshl_b32 {sr(sT2)}, {sr(sT2)}, 10")
        S(f"s_add_u32 {sr(sT1)}, {sr(sT2)}, {96 * 832 + 4096}")
        S(f"s_add_u32 {sr(sT2)}, {sr(sT2)}, {T6 + 4096}")
        S(f"s_lshl_b32 {sr(sXo)}, s2, 2")
        S(f"s_add_u32 {sr(sXo)}, {sr(sXo)}, {sr(sW)}")
        S(f"s_mul_i32 {sr(sXo)}, {sr(sXo)}, {16 * 832}")
        for base, n in ((S_X, 16384 * 832), (S_V, NL * LSTR), (S_U, NL * LSTR), (S_B, NL * 832), (S_O, 16384 * 832)):
            S(f"s_mov_b32 {sr(base + 2)}, {n}")
            S(f"s_mov_b32 {sr(base + 3)}, 0x20000")
        if c.stamps and c.stamps != "rt":
            S(f"s_memtime s[90:91]")
        S("s_waitcnt lgkmcnt(0)")
        if c.stamps:
            S(f"s_memtime s[62:63]")

        def stamp(k):
            if c.stamps and c.stamps != "rt":
                S(f"s_memtime s[{80 + 2 * k}:{81 + 2 * k}]")

        def dma(gname):
            for sc, v in s.dma_items(gname):
                if sc is not None:
                    o.append(sc)
                    o.append(I("s_nop 0", "salu"))
                o.append(v)

        def xload(f):
            dst = xo(f, 0) if f < 10 else xbuf(f)
            o.append(I(f"buffer_load_dwordx4 {vr(dst, 4)}, {vr(XA)}, {sr(S_X, 4)}, {sr(sXo)} offen offset:{64 * f}{c.xmod}", "vload", grp=f"X{f}"))

        stamp(0)
        dma("WA"); dma("WB"); dma("V0")
        S(f"s_mov_b32 m0, {sr(sT6m)}"); S("s_nop 0")
        o.append(I(f"buffer_load_dwordx4 {vr(DU)}, {sr(S_V, 4)}, {sr(sT0)} offen lds", "dma", grp="T6"))
        S(f"s_mov_b32 m0, {sr(sT2)}"); S("s_nop 0")
        o.append(I(f"buffer_load_dwordx4 {vr(DU)}, {sr(S_V, 4)}, {sr(sT1)} offen lds", "dma", grp="T6b"))
        xload(0); xload(1)

        def pfw():
            S(f"s_lshr_b32 {sr(sT3)}, s2, 3")
            S(f"s_and_b32 {sr(sT3)}, {sr(sT3)}, 31")
            S(f"s_mul_i32 {sr(sT3)}, {sr(sT3)}, {NL * LSTR // 32}")
            V(f"v_lshlrev_b32 {vr(t[21])}, 2, {vr(DU)}")
            S(f"s_lshl_b32 {sr(sT0)}, {sr(sW)}, 12")
            S(f"s_add_u32 {sr(sT3)}, {sr(sT3)}, {sr(sT0)}")
            PFD = s.ST + 2
            o.append(I(f"buffer_load_dword {ar(PFD)}, {vr(t[21])}, {sr(S_V, 4)}, {sr(sT3)} offen", "vload", grp="PW"))
            o.append(I(f"buffer_load_dword {ar(PFD + 1)}, {vr(t[21])}, {sr(S_U, 4)}, {sr(sT3)} offen", "vload", grp="PW"))
        bl, bm, bg = t[8], t[9], t[10]
        def biloads():
            V(f"v_lshrrev_b32 {vr(bl)}, 3, {vr(lane)}")
            V(f"v_min_u32 {vr(bl)}, 5, {vr(bl)}")
            V(f"v_and_b32 {vr(bm)}, 7, {vr(lane)}")
            V(f"v_mul_u32_u24 {vr(bg)}, 832, {vr(bl)}")
            V(f"v_lshl_add_u32 {vr(bg)}, {vr(bm)}, 3, {vr(bg)}")
            S(f"s_lshl_b32 {sr(sT0)}, {sr(sW)}, 6")
            for k in range(4):
                so = sr(sT0) if k < 3 else "0"
                o.append(I(f"buffer_load_dwordx2 {vr(s.BI_R + 2 * k, 2)}, {vr(bg)}, {sr(S_B, 4)}, {so} offen offset:{256 * k}", "vload", grp="BI"))
        if c.bi_early:
            biloads()
        if c.pf_w == 1:
            pfw()
        dma("V1"); xload(2); xload(3)
        dma("V2"); xload(4); xload(5)
        dma("V3"); xload(6); xload(7)
        dma("V4")
        for f in range(8, 13):
            xload(f)
        if c.pf_w == 2:
            pfw()
        if not c.bi_early:
            biloads()
        stamp(1)
        V(f"v_mul_u32_u24 {vr(bl)}, 336, {vr(bl)}")
        V(f"v_lshl_add_u32 {vr(bl)}, {vr(bm)}, 4, {vr(bl)}")
        V(f"v_add_u32 {vr(bl)}, {Z}, {vr(bl)}")
        S(f"s_mul_i32 {sr(sT0)}, {sr(sW)}, {SLOT}")
        V(f"v_add_u32 {vr(s.BI_AD)}, {sr(sT0)}, {vr(bl)}")
        S(f"s_add_u32 {sr(sT1)}, {sr(sT0)}, {4 * SLOT}")
        S(f"s_cmp_eq_u32 {sr(sW)}, 3")
        S(f"s_cselect_b32 {sr(sT1)}, 2016, {sr(sT1)}")
        V(f"v_add_u32 {vr(s.BI_AD + 1)}, {sr(sT1)}, {vr(bl)}")
        S(f"s_add_u32 {sr(sT1)}, {sr(sT0)}, {SLOT + 2016}")
        V(f"v_add_u32 {vr(s.BI_AD + 2)}, {sr(sT1)}, {vr(bl)}")
        V(f"v_add_u32 {vr(s.BI_AD + 3)}, {5 * SLOT + 2016}, {vr(bl)}")
        for r in (s.BI_QA + 1, s.BI_QA + 3, s.BI_QB + 1, s.BI_QB + 3):
            V(f"v_mov_b32 {vr(r)}, 0")
        S(f"s_lshl_b32 {sr(sUm)}, {sr(sW)}, 12")
        S(f"s_cmp_eq_u32 {sr(sW)}, 3")
        S(f"s_cselect_b32 {sr(sMXs)}, 86016, {sr(sMXs)}")
        S(f"s_cselect_b32 {sr(sMXm)}, 86016, {sr(sMXm)}")
        S(f"s_cselect_b32 {sr(S_M)}, {sr(S_U)}, {sr(S_V)}")
        S(f"s_cselect_b32 {sr(S_M + 1)}, {sr(S_U + 1)}, {sr(S_V + 1)}")
        S(f"s_mov_b32 {sr(S_M + 2)}, {NL * LSTR}")
        S(f"s_mov_b32 {sr(S_M + 3)}, 0x20000")
        S(f"s_mov_b32 {sr(sMask)}, 0")
        S(f"s_mov_b32 {sr(sMask + 1)}, -1")
        S(f"s_mov_b32 {sr(sCnt)}, {c.nlayers - 2}")
        rho = t[13]
        V(f"v_lshrrev_b32 {vr(x)}, 2, {vr(m)}")
        V(f"v_and_b32 {vr(y)}, 3, {vr(m)}")
        V(f"v_lshlrev_b32 {vr(x)}, 2, {vr(x)}")
        V(f"v_add_u32 {vr(x)}, {vr(x)}, {vr(y)}")
        V(f"v_lshlrev_b32 {vr(rho)}, 1, {vr(x)}")
        V(f"v_and_b32 {vr(x)}, 7, {vr(m)}")
        V(f"v_lshrrev_b32 {vr(y)}, 1, {vr(x)}")
        V(f"v_xor_b32 {vr(y)}, {vr(y)}, {vr(g)}")
        V(f"v_lshlrev_b32 {vr(y)}, 4, {vr(y)}")
        V(f"v_lshl_add_u32 {vr(y)}, {vr(x)}, 7, {vr(y)}")
        V(f"v_lshrrev_b32 {vr(x)}, 3, {vr(m)}")
        V(f"v_mul_u32_u24 {vr(x)}, 1088, {vr(x)}")
        V(f"v_add_u32 {vr(y)}, {vr(y)}, {vr(x)}")
        V(f"v_add_u32 {vr(PV)}, {WIN}, {vr(y)}")
        V(f"v_lshrrev_b32 {vr(x)}, 3, {vr(m)}")
        V(f"v_mul_u32_u24 {vr(x)}, 12, {vr(x)}")
        V(f"v_xor_b32 {vr(x)}, {vr(x)}, {vr(m)}")
        V(f"v_mul_u32_u24 {vr(x)}, 832, {vr(x)}")
        V(f"v_lshl_add_u32 {vr(x)}, {vr(g)}, 4, {vr(x)}")
        V(f"v_add_u32 {vr(PV6)}, {T6}, {vr(x)}")
        V(f"v_mul_u32_u24 {vr(x)}, 208, {vr(rho)}")
        V(f"v_lshl_add_u32 {vr(PU)}, {vr(g)}, 4, {vr(x)}")
        V(f"v_lshl_add_u32 {vr(x)}, {vr(g)}, 3, {vr(x)}")
        V(f"v_add_u32 {vr(x)}, 192, {vr(x)}")
        V(f"v_lshlrev_b32 {vr(y)}, 3, {vr(m)}")
        V(f"v_add_u32 {vr(y)}, {Z}, {vr(y)}")
        V(f"v_cndmask_b32_e64 {vr(PT)}, {vr(x)}, {vr(y)}, {sr(sMask, 2)}")
        V(f"v_mov_b32 {vr(x)}, {WIN}")
        V(f"v_mov_b32 {vr(y)}, 2016")
        V(f"v_cndmask_b32_e64 {vr(D1)}, {vr(x)}, {vr(y)}, {sr(sMask, 2)}")
        V(f"v_mov_b32 {vr(x)}, {(-WIN) & 0xFFFFFFFF}")
        V(f"v_mov_b32 {vr(y)}, {(-1680) & 0xFFFFFFFF}")
        V(f"v_cndmask_b32_e64 {vr(x)}, {vr(x)}, {vr(y)}, {sr(sMask, 2)}")
        V(f"v_accvgpr_write_b32 {ar(s.ST_D2)}, {vr(x)}")
        V(f"v_accvgpr_write_b32 {ar(s.ST_XA)}, {vr(XA)}")
        for e in range(6):
            V(f"v_accvgpr_write_b32 {ar(s.TR0 + 4 * e + 2)}, 0")
            V(f"v_accvgpr_write_b32 {ar(s.TR0 + 4 * e + 3)}, 0")
        for i in range(20, 104):
            V(f"v_mov_b32 {vr(C0 + i)}, 1.0")
        stamp(2)
        w_ = I(None, "wait"); w_.wait = dict(vm=["WA", "WB", "V0", "T6", "T6b", "X0"], lg=False); o.append(w_)
        stamp(3)
        if c.stamps and c.stamps != "rt":
            S("s_waitcnt lgkmcnt(0)")
        o.append(I("s_barrier", "barrier"))
        if c.stamps:
            S(f"s_memtime s[64:65]")
            if c.stamps == "rt":
                S(f"s_memrealtime s[80:81]")
            S("s_waitcnt lgkmcnt(0)")
        for T in range(c.LA):
            o.append(s.slot_desc(T, True)[1])
            if T == s.g1_slot_of(0, 5):
                o.append(I(f"v_subrev_u32 {vr(PV)}, {WIN}, {vr(PV)}", "valu"))
        w_ = I(None, "wait"); w_.wait = dict(vm=[], lg=True); o.append(w_)
        return o

    def prologue3(s):
        c = s.c
        o = []
        cur = [o]
        S = lambda t: cur[0].append(I(t, "salu"))
        V = lambda t: cur[0].append(I(t, "valu"))
        t = [H0 + i for i in range(28)]
        sP = list(range(92, 100))
        own_pc = (not c._hdr) or c.split is not None
        if not c._hdr:
            S(f"s_cmp_ge_u32 s2, 256")
            S(f"s_cbranch_scc1 L_end")
        S(f"s_load_dwordx2 {sr(S_V, 2)}, s[0:1], 16")
        S(f"s_load_dwordx2 {sr(S_X, 2)}, s[0:1], 0")
        S(f"s_load_dwordx2 {sr(S_U, 2)}, s[0:1], 8")
        S(f"s_load_dwordx2 {sr(S_B, 2)}, s[0:1], 24")
        S(f"s_load_dwordx2 {sr(S_O, 2)}, s[0:1], 32")
        if c.keep and not c.stamps:
            S(f"s_load_dwordx2 {sr(sDbg, 2)}, s[0:1], 48")
        if c.stamps:
            S(f"s_load_dwordx2 {sr(sDbg, 2)}, s[0:1], {40 if c.dbg else 48}")
            S(f"s_memtime s[60:61]")
            S(f"s_memrealtime s[70:71]")
        lane, w, g, m = t[0], t[1], t[2], t[3]
        V(f"v_lshrrev_b32 {vr(w)}, 6, v0")
        V(f"v_and_b32 {vr(lane)}, 63, v0")
        V(f"v_readfirstlane_b32 {sr(sW)}, {vr(w)}")
        if c.pf_code:
            if own_pc:
                S(f"s_getpc_b64 {sr(S_M, 2)}")
                o.append(I("L_pc:", "label"))
            S(f"s_mov_b32 {sr(S_M + 2)}, {'L_pad' if c.pad else 'L_fin' if c._hdr else 'L_end'}-L_pc")
            S(f"s_mov_b32 {sr(S_M + 3)}, 0x20000")
            if c.pf_slice:
                pfl = -(-c.pf_bytes // (c.pf_slice * 256))
                assert pfl <= 31
                S(f"s_lshr_b32 s4, s2, 3")
                S(f"s_and_b32 s4, s4, {c.pf_slice - 1}")
                S(f"s_lshl_b32 s4, s4, 2")
                S(f"s_add_u32 s4, s4, {sr(sW)}")
                S(f"s_mul_i32 s4, s4, {64 * pfl}")
                V(f"v_lshlrev_b32 {vr(t[20])}, 6, {vr(lane)}")
                S(f"s_mov_b64 exec, {hex((1 << pfl) - 1)}")
                o.append(I(f"buffer_load_dword {ar(s.ST + 4)}, {vr(t[20])}, {sr(S_M, 4)}, s4 offen", "vload", grp="PC"))
                S(f"s_mov_b64 exec, -1")
            else:
                V(f"v_lshlrev_b32 {vr(t[20])}, 6, v0")
                o.append(I(f"buffer_load_dword {ar(s.ST + 4)}, {vr(t[20])}, {sr(S_M, 4)}, 0 offen", "vload", grp="PC"))
                for k in range(1, c.pf_code):
                    V(f"v_add_u32 {vr(t[20])}, 16384, {vr(t[20])}")
                    o.append(I(f"buffer_load_dword {ar(s.ST + 4 + k)}, {vr(t[20])}, {sr(S_M, 4)}, 0 offen", "vload", grp="PC"))
        if c.split == "pf":
            o.append(I(None, "split"))
        V(f"v_lshrrev_b32 {vr(g)}, 4, {vr(lane)}")
        V(f"v_and_b32 {vr(m)}, 15, {vr(lane)}")
        j, q, x, y = t[4], t[5], t[6], t[7]
        V(f"v_lshrrev_b32 {vr(j)}, 3, {vr(lane)}")
        V(f"v_and_b32 {vr(q)}, 7, {vr(lane)}")
        XA = TMP
        bl, bm, bg = t[8], t[9], t[10]
        G = {}
        toks = c.p3order.split()

        def group(name):
            G[name] = []; cur[0] = G[name]
        group("DV")
        V(f"v_mul_u32_u24 {vr(x)}, {2 * 832}, {vr(j)}")
        V(f"v_lshrrev_b32 {vr(y)}, 1, {vr(j)}")
        V(f"v_xor_b32 {vr(y)}, {vr(y)}, {vr(q)}")
        V(f"v_lshl_add_u32 {vr(DV)}, {vr(y)}, 4, {vr(x)}")
        group("DU")
        V(f"v_lshlrev_b32 {vr(DU)}, 4, {vr(lane)}")
        group("XA")
        V(f"v_mul_u32_u24 {vr(XA)}, 832, {vr(m)}")
        V(f"v_lshl_add_u32 {vr(XA)}, {vr(g)}, 4, {vr(XA)}")
        group("BG")
        V(f"v_min_u32 {vr(bl)}, 5, {vr(j)}")
        V(f"v_mul_u32_u24 {vr(bg)}, 832, {vr(bl)}")
        V(f"v_lshl_add_u32 {vr(bg)}, {vr(q)}, 3, {vr(bg)}")
        S(f"s_lshl_b32 {sr(sP[3])}, {sr(sW)}, 6")
        group("PW")
        if not c.p3trim or c.pf_w:
            V(f"v_lshlrev_b32 {vr(t[21])}, 2, {vr(DU)}")
            S(f"s_lshr_b32 {sr(sP[4])}, s2, 3")
            S(f"s_and_b32 {sr(sP[4])}, {sr(sP[4])}, 31")
            S(f"s_mul_i32 {sr(sP[4])}, {sr(sP[4])}, {NL * LSTR // 32}")
            S(f"s_lshl_b32 {sr(sP[5])}, {sr(sW)}, 12")
            S(f"s_add_u32 {sr(sP[4])}, {sr(sP[4])}, {sr(sP[5])}")
        group("P0")
        if not c.p3trim or c.pw1 or any(k_[:2] == "P0" for k_ in toks):
            V(f"v_mul_u32_u24 {vr(t[22])}, 373, {vr(lane)}")
            V(f"v_lshrrev_b32 {vr(t[22])}, 12, {vr(t[22])}")
            V(f"v_mul_u32_u24 {vr(t[23])}, 11, {vr(t[22])}")
            V(f"v_sub_u32 {vr(t[23])}, {vr(lane)}, {vr(t[23])}")
            V(f"v_mul_u32_u24 {vr(t[22])}, {LSTR}, {vr(t[22])}")
            V(f"v_lshl_add_u32 {vr(t[22])}, {vr(t[23])}, 6, {vr(t[22])}")
            S(f"s_lshr_b32 {sr(sP[6])}, s2, 3")
            S(f"s_and_b32 {sr(sP[6])}, {sr(sP[6])}, 31")
            S(f"s_mul_i32 {sr(sP[6])}, {sr(sP[6])}, {LSTR // 32}")
            S(f"s_mul_i32 {sr(sP[5])}, {sr(sW)}, {LSTR // 128}")
            S(f"s_add_u32 {sr(sP[6])}, {sr(sP[6])}, {sr(sP[5])}")
        group("TU")
        S(f"s_and_b32 {sr(sT0)}, {sr(sW)}, 1")
        S(f"s_lshr_b32 {sr(sT1)}, {sr(sW)}, 1")
        S(f"s_mul_i32 {sr(sVb)}, {sr(sT0)}, {SLOT}")
        S(f"s_mul_i32 {sr(sT2)}, {sr(sT1)}, 1088")
        S(f"s_add_u32 {sr(sVb)}, {sr(sVb)}, {sr(sT2)}")
        S(f"s_mul_i32 {sr(sVs0)}, {sr(sT0)}, {832 + 64}")
        S(f"s_mul_i32 {sr(sT2)}, {sr(sT1)}, {16 * 832}")
        S(f"s_add_u32 {sr(sVs0)}, {sr(sVs0)}, {sr(sT2)}")
        S(f"s_add_u32 {sr(sVs0 + 1)}, {sr(sVs0)}, {32 * 832}")
        S(f"s_add_u32 {sr(sVs0 + 2)}, {sr(sVs0)}, {64 * 832}")
        group("WAB")
        S(f"s_mul_i32 {sr(sWAs)}, {sr(sW)}, {16 * 832}")
        S(f"s_mul_i32 {sr(sWAm)}, {sr(sT1)}, {SLOT}")
        S(f"s_mul_i32 {sr(sT2)}, {sr(sT0)}, 1088")
        S(f"s_add_u32 {sr(sWAm)}, {sr(sWAm)}, {sr(sT2)}")
        S(f"s_add_u32 {sr(sWAm)}, {sr(sWAm)}, {Z + 4032 - 768}")
        S(f"s_mul_i32 {sr(sWBs)}, {sr(sT0)}, {16 * 832}")
        S(f"s_add_u32 {sr(sWBs)}, {sr(sWBs)}, {64 * 832}")
        S(f"s_add_u32 {sr(sWBm)}, {sr(sT2)}, {Z + 2 * SLOT + 4032 - 768}")
        group("T3")
        S(f"s_lshl_b32 {sr(sT3)}, {sr(sW)}, 10")
        S(f"s_add_u32 {sr(sT6m)}, {sr(sT3)}, {T6}")
        S(f"s_add_u32 {sr(sP[0])}, {sr(sT3)}, {96 * 832}")
        S(f"s_min_u32 {sr(sP[2])}, {sr(sW)}, 2")
        S(f"s_lshl_b32 {sr(sP[2])}, {sr(sP[2])}, 10")
        S(f"s_add_u32 {sr(sP[1])}, {sr(sP[2])}, {96 * 832 + 4096}")
        S(f"s_add_u32 {sr(sP[2])}, {sr(sP[2])}, {T6 + 4096}")
        group("T3b")
        S(f"s_add_u32 {sr(sLm)}, {sr(sT3)}, 81920")
        S(f"s_add_u32 {sr(sT6s)}, {sr(sT3)}, {96 * 832 + LSTR}")
        S(f"s_add_u32 {sr(sMXs)}, {sr(sT3)}, {96 * 832 + LSTR + 4096}")
        S(f"s_add_u32 {sr(sMXm)}, {sr(sT3)}, {T6 + 4096}")
        group("XO")
        S(f"s_lshl_b32 {sr(sXo)}, s2, 2")
        S(f"s_add_u32 {sr(sXo)}, {sr(sXo)}, {sr(sW)}")
        S(f"s_mul_i32 {sr(sXo)}, {sr(sXo)}, {16 * 832}")
        group("S4")
        S(f"s_lshr_b32 s4, s2, 3")
        S(f"s_and_b32 s4, s4, 31")
        S(f"s_lshl_b32 s4, s4, 2")
        S(f"s_add_u32 s4, s4, {sr(sW)}")
        S(f"s_mul_i32 s4, s4, {LSTR // 128}")
        S(f"s_and_b32 s4, s4, 0xffffffc0")
        S(f"s_add_u32 s5, s4, {LSTR}")
        S(f"s_add_u32 s6, s4, {2 * LSTR}")
        group("KP")
        if c.keep:
            S(f"s_lshl_b32 s7, s2, 2")
            S(f"s_add_u32 s7, s7, {sr(sW)}")
            S(f"s_lshl_b32 s7, s7, 7")
            S(f"s_add_u32 s7, s7, 0x10000")
            S(f"s_mov_b32 {sr(sDbg + 2)}, 0x8000000")
            S(f"s_mov_b32 {sr(sDbg + 3)}, 0x20000")
        for nm, base, n in (("RV", S_V, NL * LSTR), ("RX", S_X, 16384 * 832), ("RU", S_U, NL * LSTR), ("RB", S_B, NL * 832), ("RO", S_O, 16384 * 832)):
            group(nm)
            S(f"s_mov_b32 {sr(base + 2)}, {n}")
            S(f"s_mov_b32 {sr(base + 3)}, 0x20000")
        cur[0] = o
        done = set()

        def want(names):
            for nm in G:
                if nm in names and nm not in done:
                    done.add(nm); o.extend(G[nm])

        def needs(tok):
            if tok in ("T6", "T6b"): return {"DU", "T3", "RV"}
            if tok[0] == "X": return {"XA", "XO", "RX"}
            if tok == "BI": return {"BG", "RB"}
            if tok == "PW": return {"DU", "PW", "RV", "RU"}
            if tok[0] == "Q": return {"DU", "S4", "RV" if tok[2] == "V" else "RU"}
            if tok[:2] == "P0": return {"P0", "RV", "RU"}
            if tok in ("WA", "WB"): return {"DV", "TU", "WAB", "RV"}
            if tok[0] == "V": return {"DV", "TU", "RV"}
            return set(G)
        want(needs(toks[0]) if c.p3trim else set(G))
        if c.stamps and c.stamps != "rt":
            S(f"s_memtime s[90:91]")
        S("s_waitcnt lgkmcnt(0)")
        if c.stamps:
            S(f"s_memtime s[62:63]")

        def stamp(k):
            if c.stamps and c.stamps != "rt":
                S(f"s_memtime s[{80 + 2 * k}:{81 + 2 * k}]")

        s._dm = c.dmamod0 if c.dmamod0 is not None else c.dmamod
        items = []
        M0 = lambda txt: [I(txt, "salu"), I("s_nop 0", "salu")]
        itok = []
        for tok in c.p3order.split() + [None]:
            itok += [itok_prev] * (len(items) - len(itok)) if items else []
            itok_prev = tok
            if tok is None:
                break
            if tok == "T6":
                items.append(M0(f"s_mov_b32 m0, {sr(sT6m)}") + [I(f"buffer_load_dwordx4 {vr(DU)}, {sr(S_V, 4)}, {sr(sP[0])} offen{s._dm} lds", "dma", grp="T6")])
            elif tok == "T6b":
                items.append(M0(f"s_mov_b32 m0, {sr(sP[2])}") + [I(f"buffer_load_dwordx4 {vr(DU)}, {sr(S_V, 4)}, {sr(sP[1])} offen{s._dm} lds", "dma", grp="T6b")])
            elif tok[0] == "X":
                f = int(tok[1:])
                dst = xo(f, 0) if f < 10 else xbuf(f)
                items.append([I(f"buffer_load_dwordx4 {vr(dst, 4)}, {vr(XA)}, {sr(S_X, 4)}, {sr(sXo)} offen offset:{64 * f}{c.xmod}", "vload", grp=f"X{f}")])
            elif tok == "BI":
                for k in range(4):
                    so = sr(sP[3]) if k < 3 else "0"
                    items.append([I(f"buffer_load_dwordx2 {vr(s.BI_R + 2 * k, 2)}, {vr(bg)}, {sr(S_B, 4)}, {so} offen offset:{256 * k}", "vload", grp="BI")])
            elif tok == "PW":
                if c.pf_w:
                    PFD = s.ST + 2
                    items.append([I(f"buffer_load_dword {ar(PFD)}, {vr(t[21])}, {sr(S_V, 4)}, {sr(sP[4])} offen{c.pmod}", "vload", grp="PW")])
                    items.append([I(f"buffer_load_dword {ar(PFD + 1)}, {vr(t[21])}, {sr(S_U, 4)}, {sr(sP[4])} offen{c.pmod}", "vload", grp="PW")])
            elif tok[0] == "Q":
                ly = int(tok[1]); srd = S_V if tok[2] == "V" else S_U
                items.append([I(f"buffer_load_dword {ar(s.ST + 2 + 2 * ly + (tok[2] == 'U'))}, {vr(DU)}, {sr(srd, 4)}, s{4 + ly} offen{c.pmod}", "vload", grp="PW")])
            elif tok[:2] == "P0":
                nl = int(tok[3:] or 1)
                srd = S_V if tok[2] == "V" else S_U
                items.append([I(f"s_mov_b64 exec, {hex((1 << (11 * nl)) - 1)}", "salu"),
                              I(f"buffer_load_dword {ar(s.ST + (2 if tok[2] == 'V' else 3))}, {vr(t[22])}, {sr(srd, 4)}, {sr(sP[6])} offen{c.pmod}", "vload", grp="PW"),
                              I(f"s_mov_b64 exec, -1", "salu")])
            else:
                for sc, v in s.dma_items(tok):
                    items.append((M0(sc.txt) if sc is not None else []) + [v])
        fill = []
        cur[0] = fill
        V(f"v_mul_u32_u24 {vr(bl)}, 336, {vr(bl)}")
        V(f"v_lshl_add_u32 {vr(bl)}, {vr(q)}, 4, {vr(bl)}")
        V(f"v_add_u32 {vr(bl)}, {Z}, {vr(bl)}")
        S(f"s_mul_i32 {sr(sT0)}, {sr(sW)}, {SLOT}")
        V(f"v_add_u32 {vr(s.BI_AD)}, {sr(sT0)}, {vr(bl)}")
        S(f"s_add_u32 {sr(sT1)}, {sr(sT0)}, {4 * SLOT}")
        S(f"s_cmp_eq_u32 {sr(sW)}, 3")
        S(f"s_cselect_b32 {sr(sT1)}, 2016, {sr(sT1)}")
        V(f"v_add_u32 {vr(s.BI_AD + 1)}, {sr(sT1)}, {vr(bl)}")
        S(f"s_add_u32 {sr(sT1)}, {sr(sT0)}, {SLOT + 2016}")
        V(f"v_add_u32 {vr(s.BI_AD + 2)}, {sr(sT1)}, {vr(bl)}")
        V(f"v_add_u32 {vr(s.BI_AD + 3)}, {5 * SLOT + 2016}, {vr(bl)}")
        for r in (s.BI_QA + 1, s.BI_QA + 3, s.BI_QB + 1, s.BI_QB + 3):
            V(f"v_mov_b32 {vr(r)}, 0")
        S(f"s_lshl_b32 {sr(sUm)}, {sr(sW)}, 12")
        S(f"s_cmp_eq_u32 {sr(sW)}, 3")
        S(f"s_cselect_b32 {sr(sMXs)}, 86016, {sr(sMXs)}")
        S(f"s_cselect_b32 {sr(sMXm)}, 86016, {sr(sMXm)}")
        S(f"s_cselect_b32 {sr(S_M)}, {sr(S_U)}, {sr(S_V)}")
        S(f"s_cselect_b32 {sr(S_M + 1)}, {sr(S_U + 1)}, {sr(S_V + 1)}")
        S(f"s_mov_b32 {sr(S_M + 2)}, {NL * LSTR}")
        S(f"s_mov_b32 {sr(S_M + 3)}, 0x20000")
        S(f"s_mov_b32 {sr(sMask)}, 0")
        S(f"s_mov_b32 {sr(sMask + 1)}, -1")
        S(f"s_mov_b32 {sr(sCnt)}, {c.nlayers - 2}")
        rho = t[13]
        V(f"v_lshrrev_b32 {vr(x)}, 2, {vr(m)}")
        V(f"v_and_b32 {vr(y)}, 3, {vr(m)}")
        V(f"v_lshlrev_b32 {vr(x)}, 2, {vr(x)}")
        V(f"v_add_u32 {vr(x)}, {vr(x)}, {vr(y)}")
        V(f"v_lshlrev_b32 {vr(rho)}, 1, {vr(x)}")
        V(f"v_and_b32 {vr(x)}, 7, {vr(m)}")
        V(f"v_lshrrev_b32 {vr(y)}, 1, {vr(x)}")
        V(f"v_xor_b32 {vr(y)}, {vr(y)}, {vr(g)}")
        V(f"v_lshlrev_b32 {vr(y)}, 4, {vr(y)}")
        V(f"v_lshl_add_u32 {vr(y)}, {vr(x)}, 7, {vr(y)}")
        V(f"v_lshrrev_b32 {vr(x)}, 3, {vr(m)}")
        V(f"v_mul_u32_u24 {vr(x)}, 1088, {vr(x)}")
        V(f"v_add_u32 {vr(y)}, {vr(y)}, {vr(x)}")
        V(f"v_add_u32 {vr(PV)}, {WIN}, {vr(y)}")
        V(f"v_lshrrev_b32 {vr(x)}, 3, {vr(m)}")
        V(f"v_mul_u32_u24 {vr(x)}, 12, {vr(x)}")
        V(f"v_xor_b32 {vr(x)}, {vr(x)}, {vr(m)}")
        V(f"v_mul_u32_u24 {vr(x)}, 832, {vr(x)}")
        V(f"v_lshl_add_u32 {vr(x)}, {vr(g)}, 4, {vr(x)}")
        V(f"v_add_u32 {vr(PV6)}, {T6}, {vr(x)}")
        if c.zrow:
            V(f"v_add_u32 {vr(x)}, 2, {vr(g)}")
            V(f"v_and_b32 {vr(x)}, 3, {vr(x)}")
            V(f"v_lshlrev_b32 {vr(x)}, 4, {vr(x)}")
            V(f"v_add_u32 {vr(x)}, {ZR}, {vr(x)}")
            V(f"v_cmp_gt_u32 vcc, 8, {vr(m)}")
            V(f"v_lshlrev_b32 {vr(y)}, 2, {vr(lane)}")
            S(f"s_lshl_b32 {sr(sT0)}, {sr(sW)}, 8")
            V(f"v_cndmask_b32 {vr(PV6)}, {vr(x)}, {vr(PV6)}, vcc")
            S(f"s_add_u32 {sr(sT0)}, {sr(sT0)}, {ZR}")
            V(f"v_mov_b32 {vr(x)}, 0")
            V(f"v_add_u32 {vr(y)}, {sr(sT0)}, {vr(y)}")
            cur[0].append(I(f"ds_write_b32 {vr(y)}, {vr(x)}", "dsw"))
        V(f"v_mul_u32_u24 {vr(x)}, 208, {vr(rho)}")
        V(f"v_lshl_add_u32 {vr(PU)}, {vr(g)}, 4, {vr(x)}")
        V(f"v_lshl_add_u32 {vr(x)}, {vr(g)}, 3, {vr(x)}")
        V(f"v_add_u32 {vr(x)}, 192, {vr(x)}")
        V(f"v_lshlrev_b32 {vr(y)}, 3, {vr(m)}")
        V(f"v_add_u32 {vr(y)}, {Z}, {vr(y)}")
        V(f"v_cndmask_b32_e64 {vr(PT)}, {vr(x)}, {vr(y)}, {sr(sMask, 2)}")
        V(f"v_mov_b32 {vr(x)}, {WIN}")
        V(f"v_mov_b32 {vr(y)}, 2016")
        V(f"v_cndmask_b32_e64 {vr(D1)}, {vr(x)}, {vr(y)}, {sr(sMask, 2)}")
        V(f"v_mov_b32 {vr(x)}, {(-WIN) & 0xFFFFFFFF}")
        V(f"v_mov_b32 {vr(y)}, {(-1680) & 0xFFFFFFFF}")
        V(f"v_cndmask_b32_e64 {vr(x)}, {vr(x)}, {vr(y)}, {sr(sMask, 2)}")
        V(f"v_accvgpr_write_b32 {ar(s.ST_D2)}, {vr(x)}")
        if c.smix:
            S(f"s_mul_i32 {sr(sT0)}, {sr(sW)}, 6144")
            S(f"s_add_u32 {sr(sT0)}, {sr(sT0)}, 139264")
            V(f"v_lshlrev_b32 {vr(y)}, 4, {vr(lane)}")
            V(f"v_add_u32 {vr(y)}, {sr(sT0)}, {vr(y)}")
            V(f"v_accvgpr_write_b32 a88, {vr(y)}")
        if c.stpat == "oct":
            V(f"v_mul_u32_u24 {vr(x)}, 1664, {vr(j)}")
            V(f"v_lshl_add_u32 {vr(x)}, {vr(q)}, 4, {vr(x)}")
            V(f"v_accvgpr_write_b32 {ar(s.ST_XA)}, {vr(x)}")
        else:
            V(f"v_accvgpr_write_b32 {ar(s.ST_XA)}, {vr(XA)}")
        for e in range(0 if c.tail16 else 2 * c.ntr):
            V(f"v_accvgpr_write_b32 {ar(s.TR0 + 4 * e + 2)}, 0")
            V(f"v_accvgpr_write_b32 {ar(s.TR0 + 4 * e + 3)}, 0")
        for i in range(c.xfill):
            V(f"v_mul_f32 {vr(C0 + 20 + i % 80)}, {vr((DV, PV, PU, PV6)[i & 3])}, {vr((PT, DU, D1, PV)[(i >> 2) & 3])}")
        for i in range(20, 104):
            V(f"v_mov_b32 {vr(C0 + i)}, 1.0")
        cur[0] = o
        stamp(0)
        k = 0
        for n, it in enumerate(items):
            want(needs(itok[n]))
            o.extend(it)
            if c.split == n + 1:
                o.append(I(None, "split"))
            if c.p3trim and n + 1 < len(items):
                want(needs(itok[n + 1]))
                if n + 2 < len(items) and n + 2 < c.p3start:
                    want(needs(itok[n + 2]))
            if n + 1 >= c.p3start:
                want(set(G))
                o.extend(fill[k:k + c.p3k]); k += c.p3k
        want(set(G))
        stamp(1)
        o.extend(fill[k:])
        if c.pw1:
            V(f"v_add_u32 {vr(TMP)}, {LSTR}, {vr(t[22])}")
        stamp(2)
        if not c.bias_in:
            w_ = I(None, "wait"); w_.wait = dict(vm=["BI"], lg=False); o.append(w_)
            o.extend(s.bias_ops())
        stamp(3)
        w_ = I(None, "wait"); w_.wait = dict(vm=["WA", "WB", "V0", "T6", "T6b", "X0"] + [f"X{f}" for f in range(1, c.x0wait + 1)], lg=False, lg0=True); o.append(w_)
        stamp(4)
        o.append(I("s_barrier", "barrier"))
        if c.delayb:
            S(f"s_mov_b32 s69, {c.delayb}")
            o.append(I("L_dlyb:", "label"))
            for _ in range(8):
                S("s_nop 0")
            S("s_sub_u32 s69, s69, 1")
            S("s_cmp_lg_u32 s69, 0")
            S("s_cbranch_scc1 L_dlyb")
        if c.stamps:
            S(f"s_memtime s[64:65]")
            if c.stamps == "rt":
                S(f"s_memrealtime s[80:81]")
            S("s_waitcnt lgkmcnt(0)")
        for T in range(c.LA):
            o.append(s.slot_desc(T, True)[1])
            if T == s.g1_slot_of(0, 5):
                o.append(I(f"v_subrev_u32 {vr(PV)}, {WIN}, {vr(PV)}", "valu"))
        w_ = I(None, "wait"); w_.wait = dict(vm=[], lg=True); o.append(w_)
        return o

    def bias_ops(s):
        o = []
        for k in range(4):
            r = s.BI_R + 2 * k; A_, B_ = s.BI_QA, s.BI_QB; ad = s.BI_AD + k
            o.append(I(f"v_lshlrev_b32 {vr(A_)}, 16, {vr(r)}", "valu"))
            o.append(I(f"v_lshlrev_b32 {vr(A_ + 2)}, 16, {vr(r + 1)}", "valu"))
            o.append(I(f"v_and_b32 {vr(B_)}, 0xffff0000, {vr(r)}", "valu"))
            o.append(I(f"v_and_b32 {vr(B_ + 2)}, 0xffff0000, {vr(r + 1)}", "valu"))
            o.append(I(f"ds_write_b128 {vr(ad)}, {vr(A_, 4)}", "dsw"))
            o.append(I(f"ds_write_b128 {vr(ad)}, {vr(B_, 4)} offset:208", "dsw"))
        for i in range(20):
            o.append(I(f"v_mov_b32 {vr(C0 + i)}, 1.0", "valu"))
        return o

    def resolve(s, trace, res=None, final=True):
        if res is None:
            res = {}
        vm_idx = []
        lastgrp = {}
        nvm = 0
        nds = 0
        areg_ds = {}
        inst = []
        for pos, x in enumerate(trace):
            if x.kind in ("dma", "vload", "store"):
                nvm += 1
                if x.grp:
                    lastgrp[x.grp] = nvm
            elif x.kind in ("dsr", "dsw"):
                if x.kind == "dsr":
                    areg_ds[x.areg] = nds
                nds += 1
            elif x.kind == "wait":
                vmN = None
                if x.wait["vm"]:
                    need = 0
                    for g in x.wait["vm"]:
                        if g not in lastgrp:
                            continue
                        need = max(need, lastgrp[g])
                    vmN = nvm - need
                inst.append((pos, x, vmN, nds))
            elif x.kind == "mfma":
                x_need = areg_ds.get(x.areg)
                assert x_need is not None, x.txt
                trace_need.append(x_need) if False else None
        need_at = [None] * len(trace)
        areg_ds = {}; nds = 0
        for pos, x in enumerate(trace):
            if x.kind in ("dsr", "dsw"):
                if x.kind == "dsr":
                    areg_ds[x.areg] = nds
                nds += 1
            elif x.kind == "mfma":
                need_at[pos] = areg_ds[x.areg]
        lgw = [(pos, x, vmN, nds_) for (pos, x, vmN, nds_) in inst if x.wait["lg"] or x.wait.get("lg0")]
        lgN = {}
        for k, (pos, x, vmN, nds_) in enumerate(lgw):
            end = lgw[k + 1][0] if k + 1 < len(lgw) else len(trace)
            need = [need_at[p] for p in range(pos, end) if need_at[p] is not None]
            if x.wait.get("lg0"):
                N = 0
            elif need:
                mx = max(need)
                assert mx < nds_, ("read issued after its wait", pos, x.wait)
                N = nds_ - 1 - mx
            else:
                N = None
            lgN[pos] = N
        for (pos, x, vmN, nds_) in inst:
            r = res.setdefault(id(x), dict(x=x, vm=None, lg=None))
            if vmN is not None:
                r["vm"] = vmN if r["vm"] is None else min(r["vm"], vmN)
            N = lgN.get(pos)
            if N is not None:
                r["lg"] = N if r["lg"] is None else min(r["lg"], N)
        if not final:
            return
        for r in res.values():
            x = r["x"]; parts = []
            if r["vm"] is not None:
                assert r["vm"] <= 63
                parts.append(f"vmcnt({r['vm']})")
            if r["lg"] is not None:
                parts.append(f"lgkmcnt({min(r['lg'], 15)})")
            x.txt = ("s_waitcnt " + " ".join(parts)) if parts else None
            x.cmt = ",".join(x.wait["vm"])

    def kernel(s):
        c = s.c
        if c.alt is not None:
            c._hdr = True
        pro = {1: s.prologue, 2: s.prologue2, 3: s.prologue3}[c.pro]()
        g1f = s.lin(s.build("g1first"))
        g2l = s.lin(s.build("g2last"))
        proB = g1fB = None
        if c.alt is not None:
            import copy
            c2 = copy.copy(c)
            for k_, v_ in c.alt.items():
                assert hasattr(c, k_), k_
                setattr(c2, k_, v_)
            gB = Gen(c2)
            proB = gB.prologue3()
            g1fB = gB.lin(gB.build("g1first"))
            assert c.wvloop
        if c.wvloop:
            ncopy = len(c.wshift)
            loops = [s.lin(s.build("loop", wave=w)) for w in range(ncopy)]
            res = {}
            for w in range(ncopy):
                if proB is not None:
                    s.resolve(proB + g1fB + loops[w] * (c.nlayers - 1) + g2l, res, final=False)
                s.resolve(pro + g1f + loops[w] * (c.nlayers - 1) + g2l, res, final=(w == ncopy - 1))
            loop = loops[0]
        else:
            loop = s.lin(s.build("loop"))
            trace = pro + g1f + loop * (c.nlayers - 1) + g2l
            s.resolve(trace)
        L = []
        A = L.append
        hdr = open("standalone__cross_network_dcn_v2__recsys.s.ref").read().split("\n")
        for ln in hdr:
            if ln.startswith("; @launch"):
                A(f"; @launch grid=(256,1,1) block=(256,1,1) lds={163840 if c.smix else LDS + (1024 if c.zrow else 0)}")
            elif ln.startswith(";"):
                A(ln)
            else:
                break
        A('.amdgcn_target "amdgcn-amd-amdhsa--gfx950"')
        A(".text"); A(f".globl {KN}"); A(".p2align 8"); A(f".type {KN},@function"); A(f"{KN}:")

        def emit(lst):
            for x in lst:
                if x.txt is None:
                    continue
                if x.kind == "label":
                    A(x.txt); continue
                A("  " + x.txt + (f"   ; {x.cmt}" if x.cmt else ""))
        if c.delay0:
            if c.dly_bit is not None:
                A(f"  s_bitcmp1_b32 s2, {c.dly_bit}")
                A("  s_cbranch_scc0 L_dly0e")
            A(f"  s_mov_b32 s69, {c.delay0}")
            A("L_dly0:")
            for _ in range(8):
                A("  v_mov_b32 v1, v0")
            A("  s_sub_u32 s69, s69, 1")
            A("  s_cmp_lg_u32 s69, 0")
            A("  s_cbranch_scc1 L_dly0")
            A("L_dly0e:")
        nsplit = 0
        if c.alt is not None:
            A("  s_cmp_ge_u32 s2, 256")
            A("  s_cbranch_scc1 L_end")
            if c.split is None:
                A(f"  s_getpc_b64 {sr(S_M, 2)}")
                A("L_pc:")
            else:
                nsplit = [x.kind for x in pro].index("split")
                assert nsplit == [x.kind for x in proB].index("split")
                assert [x.txt for x in pro[:nsplit]] == [x.txt for x in proB[:nsplit]], "the common part of the two paths differs"
                emit(pro[:nsplit])
            if c.alt_mask:
                A(f"  s_and_b32 s3, s2, {c.alt_mask[0]}")
                A(f"  s_cmp_eq_u32 s3, {c.alt_mask[1]}")
                A(f"  s_cbranch_scc{0 if c.alt_mask[2] else 1} L_alt")
            else:
                A(f"  s_bitcmp1_b32 s2, {c.alt_bit}")
                A("  s_cbranch_scc1 L_alt")
        emit(pro[nsplit:])
        A("; ---- G1 first"); emit(g1f)
        if c.alt is not None:
            A("L_join:")
        if c.delayj:
            A(f"  s_mov_b32 s69, {c.delayj}")
            A("L_dlyj:")
            for _ in range(8):
                A("  s_nop 0")
            A("  s_sub_u32 s69, s69, 1")
            A("  s_cmp_lg_u32 s69, 0")
            A("  s_cbranch_scc1 L_dlyj")
        if c.stamps:
            A("  s_memtime s[74:75]")
            if c.stamps == "rt":
                A("  s_memrealtime s[82:83]")
            A("  s_waitcnt lgkmcnt(0)")
        if "vmwait" in c.drop:
            import re
            for x in loop:
                if x.kind == "wait" and x.txt:
                    x.txt = re.sub(r"vmcnt\(\d+\) ?", "", x.txt)
                    if x.txt.strip() == "s_waitcnt":
                        x.txt = None
        def flt(lst):
            o_ = []; k_ = 0
            if c.smix and ("h" in c.smix or "d" in c.smix):
                import re
                im = -1; prevA = None
                for x in lst:
                    if x.kind == "mfma":
                        im += 1
                        m_ = re.search(r"a\[\d+:\d+\]", x.txt)
                        if im & 1 and prevA and "h" in c.smix:
                            x = I(x.txt.replace(m_.group(0), prevA), "mfma", areg=x.areg)
                        else:
                            prevA = m_.group(0)
                    elif x.kind == "dsr" and x.areg < 88 and im & 1:
                        continue
                    o_.append(x)
                return o_
            for x in lst:
                if x.kind in c.drop:
                    continue
                if c.drophalf and x.kind == "dsr":
                    k_ += 1
                    if k_ % c.drophalf:
                        continue
                o_.append(x)
            return o_
        if c.wvloop:
            if ncopy == 2:
                A(f"  s_and_b32 s3, s{sW}, 1"); A(f"  s_cbranch_scc1 L_loop1")
            else:
                for w in range(1, 4):
                    A(f"  s_cmp_eq_u32 s{sW}, {w}"); A(f"  s_cbranch_scc1 L_loop{w}")
            for w in range(ncopy):
                A(f"; ---- loop of wave {w}"); A(f"L_loop{w}:")
                if c.itst:
                    A("  s_mov_b32 s91, s90"); A("  s_mov_b32 s90, s89"); A("  s_mov_b32 s89, s88"); A("  s_mov_b32 s88, s86")
                    A("  s_memrealtime s[86:87]")
                emit(flt(loops[w]))
                A(f"  s_cbranch_scc0 L_loop{w}")
                if w < ncopy - 1:
                    A("  s_branch L_g2l")
            A("L_g2l:")
        else:
            A("; ---- loop"); A("L_loop:"); emit([x for x in loop if x.kind not in c.drop])
            A("  s_cbranch_scc0 L_loop")
        if c.stamps:
            A("  s_memtime s[76:77]")
            if c.stamps == "rt":
                A("  s_memrealtime s[84:85]")
            A("  s_waitcnt lgkmcnt(0)")
        if c.delaym:
            A(f"  s_mov_b32 s69, {c.delaym}")
            A("L_dlym:")
            for _ in range(8):
                A("  s_nop 0")
            A("  s_sub_u32 s69, s69, 1")
            A("  s_cmp_lg_u32 s69, 0")
            A("  s_cbranch_scc1 L_dlym")
        if c.nost_bit == -1:
            A(f"  s_mov_b32 s{S_O + 2}, 0")
        elif c.nost_bit is not None:
            A(f"  s_bitcmp1_b32 s2, {c.nost_bit}")
            A(f"  s_cselect_b32 s{S_O + 2}, 0, s{S_O + 2}")
        A("; ---- G2 last"); emit(g2l)
        if c.delay:
            A(f"  s_mov_b32 s69, {c.delay}")
            A("L_dly:")
            for _ in range(8):
                A("  v_mov_b32 v0, v1")
            A("  s_sub_u32 s69, s69, 1")
            A("  s_cmp_lg_u32 s69, 0")
            A("  s_cbranch_scc1 L_dly")
        if c.stamps:
            A("  s_memtime s[66:67]")
            A("  s_waitcnt vmcnt(0) lgkmcnt(0)")
            A("  s_memtime s[78:79]")
            A("  s_memrealtime s[72:73]")
            A("  s_waitcnt lgkmcnt(0)")
            for k, reg in enumerate((62, 64, 74, 76, 66, 78, 80, 82, 84, 86, 88, 90) + ((89,) if c.itst else ())):
                A(f"  s_sub_u32 s{reg}, s{reg}, " + ("s70" if (c.stamps == "rt" and reg >= 80) else "s60"))
            A(f"  s_mov_b32 s{sDbg + 2}, 0x100000"); A(f"  s_mov_b32 s{sDbg + 3}, 0x20000")
            A(f"  s_lshl_b32 s68, s2, 2"); A(f"  s_add_u32 s68, s68, s{sW}"); A("  s_lshl_b32 s68, s68, 6")
            for k, reg in enumerate((62, 64, 74, 76, 66, 78, 70, 72, 80, 82, 84, 86, 88, 90, 89 if c.itst else 60, 60)):
                A(f"  v_mov_b32 v{k}, s{reg}")
            A("  v_mov_b32 v16, 0")
            if c.dbg:
                A(f"  s_mov_b32 s{sDbg + 2}, 256")
                A("  v_mov_b32 v20, s72"); A("  s_sub_u32 s73, -1, s70"); A("  v_mov_b32 v21, s73")
                A("  s_mov_b64 exec, 1")
                A(f"  buffer_atomic_umax v20, v16, s[{sDbg}:{sDbg + 3}], 0 offen")
                A(f"  buffer_atomic_umax v21, v16, s[{sDbg}:{sDbg + 3}], 0 offen offset:4")
                A("  s_sub_u32 s73, s72, s70"); A("  v_mov_b32 v22, s73")
                A(f"  buffer_atomic_umax v22, v16, s[{sDbg}:{sDbg + 3}], 0 offen offset:8")
                for k, r in enumerate((62, 64, 74, 76, 66, 78, 80, 82, 84)):
                    A(f"  v_mov_b32 v23, s{r}")
                    A(f"  buffer_atomic_umax v23, v16, s[{sDbg}:{sDbg + 3}], 0 offen offset:{12 + 4 * k}")
                    A("  s_nop 1")
                A("  s_mov_b64 exec, -1")
            else:
              for k in range(4):
                A(f"  buffer_store_dwordx4 v[{4 * k}:{4 * k + 3}], v16, s[{sDbg}:{sDbg + 3}], s68 offen offset:{16 * k}")
        if c.lstamps:
            nls = len(c.lstamps)
            mt = "s_memrealtime" if c.lrt else "s_memtime"
            A(f"  {mt} s[{64 + 2 * nls}:{65 + 2 * nls}]")
            A("  s_waitcnt vmcnt(0) lgkmcnt(0)")
            A(f"  {mt} s[{66 + 2 * nls}:{67 + 2 * nls}]")
            A(f"  s_load_dwordx2 s[{sDbg}:{sDbg + 1}], s[0:1], 48")
            A("  s_waitcnt lgkmcnt(0)")
            A(f"  s_mov_b32 s{sDbg + 2}, 0x100000"); A(f"  s_mov_b32 s{sDbg + 3}, 0x20000")
            A(f"  s_lshl_b32 s61, s2, 2"); A(f"  s_add_u32 s61, s61, s{sW}"); A("  s_lshl_b32 s61, s61, 6")
            for k in range(16):
                A(f"  v_mov_b32 v{k}, s{64 + 2 * min(k, len(c.lstamps) + 1)}")
            A("  v_mov_b32 v16, 0")
            for k in range(4):
                A(f"  buffer_store_dwordx4 v[{4 * k}:{4 * k + 3}], v16, s[{sDbg}:{sDbg + 3}], s61 offen offset:{16 * k}")
        A("L_end:"); A("  s_endpgm")
        if c.alt is not None:
            A("; ---- second start-up path"); A("L_alt:"); emit(proB[nsplit:])
            A("; ---- G1 first, second path"); emit(g1fB)
            A("  s_branch L_join"); A("L_fin:")
        if c.pad:
            for _ in range(c.pad // 4):
                A("  s_endpgm")
            A("L_pad:")
        A('.section .rodata,"a"'); A(".p2align 6"); A(f".amdhsa_kernel {KN}")
        nv = 256 + s.NA
        A(f"  .amdhsa_next_free_vgpr {nv}"); A("  .amdhsa_next_free_sgpr 102"); A("  .amdhsa_accum_offset 256")
        A("  .amdhsa_group_segment_fixed_size 0"); A("  .amdhsa_kernarg_size 56"); A("  .amdhsa_user_sgpr_count 2")
        A("  .amdhsa_user_sgpr_kernarg_segment_ptr 1"); A("  .amdhsa_system_sgpr_workgroup_id_x 1"); A(".end_amdhsa_kernel")
        s.sizes = dict(pro=len(pro), g1f=len(g1f), loop=len(loop), g2l=len(g2l))
        s.parts = dict(pro=pro, g1f=g1f, loop=loop, g2l=g2l)
        return "\n".join(L) + "\n"


def est_cycles(lst):
    cyc = 0; sc = 0; vc = 0; started = False
    for x in lst:
        if x.txt is None:
            continue
        if x.kind == "mfma":
            if started:
                cyc += 16 + 4 * (max(0, sc - 1) + max(0, vc - 2))
            started = True; sc = 0; vc = 0
        elif x.kind in ("salu", "wait", "barrier"):
            sc += 1
        else:
            vc += 1
    cyc += 16 + 4 * (max(0, sc - 1) + max(0, vc - 2))
    return cyc


if __name__ == "__main__":
    cfg = Cfg()
    out = "standalone__cross_network_dcn_v2__recsys.s"
    for a in sys.argv[1:]:
        if "=" in a:
            k, v = a.split("=", 1)
            if k == "out":
                out = v
            else:
                setattr(cfg, k, eval(v))
    g = Gen(cfg)
    txt = g.kernel()
    open(out, "w").write(txt)
    print("sizes", g.sizes, {k: est_cycles(v) for k, v in g.parts.items() if k != "pro"})
```

```python
import sys, json

KN = "standalone__cross_network_dcn_v2__recsys_kernel"
NL = 6
SLOT = 6656
WIN = 7 * SLOT
Z = 87040
T6 = Z + 6 * SLOT + 4032
LDS = 138240
ZR = 138240
LSTR = 86528
C0, X0, H0, XF = 0, 104, 208, 236
TMP, PV, PV6, PU, PT, DV, DU, D1 = 248, 249, 250, 251, 252, 253, 254, 255
S_X, S_U, S_V, S_B, S_O, S_M = 8, 12, 16, 20, 24, 28
(sW, sVb, sVs0, sVs1, sVs2, sWAs, sWAm, sWBs, sWBm, sT6s, sT6m, sMXs, sMXm, sUm, sLm, sCnt,
 sXo, sT0, sT1, sT2, sT3) = range(32, 53)
sMask = 54
sDbg = 56


class Cfg:
    LA = 12
    RING = 13
    NW = 4
    SWV = 8
    headint = True
    bars = [2, 20, 34, 54, 68, 91, 111, 131, 147, 163, 179]
    dma = {
        "V5": ([3, 7, 11], 54),
        "G0": ([21, 25, 29, 33], 68),
        "G1": ([37, 41, 45, 49], 91),
        "G2": ([55, 59, 63, 67], 111),
        "G3": ([71, 75, 79, 83], 131),
        "G4": ([92, 96, 100, 104], 147),
        "L": ([108], 163),
        "MX": ([113], 163),
        "T6": ([117], 179),
        "WA": ([121], 179),
        "WB": ([125], 179),
        "V0": ([132, 136, 140], 179),
        "V1": ([144, 148, 152], 2),
        "V2": ([156, 160, 164], 2),
        "V3": ([168, 172, 176], 20),
        "V4": ([180, 184, 188], 34),
    }
    stamps = False
    bars1 = [2, 14, 28, 42, 54, 68]
    dma1 = {
        "V1": ([], 2), "V2": ([], 14),
        "V3": ([0, 3, 6], 28), "V4": ([9, 12, 15], 42), "V5": ([18, 21, 24], 54),
        "G0": ([29, 32, 35, 38], 68), "G1": ([43, 46, 49, 52], 91),
        "G2": ([55, 59, 63, 67], 111), "G3": ([71, 75, 79, 83], 131),
    }
    p3order = "V0 WA WB T6 T6b X0 X1 BI PW V1 X2 X3 X4 V2 X5 X6 X7 X8 X9 X10 X11 X12"
    x0wait = 0
    delayb = 0
    tail16 = False
    zrow = False
    stwin = 0
    bias_in = False
    otmod = ""
    keep = ()
    keepmod = " sc1"
    keepld = False
    otld = None
    otouch = None
    xin = {}
    pl = ()
    pl1 = ()
    pw1 = ()
    p3start = 8
    p3k = 8
    pro = 2
    bi_early = True
    bias_at = (14, 60)
    pf_code = False
    delay = 0
    delay0 = 0
    delaym = 0
    lphase = "loop"
    wvloop = False
    wshift = (0, 1, 2, 3)
    lstamps = None
    dma_first = False
    dmamod = ""
    stmod = ""
    stsplit = 13
    stmod2 = ""
    stpat = ""
    xmod = ""
    pmod = ""
    dmamod0 = None
    dbg = False
    drop = ()
    pf_w = False
    nlayers = NL
    dly_bit = None
    alt = None
    alt_bit = 3
    alt_mask = None
    g2l_head = False
    g2l_first = 3
    dmaL = None
    barsL = None
    lrt = False
    delayj = 0
    xfill = 0
    ntr = 3
    headsnake = False
    g1snake = False
    g2snake = False
    itst = False
    smix = 0
    dmaw = None
    g1mode = "k"
    headn = 2
    g2chain = False
    _hdr = False
    pf_slice = 0
    pf_bytes = 18432
    nost_bit = None
    xpat = ""
    fullst = False
    fs_first = 8
    palign = False
    lalign = False
    touch = None
    touch_at = "bar0"
    pad = 0
    p3trim = False
    split = None
    drophalf = 0


class I:
    __slots__ = ("txt", "kind", "grp", "areg", "wait", "cmt")

    def __init__(s, txt, kind, grp=None, areg=None, cmt=None):
        s.txt, s.kind, s.grp, s.areg, s.cmt = txt, kind, grp, areg, cmt
        s.wait = None


def vr(a, n=1):
    return f"v{a}" if n == 1 else f"v[{a}:{a + n - 1}]"


def ar(a, n=1):
    return f"a{a}" if n == 1 else f"a[{a}:{a + n - 1}]"


def sr(a, n=1):
    return f"s{a}" if n == 1 else f"s[{a}:{a + n - 1}]"


def cpos(p, tau):
    return C0 + 8 * p + 4 * tau


def xe(p, q):
    return X0 + 8 * p + q


def xo(p, q):
    return X0 + 8 * p + 4 + q


def xbuf(f):
    return XF + 4 * (f % 3)


class Gen:
    def __init__(s, cfg):
        s.c = cfg
        s.TR0 = 4 * cfg.RING
        s.ST = s.TR0 + 8 * cfg.ntr
        s.ST_XA, s.ST_D2 = s.ST, s.ST + 1
        s.NA = s.ST + 12
        if cfg.smix:
            s.NA = 128
        s.R2 = s.NA
        if cfg.g2l_head:
            s.NA += 4 * cfg.RING

    def g1_order(s, ks):
        if ks and (ks & 1) and s.c.g1snake:
            return list(range(6, -1, -1))
        return [1, 3, 5, 0, 2, 4, 6] if ks == 0 else list(range(7))

    def g1_seq(s):
        if getattr(s, "_seq", None) is None:
            if s.c.g1mode == "k":
                q = [(st, t) for st in range(13) for t in s.g1_order(st)]
            else:
                q = [(0, 1), (0, 3), (0, 5)]
                for j in range(5):
                    for t in (0, 2, 4, 6):
                        q += [(2 * j, t), (2 * j + 1, t)]
                    for t in (1, 3, 5):
                        q += [(2 * j + 1, t), (2 * j + 2, t)]
                for t in (2, 4, 6, 0):
                    q += [(10, t), (11, t)]
                q += [(12, 0), (11, 1), (12, 1), (12, 2), (11, 3), (12, 3), (12, 4), (11, 5), (12, 5), (12, 6)]
            assert len(q) == 91 and len(set(q)) == 91
            s._seq = q
        return s._seq

    def fuse(s, f):
        u = [i for i, (st, t) in enumerate(s.g1_seq()) if st == f]
        return u[0], u[-1]

    def pv_switch(s):
        if s.c.g1mode == "k":
            return max(s.g1_slot_of(s.c.SWV - 1, t) for t in range(6))
        return s.g1_slot_of(8, 5)

    def g2_order(s):
        o = []
        p0 = 0
        if s.c.headint:
            for ks in range(4):
                tl = [(p, tau) for p in range(s.c.headn) for tau in (0, 1)]
                if s.c.headsnake and (ks & 1):
                    tl.reverse()
                for p, tau in tl:
                    o.append((p, tau, ks))
            p0 = s.c.headn
        for p in range(p0, 13):
            if s.c.g2chain:
                for tau in (0, 1):
                    rev = s.c.g2snake and (tau == 0 if s.c.headsnake else tau == 1)
                    for ks in (range(3, -1, -1) if rev else range(4)):
                        o.append((p, tau, ks))
                continue
            for ks in range(4):
                for tau in (0, 1):
                    o.append((p, tau, ks))
        return o

    def ring(s, T):
        return 4 * (T % s.c.RING)

    def slot_desc(s, T, first=False):
        c = s.c
        if T < 91:
            st, t = s.g1_seq()[T]
            a = s.ring(T)
            if t < 6:
                ks, tau = t >> 1, t & 1
                if tau == 0:
                    if st < 12:
                        k = 2 * (st >> 1); ab = SLOT * (k + 1) + 2112 * ks + 64 * (st & 1); grp = f"V{k >> 1}"
                    else:
                        ab = Z + SLOT * ks + 4032; grp = "W"
                else:
                    if st == 0:
                        ab = Z + SLOT * ks + 4032 + 64; grp = "W"
                    else:
                        j = (st - 1) >> 1; k = 2 * j + 1
                        ab = SLOT * (k + 1) + 2112 * ks + 64 * ((st - 1) & 1); grp = f"V{j}"
                high = T > s.pv_switch() or (st == 0 and tau == 1)
                imm = ab - (WIN if high else 0)
                assert 0 <= imm < 65536, (T, imm)
                rd = I(f"ds_read_b128 {ar(a, 4)}, {vr(PV)} offset:{imm}", "dsr", areg=a)
            else:
                rd = I(f"ds_read_b128 {ar(a, 4)}, {vr(PV6)} offset:{64 * st}", "dsr", areg=a)
            D = H0 + 4 * t
            if first:
                B = xo(st, 0) if st < 10 else xbuf(st)
            else:
                B = xbuf(st)
            Cc = "0" if st == 0 else vr(D, 4)
            mf = I(f"v_mfma_f32_16x16x32_bf16 {vr(D, 4)}, {ar(a, 4)}, {vr(B, 4)}, {Cc}", "mfma", areg=a)
            return mf, rd
        p, tau, ks = s.g2_order()[T - 91]
        D = cpos(p, tau)
        if ks < 3:
            a = s.ring(T)
            imm = SLOT * (p % 7) + 208 * tau + 64 * ks
            rd = I(f"ds_read_b128 {ar(a, 4)}, {vr(PU)} offset:{imm}", "dsr", areg=a)
            B = H0 + 8 * ks
        else:
            a = s.TR0 + 4 * (2 * (p % c.ntr) + tau)
            imm = SLOT * (p % 7) + 208 * tau
            rd = I(f"ds_read_b64 {ar(a, 2)}, {vr(PT)} offset:{imm}", "dsr", areg=a)
            B = H0 + 24
        if ks == 3 and c.tail16:
            mf = I(f"v_mfma_f32_16x16x16_bf16 {vr(D, 4)}, {ar(a, 2)}, {vr(B, 2)}, {vr(D, 4)}", "mfma", areg=a)
        else:
            mf = I(f"v_mfma_f32_16x16x32_bf16 {vr(D, 4)}, {ar(a, 4)}, {vr(B, 4)}, {vr(D, 4)}", "mfma", areg=a)
        return mf, rd

    def g2_slot_of(s, p, tau, ks):
        return 91 + s.g2_order().index((p, tau, ks))

    def g1_slot_of(s, st, t):
        return s.g1_seq().index((st, t))

    def dma_items(s, g):
        V = lambda txt: I(txt.replace(" lds", getattr(s, "_dm", s.c.dmamod) + " lds"), "dma", grp=g)
        S = lambda txt: I(txt, "salu")
        if g[0] == "V":
            j = int(g[1]); out = []
            for ks in range(3):
                out.append((S(f"s_add_u32 m0, {sr(sVb)}, {13184 * j + 2112 * ks + SLOT}"),
                            V(f"buffer_load_dwordx4 {vr(DV)}, {sr(S_V, 4)}, {sr(sVs0 + ks)} offen offset:{128 * j} lds")))
            return out
        if g[0] == "G":
            n = int(g[1]); out = []
            for i in range(4):
                sc = S(f"s_add_u32 m0, {sr(sUm)}, {16384 * n}") if i == 0 else None
                out.append((sc, V(f"buffer_load_dwordx4 {vr(DU)}, {sr(S_U, 4)}, m0 offen offset:{1024 * i} lds")))
            return out
        if g == "L":
            return [(S(f"s_mov_b32 m0, {sr(sLm)}"), V(f"buffer_load_dwordx4 {vr(DU)}, {sr(S_U, 4)}, m0 offen lds"))]
        if g == "MX":
            return [(S(f"s_mov_b32 m0, {sr(sMXm)}"), V(f"buffer_load_dwordx4 {vr(DU)}, {sr(S_M, 4)}, {sr(sMXs)} offen lds"))]
        if g == "T6":
            return [(S(f"s_mov_b32 m0, {sr(sT6m)}"), V(f"buffer_load_dwordx4 {vr(DU)}, {sr(S_V, 4)}, {sr(sT6s)} offen lds"))]
        if g == "WA":
            return [(S(f"s_mov_b32 m0, {sr(sWAm)}"), V(f"buffer_load_dwordx4 {vr(DV)}, {sr(S_V, 4)}, {sr(sWAs)} offen offset:768 lds"))]
        if g == "WB":
            return [(S(f"s_mov_b32 m0, {sr(sWBm)}"), V(f"buffer_load_dwordx4 {vr(DV)}, {sr(S_V, 4)}, {sr(sWBs)} offen offset:768 lds"))]
        raise KeyError(g)

    def touch_seq(s):
        o = [I("s_mov_b64 exec, 0", "salu")]
        for w in range(3):
            o.append(I(f"s_cmp_eq_u32 {sr(sW)}, {w}", "salu")); o.append(I(f"s_cbranch_scc1 @HEAD{w}@", "salu"))
        o.append(I("s_branch @HEAD3@", "salu")); o.append(I("L_tret:", "label")); o.append(I("s_mov_b64 exec, -1", "salu"))
        return o

    def add_touch(s, L):
        import subprocess, re, tempfile
        c = s.c
        T0 = [re.sub(r"@(HEAD\d|NEXT.)@", "L_tret" if c.touch else "L_end", x) for x in L]
        if not c.touch:
            return T0
        d = tempfile.mkdtemp()
        open(d + "/a.s", "w").write("\n".join(T0) + "\n")
        subprocess.run(["clang", "-target", "amdgcn-amd-amdhsa", "-mcpu=gfx950", "-c", d + "/a.s", "-o", d + "/a.o"], check=True)
        dis = subprocess.run(["llvm-objdump", "-d", d + "/a.o"], capture_output=True, text=True).stdout
        ad = [int(m_, 16) for m_ in re.findall(r"// ([0-9A-F]{12}):", dis)]
        isins = lambda x: x.startswith("  ") and not x.strip().startswith((".", ";"))
        k0 = next(i for i, x in enumerate(L) if x.endswith("_kernel:"))
        k1 = next(i for i, x in enumerate(L) if x.startswith(".section"))
        addr = {}
        j = 0
        for i in range(k0, k1):
            if L[i].strip().startswith(".p2align"):
                while ad[j] % 4096: j += 1
            elif isins(L[i]):
                addr[i] = ad[j]; j += 1
        lab = lambda n: L.index(n + ":")
        nxt = lambda i: next(k for k in range(i, k1) if k in addr)
        p2, l0, l1, g = lab("L_p2"), lab("L_loop0"), lab("L_loop1"), lab("L_g2l")
        assert addr[nxt(p2)] % 4096 == 0
        end = lab("L_end")
        want = [p for ch in c.touch for p in ch]
        ins = []
        placed = set()
        shift = 0
        for nm, a, b in (("A", l0, l1 - (3 if c.lalign else 0)), ("B", l1, g - (3 if c.lalign else 0)), ("G", g, end)):
            if c.lalign:
                shift = 0
                placed.add(nm)
            last = max(k for k in range(a, b) if k in addr)
            reqs = [(nm, None)] if (nm in want and not c.lalign) else []
            n = 0
            pg = ((addr[nxt(a)] + shift) // 4096 + 1) * 4096
            while pg <= addr[last] + shift:
                reqs.append((f"{nm}{n}", pg)); n += 1; pg += 4096
            for pn, pg in reqs:
                if pn not in want:
                    continue
                if pg is None:
                    i = nxt(a)
                    cand = [k for k in range(i, b) if k in addr and (addr[k] + shift) // 64 == (addr[i] + shift) // 64]
                else:
                    cand = [k for k in range(a, b) if k in addr and pg <= addr[k] + shift <= pg + 60]
                assert cand, pn
                bar = [k for k in cand if L[k].strip() == "s_barrier"]
                good = [k for k in cand if L[k - 1].startswith("  v_mfma") and not L[k].startswith("  s_")]
                ok = [k for k in cand if "buffer_load" not in L[k] and not L[k - 1].strip().startswith(("s_add_u32 m0", "s_mov_b32 m0", "s_nop"))]
                k = (bar or good or ok or cand)[0]
                ins.append((k, pn)); placed.add(pn); shift += 4
        nextp, heads = {}, []
        for ch in c.touch:
            ch = [p for p in ch if p in placed]
            heads.append("L_t" + ch[0] if ch else "L_tret")
            for x, y in zip(ch, ch[1:] + [None]):
                nextp[x] = "L_t" + y if y else "L_tret"
        out = []
        at = dict(ins)
        for i, x in enumerate(L):
            if i in at:
                out.append(f"L_t{at[i]}:"); out.append(f"  s_cbranch_execz {nextp[at[i]]}")
            x = re.sub(r"@HEAD(\d)@", lambda m_: heads[int(m_.group(1))], x)
            out.append(re.sub(r"@NEXT(.)@", lambda m_: nextp.get(m_.group(1), "L_tret"), x))
        s.touch_info = [(nm, hex(addr[k])) for k, nm in ins]
        return out

    def xfrag_ops(s, f, dst=None):
        b = xbuf(f) if dst is None else dst
        o = []
        for q in range(4):
            o.append(I(f"v_mul_f32 {vr(b + q)}, {vr(xe(f, q))}, {vr(cpos(f, 0) + q)}", "valu"))
            o.append(I(f"v_mul_f32 {vr(TMP)}, {vr(xo(f, q))}, {vr(cpos(f, 1) + q)}", "valu"))
            o.append(I(f"v_cvt_pk_bf16_f32 {vr(b + q)}, {vr(b + q)}, {vr(TMP)}", "valu"))
        return o

    def unpack_ops(s, f):
        src = xo(f, 0) if f < 10 else xbuf(f)
        o = []
        for q in range(4):
            o.append(I(f"v_lshlrev_b32 {vr(xe(f, q))}, 16, {vr(src + q)}", "valu"))
            o.append(I(f"v_and_b32 {vr(xo(f, q))}, 0xffff0000, {vr(src + q)}", "valu"))
        return o

    def hcvt_ops(s, ks):
        if ks < 3:
            b = H0 + 8 * ks
            return [I(f"v_cvt_pk_bf16_f32 {vr(b + q)}, {vr(b + q)}, {vr(b + 4 + q)}", "valu") for q in range(4)]
        b = H0 + 24
        o = [I(f"v_cvt_pk_bf16_f32 {vr(b)}, {vr(b)}, {vr(b + 1)}", "valu"),
             I(f"v_cvt_pk_bf16_f32 {vr(b + 1)}, {vr(b + 2)}, {vr(b + 3)}", "valu")]
        if not s.c.tail16:
            o += [I(f"v_mov_b32 {vr(b + 2)}, 0", "valu"), I(f"v_mov_b32 {vr(b + 3)}, 0", "valu")]
        o.append(I(f"v_cndmask_b32_e64 {vr(b)}, {vr(b)}, 0.5, {sr(sMask, 2)}", "valu"))
        if not s.c.zrow:
            o.append(I(f"v_cndmask_b32_e64 {vr(b + 1)}, {vr(b + 1)}, 0, {sr(sMask, 2)}", "valu"))
        return o

    class Phase:
        def __init__(s, T0, n):
            s.T0, s.n = T0, n
            s.m = [None] * n; s.r = [None] * n
            s.sc = [[] for _ in range(n)]
            s.vx = [[] for _ in range(n)]

        def load(s, i):
            return len(s.vx[i])

    def spread(s, ph, ops, lo, hi, deadline_groups=None):
        n = hi - lo + 1
        base = [ph.load(i) for i in range(lo, hi + 1)]
        tot = sum(base) + len(ops)
        lvl = 0
        while sum(max(0, lvl - b) for b in base) < len(ops):
            lvl += 1
        cap = [max(0, lvl - b) for b in base]
        excess = sum(cap) - len(ops)
        idxs = [i for i in range(n) if cap[i] > 0]
        if excess > 0:
            step = len(idxs) / excess
            for e in range(excess):
                cap[idxs[int((e + 0.5) * step)]] -= 1
        k = 0
        for i in range(n):
            for _ in range(cap[i]):
                ph.vx[lo + i].append(ops[k]); k += 1
        assert k == len(ops)

    def build(s, kind, wave=None):
        c = s.c
        LA = c.LA
        if kind == "g1first":
            Ts = list(range(0, 91))
        elif kind == "loop":
            Ts = list(range(91, 195)) + list(range(0, 91))
        else:
            Ts = list(range(91, 195))
        n = len(Ts)
        ph = s.Phase(Ts[0], n)
        ph.kind = kind
        ph.Ts = Ts
        pos = {T: i for i, T in enumerate(Ts)}
        first = kind == "g1first"
        last = kind == "g2last"
        for i, T in enumerate(Ts):
            ph.m[i] = s.slot_desc(T, first)[0]
            Tn = (T + LA) % 195
            if last and T + LA >= 195:
                ph.r[i] = None
            else:
                ph.r[i] = s.slot_desc(Tn, False)[1]

        def at(T):
            return pos.get(T % 195)

        slot_of = s.g2_slot_of
        if last and c.g2l_head:
            assert c.headint and c.headn == 2
            lo_ = s.g2_order()
            order_l = [(p, tau, ks) for p in (0, 1) for ks in range(4) for tau in (0, 1)] + lo_[16:]
            slot_of = lambda p, tau, ks: 91 + order_l.index((p, tau, ks))
            r2 = lambda T: s.R2 + 4 * (T % c.RING)
            for i, T in enumerate(Ts):
                it = order_l[i]
                mf = s.slot_desc(s.g2_slot_of(*it), False)[0]
                if T >= 107 and it[2] < 3:
                    mf = I(mf.txt.replace(ar(mf.areg, 4), ar(r2(T), 4)), "mfma", areg=r2(T))
                ph.m[i] = mf
                rd = ph.r[i]
                if rd is not None and T + LA >= 107 and order_l[i + LA][2] < 3:
                    ph.r[i] = I(rd.txt.replace(ar(rd.areg, 4), ar(r2(T + LA), 4)), "dsr", areg=r2(T + LA))

        p3 = first and c.pro == 3
        s._dm = c.dmamod0 if (first and c.dmamod0 is not None) else c.dmamod
        cdma = c.dma1 if p3 else c.dma
        cbars = c.bars1 if p3 else c.bars
        if last and c.dmaL:
            cdma = dict(c.dma); cdma.update(c.dmaL)
            cbars = c.barsL
        groups = dict(cdma)
        if last:
            for g in list(groups):
                if g not in ("G4", "L", "MX"):
                    del groups[g]
        m0_req = []
        dma_slots = []
        for g, (slots, arr) in groups.items():
            items = s.dma_items(g)
            if not slots:
                continue
            assert len(items) == len(slots), g
            ovr = wave is not None and c.dmaw and g in c.dmaw[wave]
            if ovr:
                slots = c.dmaw[wave][g]
            for (sc, v), T in zip(items, slots):
                if wave is not None and not ovr:
                    T = T + c.wshift[wave]
                i = at(T)
                if i is None:
                    continue
                ph.vx[i].append(v)
                dma_slots.append(i)
                if sc is not None:
                    m0_req.append((i, sc))
        dma_slots.sort()
        bars = [b for b in cbars if at(b) is not None]
        if last:
            need = set()
            for g in ("G1", "G2", "G3", "G4", "L", "MX"):
                need.add(cdma[g][1])
            bars = [b for b in bars if b in need or b == 91]
        fixed = {}
        for b in bars:
            i = at(b)
            ph.sc[i].append(I("s_barrier", "barrier"))
            arrivals = [g for g, (sl, arr) in cdma.items() if arr == b]
            if last:
                arrivals = [g for g in arrivals if g in ("G1", "G2", "G3", "G4", "L", "MX")]
            if arrivals:
                w = I(None, "wait"); w.wait = dict(vm=arrivals, lg=True)
                j = i - 1
                if j < 0:
                    ph.pre_wait = w
                else:
                    ph.sc[j].append(w)
        if kind in ("g1first", "loop"):
            nb = (Ts[-1] + 1) % 195
            if nb in c.bars:
                arrivals = [g for g, (sl, arr) in c.dma.items() if arr == nb]
                if arrivals:
                    w = I(None, "wait"); w.wait = dict(vm=arrivals, lg=True)
                    ph.sc[n - 1].append(w)
        if first:
            for st in range(1, 13):
                fr = st if st < 10 else None
                if p3:
                    grp = [f"X{st}"]
                elif st == 9:
                    grp = ["X9", "X10", "X11", "X12"]
                elif st > 9:
                    continue
                else:
                    grp = [f"X{st}"]
                if (c.pro == 2 or (p3 and c.bias_in)) and s.fuse(st)[0] - 1 < c.bias_at[0] <= (s.fuse(st + 1)[0] if st < 12 else 91) - 1:
                    grp = grp + ["BI"]
                j = s.fuse(st)[0] - 1
                ex = [x for x in ph.sc[j] if x.kind == "wait"]
                if ex:
                    ex[0].wait["vm"] = ex[0].wait["vm"] + grp
                else:
                    w = I(None, "wait"); w.wait = dict(vm=grp, lg=True)
                    ph.sc[j].append(w)
        if first and c.touch and c.touch_at != "bar0":
            ph.touch_slot = at(c.touch_at)
        for i, sc in sorted(m0_req, key=lambda x: x[0]):
            prev = max([d for d in dma_slots if d < i], default=-1)
            placed = False
            for j in range(i, prev, -1):
                if j >= 0 and not ph.sc[j]:
                    ph.sc[j].append(sc); placed = True; break
            if not placed:
                ph.sc[i].append(sc)
        if kind == "loop":
            ph.loopctl = True
        def put(T, ins):
            i = at(T)
            if i is not None:
                ph.vx[i].append(ins)
        rdslot = lambda T: (T - LA) % 195
        put(rdslot(s.pv_switch()), I(f"v_add_u32 {vr(PV)}, {WIN}, {vr(PV)}", "valu"))
        if not last:
            if not first:
                put(rdslot(s.g1_slot_of(0, 5)), I(f"v_subrev_u32 {vr(PV)}, {WIN}, {vr(PV)}", "valu"))
        if not first:
            lastPU6 = max(s.g2_slot_of(6, t, k) for t in (0, 1) for k in range(3))
            put(rdslot(lastPU6), I(f"v_add_u32 {vr(PU)}, {WIN}, {vr(PU)}", "valu"))
            put(rdslot(s.g2_slot_of(6, 1, 3)), I(f"v_add_u32 {vr(PT)}, {vr(PT)}, {vr(D1)}", "valu"))
            if not last:
                lastPU12 = s.g2_slot_of(12, 1, 3) if not c.g2snake else max(s.g2_slot_of(12, t, k) for t in (0, 1) for k in range(3))
                put(rdslot(lastPU12), I(f"v_subrev_u32 {vr(PU)}, {WIN}, {vr(PU)}", "valu"))
        if kind == "loop":
            put(0, I(f"v_accvgpr_read_b32 {vr(TMP)}, {ar(s.ST_D2)}", "valu"))
            put(1, I(f"v_add_u32 {vr(PT)}, {vr(PT)}, {vr(TMP)}", "valu"))
            put(2, I(f"v_add_u32 {vr(DU)}, {LSTR}, {vr(DU)}", "valu"))
        if kind == "loop":
            for T in c.keep:
                if c.keepld:
                    put(T, I(f"buffer_load_dword {ar(s.ST + 9)}, off, {sr(sDbg, 4)}, s7{c.keepmod}", "vload", grp="KP"))
                    put(T + 1, I(f"s_add_u32 s7, s7, 0x100000", "salu"))
                else:
                    put(T, I(f"buffer_store_dword {vr(D1)}, off, {sr(sDbg, 4)}, s7{c.keepmod}", "store", grp="KP"))
            for k_, (T, mat) in enumerate(c.pl):
                put(T, I(f"buffer_load_dword {ar(s.ST + 10 + k_)}, {vr(DU)}, {sr(S_V if mat == 'V' else S_U, 4)}, {'s6' if T >= 91 else 's5'} offen{c.pmod}", "vload", grp="PW"))
        if kind in ("loop", "g1first"):
            put(86, I(f"v_add_u32 {vr(DV)}, {LSTR}, {vr(DV)}", "valu"))
        if c.smix and kind == "loop":
            F = c.smix
            put(84, I(f"v_accvgpr_read_b32 {vr(TMP)}, a88", "valu"))
            if "w" in F:
                for t_ in range(7):
                    put(87 + t_, I(f"ds_write_b128 {vr(TMP)}, {vr(H0 + 4 * t_, 4)} offset:{1024 * (t_ % 6)}", "dsw"))
                for t_ in range(6):
                    put(103 + t_, I(f"ds_write_b128 {vr(TMP)}, {vr(H0 + 8 * (t_ % 3), 4)} offset:{1024 * t_}", "dsw"))
            if "b" in F:
                ph.sc[at(94)].append(I("s_waitcnt lgkmcnt(0)", "salu"))
                ph.sc[at(95)].append(I("s_barrier", "barrier"))
                ph.sc[at(110)].append(I("s_waitcnt lgkmcnt(0)", "salu"))
            if "r" in F:
                for t_ in range(7):
                    put(96 + t_, I(f"ds_read_b128 {ar(92 + 4 * t_, 4)}, {vr(TMP)} offset:{1024 * (t_ % 6)}", "dsr", areg=92 + 4 * t_))
                for t_ in range(6):
                    put(112 + t_, I(f"ds_read_b128 {ar(92 + 4 * t_, 4)}, {vr(TMP)} offset:{1024 * t_}", "dsr", areg=92 + 4 * t_))
            if "2" in F:
                ph.sc[at(103)].append(I("s_waitcnt lgkmcnt(0)", "salu"))
                ph.sc[at(119)].append(I("s_waitcnt lgkmcnt(0)", "salu"))
            if "v" in F:
                fr = [H0 + 4 + (i & 3) + 8 * ((i >> 2) % 3) for i in range(39)]
                xo_ = [I(f"v_add_f32 {vr(fr[i])}, {vr(C0 + 2 * i)}, {vr(X0 + 2 * i)}", "valu") for i in range(39)]
                s.spread(ph, xo_, at(104), at(190))
        h0 = s.hcvt_ops(0); h1 = s.hcvt_ops(1); h2 = s.hcvt_ops(2); h3 = s.hcvt_ops(3)
        use = [min(slot_of(p, t, k) for p in range(13) for t in (0, 1)) for k in range(4)]
        ab = c.g1mode != "k"
        if kind in ("loop", "g1first"):
            for k, op in enumerate(h0):
                ph.vx[at((86 if ab else 88) + k // 2)].append(op)
            if ab:
                for k, op in enumerate(h1):
                    ph.vx[at(89 + k // 2)].append(op)
        if kind in ("loop", "g2last"):
            for ops, early, u in ((h1, 91, use[1]), (h2, 92, use[2]), (h3, 93, use[3]))[(1 if ab else 0):]:
                lo = max(early, getattr(s, "_hlast", 91))
                hi = u - 2
                if lo > hi:
                    lo = early
                s.spread(ph, ops, at(lo), at(hi))
                s._hlast = hi + 1 if hi + 1 <= 195 else lo
            s._hlast = 91
        if kind == "loop":
            done = [max(s.g2_slot_of(f, t, k) for t in (0, 1) for k in range(4)) + 3 for f in range(3)]
            if c.headint and c.headn == 2:
                lo = max(done[1], use[3])
                ops = s.xfrag_ops(0) + s.xfrag_ops(1) + s.xfrag_ops(2)
                lo = max(lo, done[0])
                if c.smix:
                    lo = 120
                s.spread(ph, ops[:24], at(lo), at(lo + 39))
                s.spread(ph, ops[24:], at(max(lo + 40, done[2])), at(190))
            else:
                lo = max(done[0], use[3])
                w_ = (190 - lo + 1) // 3
                for f in range(3):
                    a0 = lo + f * w_
                    assert a0 >= done[f]
                    s.spread(ph, s.xfrag_ops(f), at(a0), at(a0 + w_ - 1))
            for f in range(3, 13):
                if ab:
                    a0 = 10 + 7 * (f - 3); a1 = a0 + 6
                else:
                    a0 = 7 + (76 * (f - 3) + 5) // 10
                    a1 = 7 + (76 * (f - 2) + 5) // 10 - 1
                assert a0 > s.fuse(f - 3)[1] and a1 <= s.fuse(f)[0] - 2, (f, a0, a1)
                s.spread(ph, s.xfrag_ops(f), at(a0), at(a1))
        if first:
            for f in range(0, 10):
                lo = s.fuse(f)[1] + 1
                hi = min(lo + 6, 83)
                s.spread(ph, s.unpack_ops(f), at(lo), at(hi))
            if p3:
                for f in (10, 11, 12):
                    f0 = s.fuse(f)[0]
                    s.spread(ph, s.unpack_ops(f), at(f0), at(min(f0 + 6, 87) if f < 12 else 90))
            else:
                s.spread(ph, s.unpack_ops(10) + s.unpack_ops(11) + s.unpack_ops(12), at(63), at(87))
            if p3 and c.otld is not None:
                put(c.otld, I(f"buffer_load_dword {ar(s.ST + 7)}, {vr(TMP)}, {sr(S_O, 4)}, {sr(sXo)} offen{c.otmod}", "vload", grp="OT"))
            if p3 and c.otouch is not None:
                put(c.otouch, I(f"buffer_store_dword {vr(D1)}, {vr(TMP)}, {sr(S_O, 4)}, {sr(sXo)} offen{c.otmod}", "store", grp="OT"))
            if p3:
                for f, T in c.xin.items():
                    dst = xo(f, 0) if f < 10 else xbuf(f)
                    put(T, I(f"buffer_load_dwordx4 {vr(dst, 4)}, {vr(TMP)}, {sr(S_X, 4)}, {sr(sXo)} offen offset:{(128 if c.xpat else 64) * f}{c.xmod}", "vload", grp=f"X{f}"))
                for k_, (T, mat) in enumerate(c.pl1):
                    put(T, I(f"buffer_load_dword {ar(s.ST + 8 + k_)}, {vr(DU)}, {sr(S_V if mat == 'V' else S_U, 4)}, s5 offen{c.pmod}", "vload", grp="PW"))
                for k_, (T, mat) in enumerate(c.pw1):
                    put(T, I(f"buffer_load_dword {ar(s.ST + 6 + k_)}, {vr(TMP)}, {sr(S_V if mat == 'V' else S_U, 4)}, s98 offen{c.pmod}", "vload", grp="PW"))
            if c.pro == 2 or (p3 and c.bias_in):
                bo = s.bias_ops()
                if "biasw" in c.drop:
                    bo = [x for x in bo if x.kind != "dsw"]
                s.spread(ph, bo, at(c.bias_at[0]), at(c.bias_at[1]))
        if last:
            put(92, I(f"v_accvgpr_read_b32 {vr(DV)}, {ar(s.ST_XA)}", "valu"))
            ph.tail = []
            prev = use[3] - 1
            if c.fullst:
                put(93, I(f"v_accvgpr_read_b32 {vr(PV)}, {ar(s.ST + 5)}", "valu"))
                put(94, I(f"s_mov_b32 vcc_lo, 0x55555555", "salu"))
                put(95, I(f"s_mov_b32 vcc_hi, 0x55555555", "salu"))
                K = X0
                pend = []
                for f in range(13):
                    done = max(slot_of(f, t, k) for t in (0, 1) for k in range(4)) + 3
                    ops = s.xfrag_ops(f, K if f == 0 else None)
                    if f >= 1:
                        src, dst = (K, xbuf(0)) if f == 1 else (xbuf(f - 1), xbuf(f - 1))
                        sw = [I(f"v_cndmask_b32_dpp {vr(dst + q)}, {vr(src + q)}, {vr(xbuf(f) + q)}, vcc quad_perm:[1,0,3,2] row_mask:0xf bank_mask:0xf", "valu") for q in range(4)]
                        if f >= 2:
                            ops.insert(len(ops) - 3, I("s_not_b64 vcc, vcc", "salu"))
                        st_ = I(f"buffer_store_dwordx4 {vr(dst, 4)}, {vr(PV if f & 1 else DV)}, {sr(S_O, 4)}, {sr(sXo)} offen offset:{64 * (f - 1) if f & 1 else 64 * f}{c.stmod}", "store", grp=f"S{f}")
                        ops += sw + [st_]
                    if f == 12:
                        ops += [I(f"v_cndmask_b32 {vr(K + q)}, {vr(xbuf(12) + q)}, {vr(K + q)}, vcc", "valu") for q in range(4)]
                        ops.append(I(f"buffer_store_dwordx4 {vr(K, 4)}, {vr(DV)}, {sr(S_O, 4)}, {sr(sXo)} offen offset:0{c.stmod}", "store", grp="S13"))
                    if f == 0:
                        pend = ops; lo0 = done
                        continue
                    lo = max(done, prev + 1)
                    hi = min(194, max(lo + 5, done + 7))
                    if f == 1:
                        assert done <= lo0 + 4
                        ops = pend + ops; lo = lo0; hi = max(lo0 + c.fs_first - 1, done + 3)
                        n0 = len(pend)
                        mid = max(done, lo + (hi - lo + 1) * n0 // len(ops))
                        s.spread(ph, ops[:n0], at(lo), at(mid - 1) if mid > lo else at(lo))
                        s.spread(ph, ops[n0:], at(mid), at(hi))
                        prev = hi
                        continue
                    if lo > 194 or f == 12:
                        if not ph.tail:
                            ph.tail.append(I("s_nop 5", "salu"))
                        ph.tail += ops
                        continue
                    s.spread(ph, ops, at(lo), at(hi))
                    prev = hi
            else:
                for f in range(13):
                    done = max(slot_of(f, t, k) for t in (0, 1) for k in range(4)) + 3
                    ops = s.xfrag_ops(f)
                    if c.stwin and f >= c.stwin:
                        w = I(None, "wait"); w.wait = dict(vm=[f"S{f - c.stwin}"], lg=False); ops.append(w)
                    ops = ops + [I(f"buffer_store_dwordx4 {vr(xbuf(f), 4)}, {vr(DV)}, {sr(S_O, 4)}, {sr(sXo)} offen offset:{(128 if c.stpat == 'oct' else 64) * f if c.stpat != 'lin' else 1024 * (f & 3)}{c.stmod if f < c.stsplit else c.stmod2}", "store", grp=f"S{f}")]
                    if c.stpat == "lin" and f & 3 == 3:
                        ops.append(I(f"v_add_u32 {vr(DV)}, 4096, {vr(DV)}", "valu"))
                    lo = max(done, prev + 1)
                    hi = min(194, max(lo + 5, done + 7))
                    if f == 0 and c.g2l_head:
                        hi = lo + c.g2l_first
                    if lo > 194 or f == 12:
                        if not ph.tail:
                            ph.tail.append(I("s_nop 5", "salu"))
                        ph.tail += ops
                        continue
                    s.spread(ph, ops, at(lo), at(hi))
                    prev = hi
        s.place_lg(ph)
        return ph

    def place_lg(s, ph):
        c = s.c
        n = ph.n
        has = [any(x.kind == "wait" for x in ph.sc[i]) for i in range(n)]
        i = 0
        lastw = -1
        j = -1
        while j < n - 1:
            cand = list(range(j + 1, min(j + c.NW, n - 1) + 1))
            nxt = None
            ex = [x for x in cand if has[x]]
            if ex:
                nxt = ex[0]
            else:
                fr = [x for x in cand if not ph.sc[x]]
                nxt = fr[-1] if fr else cand[-1]
                w = I(None, "wait"); w.wait = dict(vm=[], lg=True)
                ph.sc[nxt].insert(0, w) if not fr else ph.sc[nxt].append(w)
                has[nxt] = True
            j = nxt
            if j >= n - 1:
                break

    def lin(s, ph):
        out = []
        for i in range(ph.n):
            out.append(ph.m[i])
            if s.c.lstamps and ph.kind == s.c.lphase and ph.Ts[i] in s.c.lstamps:
                k = s.c.lstamps.index(ph.Ts[i])
                out.append(I(f"{'s_memrealtime' if s.c.lrt else 's_memtime'} s[{64 + 2 * k}:{65 + 2 * k}]", "salu"))
            if getattr(ph, "touch_slot", None) == i:
                out += s.touch_seq()
            sc = list(ph.sc[i])
            sc.sort(key=lambda x: {"wait": 0, "barrier": 1}.get(x.kind, 2))
            shadow = sc[:1]; rest = sc[1:]
            out += shadow
            pre = [x for x in rest if x.kind != "wait"]
            post = [x for x in rest if x.kind == "wait"]
            out += pre
            if getattr(ph, "loopctl", False) and i == ph.n - 1:
                out.append(I(f"s_sub_u32 {sr(sCnt)}, {sr(sCnt)}, 1", "salu"))
            vx = list(ph.vx[i])
            if s.c.dma_first:
                d = [x for x in vx if x.kind == "dma"]
                if d and (shadow and shadow[0].kind == "salu" and "m0" in shadow[0].txt):
                    pass
                elif d:
                    out += d; vx = [x for x in vx if x.kind != "dma"]
            if ph.r[i] is not None:
                out.append(ph.r[i])
            out += vx
            out += post
        out += getattr(ph, "tail", [])
        return out

    def prologue(s):
        c = s.c
        o = []
        S = lambda t: o.append(I(t, "salu"))
        V = lambda t: o.append(I(t, "valu"))
        t = [H0 + i for i in range(28)]
        S(f"s_cmp_ge_u32 s2, 256")
        S(f"s_cbranch_scc1 L_end")
        if c.pf_code:
            S(f"s_getpc_b64 {sr(S_M, 2)}")
            o.append(I("L_pc:", "label"))
            S(f"s_mov_b32 {sr(S_M + 2)}, L_end-L_pc")
            S(f"s_mov_b32 {sr(S_M + 3)}, 0x20000")
            V(f"v_lshlrev_b32 {vr(TMP)}, 6, v0")
            o.append(I(f"buffer_load_dword {ar(s.ST + 4)}, {vr(TMP)}, {sr(S_M, 4)}, 0 offen", "vload", grp="PC"))
        S(f"s_load_dwordx2 {sr(S_X, 2)}, s[0:1], 0")
        S(f"s_load_dwordx2 {sr(S_U, 2)}, s[0:1], 8")
        S(f"s_load_dwordx2 {sr(S_V, 2)}, s[0:1], 16")
        S(f"s_load_dwordx2 {sr(S_B, 2)}, s[0:1], 24")
        S(f"s_load_dwordx2 {sr(S_O, 2)}, s[0:1], 32")
        if c.stamps:
            S(f"s_load_dwordx2 {sr(sDbg, 2)}, s[0:1], {40 if c.dbg else 48}")
            S(f"s_memtime s[60:61]")
            S(f"s_memrealtime s[70:71]")
        lane, w, g, m = t[0], t[1], t[2], t[3]
        V(f"v_lshrrev_b32 {vr(w)}, 6, v0")
        V(f"v_and_b32 {vr(lane)}, 63, v0")
        V(f"v_readfirstlane_b32 {sr(sW)}, {vr(w)}")
        V(f"v_lshrrev_b32 {vr(g)}, 4, {vr(lane)}")
        V(f"v_and_b32 {vr(m)}, 15, {vr(lane)}")
        j, q, x, y = t[4], t[5], t[6], t[7]
        V(f"v_lshrrev_b32 {vr(j)}, 3, {vr(lane)}")
        V(f"v_and_b32 {vr(q)}, 7, {vr(lane)}")
        V(f"v_lshrrev_b32 {vr(x)}, 2, {vr(j)}")
        V(f"v_and_b32 {vr(y)}, 3, {vr(j)}")
        V(f"v_lshlrev_b32 {vr(x)}, 2, {vr(x)}")
        V(f"v_add_u32 {vr(x)}, {vr(x)}, {vr(y)}")
        V(f"v_mul_u32_u24 {vr(x)}, {2 * 832}, {vr(x)}")
        V(f"v_lshrrev_b32 {vr(y)}, 1, {vr(j)}")
        V(f"v_xor_b32 {vr(y)}, {vr(y)}, {vr(q)}")
        V(f"v_lshl_add_u32 {vr(DV)}, {vr(y)}, 4, {vr(x)}")
        V(f"v_lshlrev_b32 {vr(DU)}, 4, {vr(lane)}")
        XA = t[8]
        V(f"v_mul_u32_u24 {vr(XA)}, 832, {vr(m)}")
        V(f"v_lshl_add_u32 {vr(XA)}, {vr(g)}, 4, {vr(XA)}")
        S(f"s_and_b32 {sr(sT0)}, {sr(sW)}, 1")
        S(f"s_lshr_b32 {sr(sT1)}, {sr(sW)}, 1")
        S(f"s_mul_i32 {sr(sVb)}, {sr(sT0)}, {SLOT}")
        S(f"s_mul_i32 {sr(sT2)}, {sr(sT1)}, 1088")
        S(f"s_add_u32 {sr(sVb)}, {sr(sVb)}, {sr(sT2)}")
        S(f"s_mul_i32 {sr(sVs0)}, {sr(sT0)}, {832 + 64}")
        S(f"s_mul_i32 {sr(sT2)}, {sr(sT1)}, {16 * 832}")
        S(f"s_add_u32 {sr(sVs0)}, {sr(sVs0)}, {sr(sT2)}")
        S(f"s_add_u32 {sr(sVs0 + 1)}, {sr(sVs0)}, {32 * 832}")
        S(f"s_add_u32 {sr(sVs0 + 2)}, {sr(sVs0)}, {64 * 832}")
        S(f"s_mul_i32 {sr(sWAs)}, {sr(sW)}, {16 * 832}")
        S(f"s_mul_i32 {sr(sWAm)}, {sr(sT1)}, {SLOT}")
        S(f"s_mul_i32 {sr(sT2)}, {sr(sT0)}, 1088")
        S(f"s_add_u32 {sr(sWAm)}, {sr(sWAm)}, {sr(sT2)}")
        S(f"s_add_u32 {sr(sWAm)}, {sr(sWAm)}, {Z + 4032 - 768}")
        S(f"s_mul_i32 {sr(sWBs)}, {sr(sT0)}, {16 * 832}")
        S(f"s_add_u32 {sr(sWBs)}, {sr(sWBs)}, {64 * 832}")
        S(f"s_add_u32 {sr(sWBm)}, {sr(sT2)}, {Z + 2 * SLOT + 4032 - 768}")
        S(f"s_lshl_b32 {sr(sT3)}, {sr(sW)}, 10")
        S(f"s_add_u32 {sr(sT6m)}, {sr(sT3)}, {T6}")
        S(f"s_add_u32 {sr(sT6s)}, {sr(sT3)}, {96 * 832 + LSTR}")
        S(f"s_add_u32 {sr(sLm)}, {sr(sT3)}, 81920")
        S(f"s_lshl_b32 {sr(sUm)}, {sr(sW)}, 12")
        S(f"s_add_u32 {sr(sMXs)}, {sr(sT3)}, {96 * 832 + LSTR + 4096}")
        S(f"s_add_u32 {sr(sMXm)}, {sr(sT3)}, {T6 + 4096}")
        S(f"s_cmp_eq_u32 {sr(sW)}, 3")
        S(f"s_cselect_b32 {sr(sMXs)}, 86016, {sr(sMXs)}")
        S(f"s_cselect_b32 {sr(sMXm)}, 86016, {sr(sMXm)}")
        S(f"s_lshl_b32 {sr(sXo)}, s2, 2")
        S(f"s_add_u32 {sr(sXo)}, {sr(sXo)}, {sr(sW)}")
        S(f"s_mul_i32 {sr(sXo)}, {sr(sXo)}, {16 * 832}")
        S(f"s_mov_b32 {sr(sMask)}, 0")
        S(f"s_mov_b32 {sr(sMask + 1)}, -1")
        S(f"s_mov_b32 {sr(sCnt)}, {c.nlayers - 2}")
        S(f"s_min_u32 {sr(sT2)}, {sr(sW)}, 2")
        S(f"s_lshl_b32 {sr(sT2)}, {sr(sT2)}, 10")
        S(f"s_add_u32 {sr(sT0)}, {sr(sT3)}, {96 * 832}")
        S(f"s_add_u32 {sr(sT1)}, {sr(sT2)}, {96 * 832 + 4096}")
        S(f"s_add_u32 {sr(sT2)}, {sr(sT2)}, {T6 + 4096}")
        bh, bt, bg, bl = t[9], t[10], t[11], t[12]
        V(f"v_min_u32 {vr(w)}, 2, {vr(w)}") if False else None
        S(f"s_min_u32 {sr(sT3)}, {sr(sW)}, 2")
        V(f"v_lshrrev_b32 {vr(bh)}, 5, {vr(lane)}")
        V(f"v_and_b32 {vr(bt)}, 1, {vr(g)}")
        V(f"v_lshl_add_u32 {vr(bh)}, {sr(sT3)}, 1, {vr(bh)}")
        rho = t[13]
        V(f"v_lshrrev_b32 {vr(x)}, 2, {vr(m)}")
        V(f"v_and_b32 {vr(y)}, 3, {vr(m)}")
        V(f"v_lshlrev_b32 {vr(x)}, 2, {vr(x)}")
        V(f"v_add_u32 {vr(x)}, {vr(x)}, {vr(y)}")
        V(f"v_lshlrev_b32 {vr(rho)}, 1, {vr(x)}")
        V(f"v_add_u32 {vr(x)}, {vr(rho)}, {vr(bt)}")
        V(f"v_mul_u32_u24 {vr(bg)}, 832, {vr(bh)}")
        V(f"v_lshl_add_u32 {vr(bg)}, {vr(x)}, 1, {vr(bg)}")
        V(f"v_mul_u32_u24 {vr(bl)}, 336, {vr(bh)}")
        V(f"v_mul_u32_u24 {vr(x)}, 208, {vr(bt)}")
        V(f"v_add_u32 {vr(bl)}, {vr(bl)}, {vr(x)}")
        V(f"v_lshl_add_u32 {vr(bl)}, {vr(m)}, 3, {vr(bl)}")
        V(f"v_add_u32 {vr(bl)}, {Z}, {vr(bl)}")
        V(f"v_mul_u32_u24 {vr(x)}, 208, {vr(rho)}")
        V(f"v_lshl_add_u32 {vr(PU)}, {vr(g)}, 4, {vr(x)}")
        V(f"v_lshl_add_u32 {vr(x)}, {vr(g)}, 3, {vr(x)}")
        V(f"v_add_u32 {vr(x)}, 192, {vr(x)}")
        V(f"v_lshlrev_b32 {vr(y)}, 3, {vr(m)}")
        V(f"v_add_u32 {vr(y)}, {Z}, {vr(y)}")
        V(f"v_cndmask_b32_e64 {vr(PT)}, {vr(x)}, {vr(y)}, {sr(sMask, 2)}")
        V(f"v_mov_b32 {vr(x)}, {WIN}")
        V(f"v_mov_b32 {vr(y)}, 2016")
        V(f"v_cndmask_b32_e64 {vr(D1)}, {vr(x)}, {vr(y)}, {sr(sMask, 2)}")
        V(f"v_mov_b32 {vr(x)}, {(-WIN) & 0xFFFFFFFF}")
        V(f"v_mov_b32 {vr(y)}, {(-1680) & 0xFFFFFFFF}")
        V(f"v_cndmask_b32_e64 {vr(x)}, {vr(x)}, {vr(y)}, {sr(sMask, 2)}")
        V(f"v_accvgpr_write_b32 {ar(s.ST_D2)}, {vr(x)}")
        V(f"v_accvgpr_write_b32 {ar(s.ST_XA)}, {vr(XA)}")
        V(f"v_and_b32 {vr(x)}, 7, {vr(m)}")
        V(f"v_lshrrev_b32 {vr(y)}, 1, {vr(x)}")
        V(f"v_xor_b32 {vr(y)}, {vr(y)}, {vr(g)}")
        V(f"v_lshlrev_b32 {vr(y)}, 4, {vr(y)}")
        V(f"v_lshl_add_u32 {vr(y)}, {vr(x)}, 7, {vr(y)}")
        V(f"v_lshrrev_b32 {vr(x)}, 3, {vr(m)}")
        V(f"v_mul_u32_u24 {vr(x)}, 1088, {vr(x)}")
        V(f"v_add_u32 {vr(y)}, {vr(y)}, {vr(x)}")
        V(f"v_add_u32 {vr(PV)}, {WIN}, {vr(y)}")
        V(f"v_lshrrev_b32 {vr(x)}, 3, {vr(m)}")
        V(f"v_mul_u32_u24 {vr(x)}, 12, {vr(x)}")
        V(f"v_xor_b32 {vr(x)}, {vr(x)}, {vr(m)}")
        V(f"v_mul_u32_u24 {vr(x)}, 832, {vr(x)}")
        V(f"v_lshl_add_u32 {vr(x)}, {vr(g)}, 4, {vr(x)}")
        V(f"v_add_u32 {vr(PV6)}, {T6}, {vr(x)}")
        XAk, bgk, blk = XF + 8, XF + 9, XF + 10
        XAk, bgk, blk = TMP, t[27], t[26]
        V(f"v_mov_b32 {vr(XAk)}, {vr(XA)}")
        V(f"v_mov_b32 {vr(bgk)}, {vr(bg)}")
        V(f"v_mov_b32 {vr(blk)}, {vr(bl)}")
        for i in range(26):
            V(f"v_mov_b32 {vr(H0 + i)}, 0")
        S("s_waitcnt lgkmcnt(0)")
        if c.stamps:
            S(f"s_memtime s[62:63]")
        for base, n in ((S_X, 16384 * 832), (S_U, NL * LSTR), (S_V, NL * LSTR), (S_B, NL * 832), (S_O, 16384 * 832)):
            S(f"s_mov_b32 {sr(base + 2)}, {n}")
            S(f"s_mov_b32 {sr(base + 3)}, 0x20000")
        S(f"s_cmp_eq_u32 {sr(sW)}, 3")
        S(f"s_cselect_b32 {sr(S_M)}, {sr(S_U)}, {sr(S_V)}")
        S(f"s_cselect_b32 {sr(S_M + 1)}, {sr(S_U + 1)}, {sr(S_V + 1)}")
        S(f"s_mov_b32 {sr(S_M + 2)}, {NL * LSTR}")
        S(f"s_mov_b32 {sr(S_M + 3)}, 0x20000")

        def dma(g):
            for sc, v in s.dma_items(g):
                if sc is not None:
                    o.append(sc)
                    o.append(I("s_nop 0", "salu"))
                o.append(v)

        def xload(f):
            dst = xo(f, 0) if f < 10 else xbuf(f)
            o.append(I(f"buffer_load_dwordx4 {vr(dst, 4)}, {vr(XAk)}, {sr(S_X, 4)}, {sr(sXo)} offen offset:{64 * f}{c.xmod}", "vload", grp=f"X{f}"))

        def stamp(k):
            if c.stamps and c.stamps != "rt":
                S(f"s_memtime s[{80 + 2 * k}:{81 + 2 * k}]")
        stamp(0)
        dma("WA"); dma("WB"); dma("V0")
        S(f"s_mov_b32 m0, {sr(sT6m)}"); S("s_nop 0")
        o.append(I(f"buffer_load_dwordx4 {vr(DU)}, {sr(S_V, 4)}, {sr(sT0)} offen lds", "dma", grp="T6"))
        S(f"s_mov_b32 m0, {sr(sT2)}"); S("s_nop 0")
        o.append(I(f"buffer_load_dwordx4 {vr(DU)}, {sr(S_V, 4)}, {sr(sT1)} offen lds", "dma", grp="T6b"))
        xload(0); xload(1)
        for p in range(13):
            o.append(I(f"buffer_load_short_d16_hi {vr(H0 + 2 * p)}, {vr(bgk)}, {sr(S_B, 4)}, 0 offen offset:{64 * p}", "vload", grp="BI"))
        if c.pf_w:
            S(f"s_lshr_b32 {sr(sT3)}, s2, 3")
            S(f"s_and_b32 {sr(sT3)}, {sr(sT3)}, 31")
            S(f"s_mul_i32 {sr(sT3)}, {sr(sT3)}, {NL * LSTR // 32}")
            V(f"v_lshlrev_b32 {vr(1)}, 2, {vr(DU)}")
            S(f"s_lshl_b32 {sr(sCnt)}, {sr(sW)}, 12")
            S(f"s_add_u32 {sr(sT3)}, {sr(sT3)}, {sr(sCnt)}")
            S(f"s_mov_b32 {sr(sCnt)}, {c.nlayers - 2}")
            PFD = s.ST + 2
            o.append(I(f"buffer_load_dword {ar(PFD)}, {vr(1)}, {sr(S_V, 4)}, {sr(sT3)} offen", "vload", grp="PW"))
            o.append(I(f"buffer_load_dword {ar(PFD + 1)}, {vr(1)}, {sr(S_U, 4)}, {sr(sT3)} offen", "vload", grp="PW"))
        dma("V1"); xload(2); xload(3)
        dma("V2"); xload(4); xload(5)
        dma("V3"); xload(6); xload(7)
        dma("V4")
        for f in range(8, 13):
            xload(f)
        stamp(1)
        for i in range(104):
            V(f"v_mov_b32 {vr(C0 + i)}, 1.0")
        for e in range(6):
            V(f"v_accvgpr_write_b32 {ar(s.TR0 + 4 * e + 2)}, 0")
            V(f"v_accvgpr_write_b32 {ar(s.TR0 + 4 * e + 3)}, 0")
        stamp(2)
        w = I(None, "wait"); w.wait = dict(vm=["BI"], lg=False); o.append(w)
        stamp(3)
        if c.stamps:
            S("s_waitcnt lgkmcnt(0)")
        for p in range(13):
            imm = SLOT * (p % 7) + (2016 if p >= 7 else 0)
            o.append(I(f"ds_write_b64 {vr(blk)}, {vr(H0 + 2 * p, 2)} offset:{imm}", "dsw"))
        if c.stamps:
            S("s_waitcnt lgkmcnt(0)")
        stamp(4)
        w = I(None, "wait"); w.wait = dict(vm=["WA", "WB", "V0", "T6", "T6b", "X0"], lg=False, lg0=True); o.append(w)
        stamp(5)
        o.append(I("s_barrier", "barrier"))
        if c.stamps:
            S(f"s_memtime s[64:65]")
            if c.stamps == "rt":
                S(f"s_memrealtime s[80:81]")
            S("s_waitcnt lgkmcnt(0)")
        for T in range(c.LA):
            o.append(s.slot_desc(T, True)[1])
            if T == s.g1_slot_of(0, 5):
                o.append(I(f"v_subrev_u32 {vr(PV)}, {WIN}, {vr(PV)}", "valu"))
        w = I(None, "wait"); w.wait = dict(vm=[], lg=True); o.append(w)
        return o

    BI_R, BI_QA, BI_QB, BI_AD = 0, 8, 12, 16

    def prologue2(s):
        c = s.c
        o = []
        S = lambda t: o.append(I(t, "salu"))
        V = lambda t: o.append(I(t, "valu"))
        t = [H0 + i for i in range(28)]
        S(f"s_cmp_ge_u32 s2, 256")
        S(f"s_cbranch_scc1 L_end")
        S(f"s_load_dwordx2 {sr(S_X, 2)}, s[0:1], 0")
        S(f"s_load_dwordx2 {sr(S_V, 2)}, s[0:1], 16")
        S(f"s_load_dwordx2 {sr(S_U, 2)}, s[0:1], 8")
        S(f"s_load_dwordx2 {sr(S_B, 2)}, s[0:1], 24")
        S(f"s_load_dwordx2 {sr(S_O, 2)}, s[0:1], 32")
        if c.stamps:
            S(f"s_load_dwordx2 {sr(sDbg, 2)}, s[0:1], {40 if c.dbg else 48}")
            S(f"s_memtime s[60:61]")
            S(f"s_memrealtime s[70:71]")
        lane, w, g, m = t[0], t[1], t[2], t[3]
        V(f"v_lshrrev_b32 {vr(w)}, 6, v0")
        V(f"v_and_b32 {vr(lane)}, 63, v0")
        V(f"v_readfirstlane_b32 {sr(sW)}, {vr(w)}")
        if c.pf_code:
            S(f"s_getpc_b64 {sr(S_M, 2)}")
            o.append(I("L_pc:", "label"))
            S(f"s_mov_b32 {sr(S_M + 2)}, L_end-L_pc")
            S(f"s_mov_b32 {sr(S_M + 3)}, 0x20000")
            V(f"v_lshlrev_b32 {vr(t[20])}, 6, v0")
            o.append(I(f"buffer_load_dword {ar(s.ST + 4)}, {vr(t[20])}, {sr(S_M, 4)}, 0 offen", "vload", grp="PC"))
            if c.wvloop:
                V(f"v_add_u32 {vr(t[20])}, 16384, {vr(t[20])}")
                o.append(I(f"buffer_load_dword {ar(s.ST + 5)}, {vr(t[20])}, {sr(S_M, 4)}, 0 offen", "vload", grp="PC"))
        V(f"v_lshrrev_b32 {vr(g)}, 4, {vr(lane)}")
        V(f"v_and_b32 {vr(m)}, 15, {vr(lane)}")
        j, q, x, y = t[4], t[5], t[6], t[7]
        V(f"v_lshrrev_b32 {vr(j)}, 3, {vr(lane)}")
        V(f"v_and_b32 {vr(q)}, 7, {vr(lane)}")
        V(f"v_mul_u32_u24 {vr(x)}, {2 * 832}, {vr(j)}")
        V(f"v_lshrrev_b32 {vr(y)}, 1, {vr(j)}")
        V(f"v_xor_b32 {vr(y)}, {vr(y)}, {vr(q)}")
        V(f"v_lshl_add_u32 {vr(DV)}, {vr(y)}, 4, {vr(x)}")
        V(f"v_lshlrev_b32 {vr(DU)}, 4, {vr(lane)}")
        XA = TMP
        V(f"v_mul_u32_u24 {vr(XA)}, 832, {vr(m)}")
        V(f"v_lshl_add_u32 {vr(XA)}, {vr(g)}, 4, {vr(XA)}")
        S(f"s_and_b32 {sr(sT0)}, {sr(sW)}, 1")
        S(f"s_lshr_b32 {sr(sT1)}, {sr(sW)}, 1")
        S(f"s_mul_i32 {sr(sVb)}, {sr(sT0)}, {SLOT}")
        S(f"s_mul_i32 {sr(sT2)}, {sr(sT1)}, 1088")
        S(f"s_add_u32 {sr(sVb)}, {sr(sVb)}, {sr(sT2)}")
        S(f"s_mul_i32 {sr(sVs0)}, {sr(sT0)}, {832 + 64}")
        S(f"s_mul_i32 {sr(sT2)}, {sr(sT1)}, {16 * 832}")
        S(f"s_add_u32 {sr(sVs0)}, {sr(sVs0)}, {sr(sT2)}")
        S(f"s_add_u32 {sr(sVs0 + 1)}, {sr(sVs0)}, {32 * 832}")
        S(f"s_add_u32 {sr(sVs0 + 2)}, {sr(sVs0)}, {64 * 832}")
        S(f"s_mul_i32 {sr(sWAs)}, {sr(sW)}, {16 * 832}")
        S(f"s_mul_i32 {sr(sWAm)}, {sr(sT1)}, {SLOT}")
        S(f"s_mul_i32 {sr(sT2)}, {sr(sT0)}, 1088")
        S(f"s_add_u32 {sr(sWAm)}, {sr(sWAm)}, {sr(sT2)}")
        S(f"s_add_u32 {sr(sWAm)}, {sr(sWAm)}, {Z + 4032 - 768}")
        S(f"s_mul_i32 {sr(sWBs)}, {sr(sT0)}, {16 * 832}")
        S(f"s_add_u32 {sr(sWBs)}, {sr(sWBs)}, {64 * 832}")
        S(f"s_add_u32 {sr(sWBm)}, {sr(sT2)}, {Z + 2 * SLOT + 4032 - 768}")
        S(f"s_lshl_b32 {sr(sT3)}, {sr(sW)}, 10")
        S(f"s_add_u32 {sr(sT6m)}, {sr(sT3)}, {T6}")
        S(f"s_add_u32 {sr(sLm)}, {sr(sT3)}, 81920")
        S(f"s_add_u32 {sr(sT6s)}, {sr(sT3)}, {96 * 832 + LSTR}")
        S(f"s_add_u32 {sr(sMXs)}, {sr(sT3)}, {96 * 832 + LSTR + 4096}")
        S(f"s_add_u32 {sr(sMXm)}, {sr(sT3)}, {T6 + 4096}")
        S(f"s_add_u32 {sr(sT0)}, {sr(sT3)}, {96 * 832}")
        S(f"s_min_u32 {sr(sT2)}, {sr(sW)}, 2")
        S(f"s_lshl_b32 {sr(sT2)}, {sr(sT2)}, 10")
        S(f"s_add_u32 {sr(sT1)}, {sr(sT2)}, {96 * 832 + 4096}")
        S(f"s_add_u32 {sr(sT2)}, {sr(sT2)}, {T6 + 4096}")
        S(f"s_lshl_b32 {sr(sXo)}, s2, 2")
        S(f"s_add_u32 {sr(sXo)}, {sr(sXo)}, {sr(sW)}")
        S(f"s_mul_i32 {sr(sXo)}, {sr(sXo)}, {16 * 832}")
        for base, n in ((S_X, 16384 * 832), (S_V, NL * LSTR), (S_U, NL * LSTR), (S_B, NL * 832), (S_O, 16384 * 832)):
            S(f"s_mov_b32 {sr(base + 2)}, {n}")
            S(f"s_mov_b32 {sr(base + 3)}, 0x20000")
        if c.stamps and c.stamps != "rt":
            S(f"s_memtime s[90:91]")
        S("s_waitcnt lgkmcnt(0)")
        if c.stamps:
            S(f"s_memtime s[62:63]")

        def stamp(k):
            if c.stamps and c.stamps != "rt":
                S(f"s_memtime s[{80 + 2 * k}:{81 + 2 * k}]")

        def dma(gname):
            for sc, v in s.dma_items(gname):
                if sc is not None:
                    o.append(sc)
                    o.append(I("s_nop 0", "salu"))
                o.append(v)

        def xload(f):
            dst = xo(f, 0) if f < 10 else xbuf(f)
            o.append(I(f"buffer_load_dwordx4 {vr(dst, 4)}, {vr(XA)}, {sr(S_X, 4)}, {sr(sXo)} offen offset:{64 * f}{c.xmod}", "vload", grp=f"X{f}"))

        stamp(0)
        dma("WA"); dma("WB"); dma("V0")
        S(f"s_mov_b32 m0, {sr(sT6m)}"); S("s_nop 0")
        o.append(I(f"buffer_load_dwordx4 {vr(DU)}, {sr(S_V, 4)}, {sr(sT0)} offen lds", "dma", grp="T6"))
        S(f"s_mov_b32 m0, {sr(sT2)}"); S("s_nop 0")
        o.append(I(f"buffer_load_dwordx4 {vr(DU)}, {sr(S_V, 4)}, {sr(sT1)} offen lds", "dma", grp="T6b"))
        xload(0); xload(1)

        def pfw():
            S(f"s_lshr_b32 {sr(sT3)}, s2, 3")
            S(f"s_and_b32 {sr(sT3)}, {sr(sT3)}, 31")
            S(f"s_mul_i32 {sr(sT3)}, {sr(sT3)}, {NL * LSTR // 32}")
            V(f"v_lshlrev_b32 {vr(t[21])}, 2, {vr(DU)}")
            S(f"s_lshl_b32 {sr(sT0)}, {sr(sW)}, 12")
            S(f"s_add_u32 {sr(sT3)}, {sr(sT3)}, {sr(sT0)}")
            PFD = s.ST + 2
            o.append(I(f"buffer_load_dword {ar(PFD)}, {vr(t[21])}, {sr(S_V, 4)}, {sr(sT3)} offen", "vload", grp="PW"))
            o.append(I(f"buffer_load_dword {ar(PFD + 1)}, {vr(t[21])}, {sr(S_U, 4)}, {sr(sT3)} offen", "vload", grp="PW"))
        bl, bm, bg = t[8], t[9], t[10]
        def biloads():
            V(f"v_lshrrev_b32 {vr(bl)}, 3, {vr(lane)}")
            V(f"v_min_u32 {vr(bl)}, 5, {vr(bl)}")
            V(f"v_and_b32 {vr(bm)}, 7, {vr(lane)}")
            V(f"v_mul_u32_u24 {vr(bg)}, 832, {vr(bl)}")
            V(f"v_lshl_add_u32 {vr(bg)}, {vr(bm)}, 3, {vr(bg)}")
            S(f"s_lshl_b32 {sr(sT0)}, {sr(sW)}, 6")
            for k in range(4):
                so = sr(sT0) if k < 3 else "0"
                o.append(I(f"buffer_load_dwordx2 {vr(s.BI_R + 2 * k, 2)}, {vr(bg)}, {sr(S_B, 4)}, {so} offen offset:{256 * k}", "vload", grp="BI"))
        if c.bi_early:
            biloads()
        if c.pf_w == 1:
            pfw()
        dma("V1"); xload(2); xload(3)
        dma("V2"); xload(4); xload(5)
        dma("V3"); xload(6); xload(7)
        dma("V4")
        for f in range(8, 13):
            xload(f)
        if c.pf_w == 2:
            pfw()
        if not c.bi_early:
            biloads()
        stamp(1)
        V(f"v_mul_u32_u24 {vr(bl)}, 336, {vr(bl)}")
        V(f"v_lshl_add_u32 {vr(bl)}, {vr(bm)}, 4, {vr(bl)}")
        V(f"v_add_u32 {vr(bl)}, {Z}, {vr(bl)}")
        S(f"s_mul_i32 {sr(sT0)}, {sr(sW)}, {SLOT}")
        V(f"v_add_u32 {vr(s.BI_AD)}, {sr(sT0)}, {vr(bl)}")
        S(f"s_add_u32 {sr(sT1)}, {sr(sT0)}, {4 * SLOT}")
        S(f"s_cmp_eq_u32 {sr(sW)}, 3")
        S(f"s_cselect_b32 {sr(sT1)}, 2016, {sr(sT1)}")
        V(f"v_add_u32 {vr(s.BI_AD + 1)}, {sr(sT1)}, {vr(bl)}")
        S(f"s_add_u32 {sr(sT1)}, {sr(sT0)}, {SLOT + 2016}")
        V(f"v_add_u32 {vr(s.BI_AD + 2)}, {sr(sT1)}, {vr(bl)}")
        V(f"v_add_u32 {vr(s.BI_AD + 3)}, {5 * SLOT + 2016}, {vr(bl)}")
        for r in (s.BI_QA + 1, s.BI_QA + 3, s.BI_QB + 1, s.BI_QB + 3):
            V(f"v_mov_b32 {vr(r)}, 0")
        S(f"s_lshl_b32 {sr(sUm)}, {sr(sW)}, 12")
        S(f"s_cmp_eq_u32 {sr(sW)}, 3")
        S(f"s_cselect_b32 {sr(sMXs)}, 86016, {sr(sMXs)}")
        S(f"s_cselect_b32 {sr(sMXm)}, 86016, {sr(sMXm)}")
        S(f"s_cselect_b32 {sr(S_M)}, {sr(S_U)}, {sr(S_V)}")
        S(f"s_cselect_b32 {sr(S_M + 1)}, {sr(S_U + 1)}, {sr(S_V + 1)}")
        S(f"s_mov_b32 {sr(S_M + 2)}, {NL * LSTR}")
        S(f"s_mov_b32 {sr(S_M + 3)}, 0x20000")
        S(f"s_mov_b32 {sr(sMask)}, 0")
        S(f"s_mov_b32 {sr(sMask + 1)}, -1")
        S(f"s_mov_b32 {sr(sCnt)}, {c.nlayers - 2}")
        rho = t[13]
        V(f"v_lshrrev_b32 {vr(x)}, 2, {vr(m)}")
        V(f"v_and_b32 {vr(y)}, 3, {vr(m)}")
        V(f"v_lshlrev_b32 {vr(x)}, 2, {vr(x)}")
        V(f"v_add_u32 {vr(x)}, {vr(x)}, {vr(y)}")
        V(f"v_lshlrev_b32 {vr(rho)}, 1, {vr(x)}")
        V(f"v_and_b32 {vr(x)}, 7, {vr(m)}")
        V(f"v_lshrrev_b32 {vr(y)}, 1, {vr(x)}")
        V(f"v_xor_b32 {vr(y)}, {vr(y)}, {vr(g)}")
        V(f"v_lshlrev_b32 {vr(y)}, 4, {vr(y)}")
        V(f"v_lshl_add_u32 {vr(y)}, {vr(x)}, 7, {vr(y)}")
        V(f"v_lshrrev_b32 {vr(x)}, 3, {vr(m)}")
        V(f"v_mul_u32_u24 {vr(x)}, 1088, {vr(x)}")
        V(f"v_add_u32 {vr(y)}, {vr(y)}, {vr(x)}")
        V(f"v_add_u32 {vr(PV)}, {WIN}, {vr(y)}")
        V(f"v_lshrrev_b32 {vr(x)}, 3, {vr(m)}")
        V(f"v_mul_u32_u24 {vr(x)}, 12, {vr(x)}")
        V(f"v_xor_b32 {vr(x)}, {vr(x)}, {vr(m)}")
        V(f"v_mul_u32_u24 {vr(x)}, 832, {vr(x)}")
        V(f"v_lshl_add_u32 {vr(x)}, {vr(g)}, 4, {vr(x)}")
        V(f"v_add_u32 {vr(PV6)}, {T6}, {vr(x)}")
        V(f"v_mul_u32_u24 {vr(x)}, 208, {vr(rho)}")
        V(f"v_lshl_add_u32 {vr(PU)}, {vr(g)}, 4, {vr(x)}")
        V(f"v_lshl_add_u32 {vr(x)}, {vr(g)}, 3, {vr(x)}")
        V(f"v_add_u32 {vr(x)}, 192, {vr(x)}")
        V(f"v_lshlrev_b32 {vr(y)}, 3, {vr(m)}")
        V(f"v_add_u32 {vr(y)}, {Z}, {vr(y)}")
        V(f"v_cndmask_b32_e64 {vr(PT)}, {vr(x)}, {vr(y)}, {sr(sMask, 2)}")
        V(f"v_mov_b32 {vr(x)}, {WIN}")
        V(f"v_mov_b32 {vr(y)}, 2016")
        V(f"v_cndmask_b32_e64 {vr(D1)}, {vr(x)}, {vr(y)}, {sr(sMask, 2)}")
        V(f"v_mov_b32 {vr(x)}, {(-WIN) & 0xFFFFFFFF}")
        V(f"v_mov_b32 {vr(y)}, {(-1680) & 0xFFFFFFFF}")
        V(f"v_cndmask_b32_e64 {vr(x)}, {vr(x)}, {vr(y)}, {sr(sMask, 2)}")
        V(f"v_accvgpr_write_b32 {ar(s.ST_D2)}, {vr(x)}")
        V(f"v_accvgpr_write_b32 {ar(s.ST_XA)}, {vr(XA)}")
        for e in range(6):
            V(f"v_accvgpr_write_b32 {ar(s.TR0 + 4 * e + 2)}, 0")
            V(f"v_accvgpr_write_b32 {ar(s.TR0 + 4 * e + 3)}, 0")
        for i in range(20, 104):
            V(f"v_mov_b32 {vr(C0 + i)}, 1.0")
        stamp(2)
        w_ = I(None, "wait"); w_.wait = dict(vm=["WA", "WB", "V0", "T6", "T6b", "X0"], lg=False); o.append(w_)
        stamp(3)
        if c.stamps and c.stamps != "rt":
            S("s_waitcnt lgkmcnt(0)")
        o.append(I("s_barrier", "barrier"))
        if c.stamps:
            S(f"s_memtime s[64:65]")
            if c.stamps == "rt":
                S(f"s_memrealtime s[80:81]")
            S("s_waitcnt lgkmcnt(0)")
        for T in range(c.LA):
            o.append(s.slot_desc(T, True)[1])
            if T == s.g1_slot_of(0, 5):
                o.append(I(f"v_subrev_u32 {vr(PV)}, {WIN}, {vr(PV)}", "valu"))
        w_ = I(None, "wait"); w_.wait = dict(vm=[], lg=True); o.append(w_)
        return o

    def prologue3(s):
        c = s.c
        o = []
        cur = [o]
        S = lambda t: cur[0].append(I(t, "salu"))
        V = lambda t: cur[0].append(I(t, "valu"))
        t = [H0 + i for i in range(28)]
        sP = list(range(92, 100))
        own_pc = (not c._hdr) or c.split is not None
        if not c._hdr:
            S(f"s_cmp_ge_u32 s2, 256")
            S(f"s_cbranch_scc1 L_end")
        S(f"s_load_dwordx2 {sr(S_V, 2)}, s[0:1], 16")
        S(f"s_load_dwordx2 {sr(S_X, 2)}, s[0:1], 0")
        S(f"s_load_dwordx2 {sr(S_U, 2)}, s[0:1], 8")
        S(f"s_load_dwordx2 {sr(S_B, 2)}, s[0:1], 24")
        S(f"s_load_dwordx2 {sr(S_O, 2)}, s[0:1], 32")
        if c.keep and not c.stamps:
            S(f"s_load_dwordx2 {sr(sDbg, 2)}, s[0:1], 48")
        if c.stamps:
            S(f"s_load_dwordx2 {sr(sDbg, 2)}, s[0:1], {40 if c.dbg else 48}")
            S(f"s_memtime s[60:61]")
            S(f"s_memrealtime s[70:71]")
        lane, w, g, m = t[0], t[1], t[2], t[3]
        V(f"v_lshrrev_b32 {vr(w)}, 6, v0")
        V(f"v_and_b32 {vr(lane)}, 63, v0")
        V(f"v_readfirstlane_b32 {sr(sW)}, {vr(w)}")
        if c.pf_code:
            if own_pc:
                S(f"s_getpc_b64 {sr(S_M, 2)}")
                o.append(I("L_pc:", "label"))
            S(f"s_mov_b32 {sr(S_M + 2)}, {'L_pad' if c.pad else 'L_fin' if c._hdr else 'L_end'}-L_pc")
            S(f"s_mov_b32 {sr(S_M + 3)}, 0x20000")
            if c.pf_slice:
                pfl = -(-c.pf_bytes // (c.pf_slice * 256))
                assert pfl <= 31
                S(f"s_lshr_b32 s4, s2, 3")
                S(f"s_and_b32 s4, s4, {c.pf_slice - 1}")
                S(f"s_lshl_b32 s4, s4, 2")
                S(f"s_add_u32 s4, s4, {sr(sW)}")
                S(f"s_mul_i32 s4, s4, {64 * pfl}")
                V(f"v_lshlrev_b32 {vr(t[20])}, 6, {vr(lane)}")
                S(f"s_mov_b64 exec, {hex((1 << pfl) - 1)}")
                o.append(I(f"buffer_load_dword {ar(s.ST + 4)}, {vr(t[20])}, {sr(S_M, 4)}, s4 offen", "vload", grp="PC"))
                S(f"s_mov_b64 exec, -1")
            else:
                V(f"v_lshlrev_b32 {vr(t[20])}, 6, v0")
                o.append(I(f"buffer_load_dword {ar(s.ST + 4)}, {vr(t[20])}, {sr(S_M, 4)}, 0 offen", "vload", grp="PC"))
                for k in range(1, c.pf_code):
                    V(f"v_add_u32 {vr(t[20])}, 16384, {vr(t[20])}")
                    o.append(I(f"buffer_load_dword {ar(s.ST + 4 + k)}, {vr(t[20])}, {sr(S_M, 4)}, 0 offen", "vload", grp="PC"))
        if c.split == "pf":
            o.append(I(None, "split"))
        V(f"v_lshrrev_b32 {vr(g)}, 4, {vr(lane)}")
        V(f"v_and_b32 {vr(m)}, 15, {vr(lane)}")
        j, q, x, y = t[4], t[5], t[6], t[7]
        V(f"v_lshrrev_b32 {vr(j)}, 3, {vr(lane)}")
        V(f"v_and_b32 {vr(q)}, 7, {vr(lane)}")
        XA = TMP
        bl, bm, bg = t[8], t[9], t[10]
        G = {}
        toks = c.p3order.split()

        def group(name):
            G[name] = []; cur[0] = G[name]
        group("DV")
        V(f"v_mul_u32_u24 {vr(x)}, {2 * 832}, {vr(j)}")
        V(f"v_lshrrev_b32 {vr(y)}, 1, {vr(j)}")
        V(f"v_xor_b32 {vr(y)}, {vr(y)}, {vr(q)}")
        V(f"v_lshl_add_u32 {vr(DV)}, {vr(y)}, 4, {vr(x)}")
        group("DU")
        V(f"v_lshlrev_b32 {vr(DU)}, 4, {vr(lane)}")
        group("XA")
        if c.xpat == "oct":
            V(f"v_mul_u32_u24 {vr(XA)}, 1664, {vr(j)}")
            V(f"v_lshl_add_u32 {vr(XA)}, {vr(q)}, 4, {vr(XA)}")
        else:
            V(f"v_mul_u32_u24 {vr(XA)}, 832, {vr(m)}")
            V(f"v_lshl_add_u32 {vr(XA)}, {vr(g)}, 4, {vr(XA)}")
        group("BG")
        V(f"v_min_u32 {vr(bl)}, 5, {vr(j)}")
        V(f"v_mul_u32_u24 {vr(bg)}, 832, {vr(bl)}")
        V(f"v_lshl_add_u32 {vr(bg)}, {vr(q)}, 3, {vr(bg)}")
        S(f"s_lshl_b32 {sr(sP[3])}, {sr(sW)}, 6")
        group("PW")
        if not c.p3trim or c.pf_w:
            V(f"v_lshlrev_b32 {vr(t[21])}, 2, {vr(DU)}")
            S(f"s_lshr_b32 {sr(sP[4])}, s2, 3")
            S(f"s_and_b32 {sr(sP[4])}, {sr(sP[4])}, 31")
            S(f"s_mul_i32 {sr(sP[4])}, {sr(sP[4])}, {NL * LSTR // 32}")
            S(f"s_lshl_b32 {sr(sP[5])}, {sr(sW)}, 12")
            S(f"s_add_u32 {sr(sP[4])}, {sr(sP[4])}, {sr(sP[5])}")
        group("P0")
        if not c.p3trim or c.pw1 or any(k_[:2] == "P0" for k_ in toks):
            V(f"v_mul_u32_u24 {vr(t[22])}, 373, {vr(lane)}")
            V(f"v_lshrrev_b32 {vr(t[22])}, 12, {vr(t[22])}")
            V(f"v_mul_u32_u24 {vr(t[23])}, 11, {vr(t[22])}")
            V(f"v_sub_u32 {vr(t[23])}, {vr(lane)}, {vr(t[23])}")
            V(f"v_mul_u32_u24 {vr(t[22])}, {LSTR}, {vr(t[22])}")
            V(f"v_lshl_add_u32 {vr(t[22])}, {vr(t[23])}, 6, {vr(t[22])}")
            S(f"s_lshr_b32 {sr(sP[6])}, s2, 3")
            S(f"s_and_b32 {sr(sP[6])}, {sr(sP[6])}, 31")
            S(f"s_mul_i32 {sr(sP[6])}, {sr(sP[6])}, {LSTR // 32}")
            S(f"s_mul_i32 {sr(sP[5])}, {sr(sW)}, {LSTR // 128}")
            S(f"s_add_u32 {sr(sP[6])}, {sr(sP[6])}, {sr(sP[5])}")
        group("TU")
        S(f"s_and_b32 {sr(sT0)}, {sr(sW)}, 1")
        S(f"s_lshr_b32 {sr(sT1)}, {sr(sW)}, 1")
        S(f"s_mul_i32 {sr(sVb)}, {sr(sT0)}, {SLOT}")
        S(f"s_mul_i32 {sr(sT2)}, {sr(sT1)}, 1088")
        S(f"s_add_u32 {sr(sVb)}, {sr(sVb)}, {sr(sT2)}")
        S(f"s_mul_i32 {sr(sVs0)}, {sr(sT0)}, {832 + 64}")
        S(f"s_mul_i32 {sr(sT2)}, {sr(sT1)}, {16 * 832}")
        S(f"s_add_u32 {sr(sVs0)}, {sr(sVs0)}, {sr(sT2)}")
        S(f"s_add_u32 {sr(sVs0 + 1)}, {sr(sVs0)}, {32 * 832}")
        S(f"s_add_u32 {sr(sVs0 + 2)}, {sr(sVs0)}, {64 * 832}")
        group("WAB")
        S(f"s_mul_i32 {sr(sWAs)}, {sr(sW)}, {16 * 832}")
        S(f"s_mul_i32 {sr(sWAm)}, {sr(sT1)}, {SLOT}")
        S(f"s_mul_i32 {sr(sT2)}, {sr(sT0)}, 1088")
        S(f"s_add_u32 {sr(sWAm)}, {sr(sWAm)}, {sr(sT2)}")
        S(f"s_add_u32 {sr(sWAm)}, {sr(sWAm)}, {Z + 4032 - 768}")
        S(f"s_mul_i32 {sr(sWBs)}, {sr(sT0)}, {16 * 832}")
        S(f"s_add_u32 {sr(sWBs)}, {sr(sWBs)}, {64 * 832}")
        S(f"s_add_u32 {sr(sWBm)}, {sr(sT2)}, {Z + 2 * SLOT + 4032 - 768}")
        group("T3")
        S(f"s_lshl_b32 {sr(sT3)}, {sr(sW)}, 10")
        S(f"s_add_u32 {sr(sT6m)}, {sr(sT3)}, {T6}")
        S(f"s_add_u32 {sr(sP[0])}, {sr(sT3)}, {96 * 832}")
        S(f"s_min_u32 {sr(sP[2])}, {sr(sW)}, 2")
        S(f"s_lshl_b32 {sr(sP[2])}, {sr(sP[2])}, 10")
        S(f"s_add_u32 {sr(sP[1])}, {sr(sP[2])}, {96 * 832 + 4096}")
        S(f"s_add_u32 {sr(sP[2])}, {sr(sP[2])}, {T6 + 4096}")
        group("T3b")
        S(f"s_add_u32 {sr(sLm)}, {sr(sT3)}, 81920")
        S(f"s_add_u32 {sr(sT6s)}, {sr(sT3)}, {96 * 832 + LSTR}")
        S(f"s_add_u32 {sr(sMXs)}, {sr(sT3)}, {96 * 832 + LSTR + 4096}")
        S(f"s_add_u32 {sr(sMXm)}, {sr(sT3)}, {T6 + 4096}")
        group("XO")
        S(f"s_lshl_b32 {sr(sXo)}, s2, 2")
        S(f"s_add_u32 {sr(sXo)}, {sr(sXo)}, {sr(sW)}")
        S(f"s_mul_i32 {sr(sXo)}, {sr(sXo)}, {16 * 832}")
        group("S4")
        S(f"s_lshr_b32 s4, s2, 3")
        S(f"s_and_b32 s4, s4, 31")
        S(f"s_lshl_b32 s4, s4, 2")
        S(f"s_add_u32 s4, s4, {sr(sW)}")
        S(f"s_mul_i32 s4, s4, {LSTR // 128}")
        S(f"s_and_b32 s4, s4, 0xffffffc0")
        S(f"s_add_u32 s5, s4, {LSTR}")
        S(f"s_add_u32 s6, s4, {2 * LSTR}")
        group("KP")
        if c.keep:
            S(f"s_lshl_b32 s7, s2, 2")
            S(f"s_add_u32 s7, s7, {sr(sW)}")
            S(f"s_lshl_b32 s7, s7, 7")
            S(f"s_add_u32 s7, s7, 0x10000")
            S(f"s_mov_b32 {sr(sDbg + 2)}, 0x8000000")
            S(f"s_mov_b32 {sr(sDbg + 3)}, 0x20000")
        for nm, base, n in (("RV", S_V, NL * LSTR), ("RX", S_X, 16384 * 832), ("RU", S_U, NL * LSTR), ("RB", S_B, NL * 832), ("RO", S_O, 16384 * 832)):
            group(nm)
            S(f"s_mov_b32 {sr(base + 2)}, {n}")
            S(f"s_mov_b32 {sr(base + 3)}, 0x20000")
        cur[0] = o
        done = set()

        def want(names):
            for nm in G:
                if nm in names and nm not in done:
                    done.add(nm); o.extend(G[nm])

        def needs(tok):
            if tok in ("T6", "T6b"): return {"DU", "T3", "RV"}
            if tok[0] == "X": return {"XA", "XO", "RX"}
            if tok == "BI": return {"BG", "RB"}
            if tok == "PW": return {"DU", "PW", "RV", "RU"}
            if tok[0] == "Q": return {"DU", "S4", "RV" if tok[2] == "V" else "RU"}
            if tok[:2] == "P0": return {"P0", "RV", "RU"}
            if tok in ("WA", "WB"): return {"DV", "TU", "WAB", "RV"}
            if tok[0] == "V": return {"DV", "TU", "RV"}
            return set(G)
        want(needs(toks[0]) if c.p3trim else set(G))
        if c.stamps and c.stamps != "rt":
            S(f"s_memtime s[90:91]")
        S("s_waitcnt lgkmcnt(0)")
        if c.stamps:
            S(f"s_memtime s[62:63]")

        def stamp(k):
            if c.stamps and c.stamps != "rt":
                S(f"s_memtime s[{80 + 2 * k}:{81 + 2 * k}]")

        s._dm = c.dmamod0 if c.dmamod0 is not None else c.dmamod
        items = []
        M0 = lambda txt: [I(txt, "salu"), I("s_nop 0", "salu")]
        itok = []
        for tok in c.p3order.split() + [None]:
            itok += [itok_prev] * (len(items) - len(itok)) if items else []
            itok_prev = tok
            if tok is None:
                break
            if tok == "T6":
                items.append(M0(f"s_mov_b32 m0, {sr(sT6m)}") + [I(f"buffer_load_dwordx4 {vr(DU)}, {sr(S_V, 4)}, {sr(sP[0])} offen{s._dm} lds", "dma", grp="T6")])
            elif tok == "T6b":
                items.append(M0(f"s_mov_b32 m0, {sr(sP[2])}") + [I(f"buffer_load_dwordx4 {vr(DU)}, {sr(S_V, 4)}, {sr(sP[1])} offen{s._dm} lds", "dma", grp="T6b")])
            elif tok[0] == "X":
                f = int(tok[1:])
                dst = xo(f, 0) if f < 10 else xbuf(f)
                items.append([I(f"buffer_load_dwordx4 {vr(dst, 4)}, {vr(XA)}, {sr(S_X, 4)}, {sr(sXo)} offen offset:{(128 if c.xpat else 64) * f}{c.xmod}", "vload", grp=f"X{f}")])
            elif tok == "BI":
                for k in range(4):
                    so = sr(sP[3]) if k < 3 else "0"
                    items.append([I(f"buffer_load_dwordx2 {vr(s.BI_R + 2 * k, 2)}, {vr(bg)}, {sr(S_B, 4)}, {so} offen offset:{256 * k}", "vload", grp="BI")])
            elif tok == "PW":
                if c.pf_w:
                    PFD = s.ST + 2
                    items.append([I(f"buffer_load_dword {ar(PFD)}, {vr(t[21])}, {sr(S_V, 4)}, {sr(sP[4])} offen{c.pmod}", "vload", grp="PW")])
                    items.append([I(f"buffer_load_dword {ar(PFD + 1)}, {vr(t[21])}, {sr(S_U, 4)}, {sr(sP[4])} offen{c.pmod}", "vload", grp="PW")])
            elif tok[0] == "Q":
                ly = int(tok[1]); srd = S_V if tok[2] == "V" else S_U
                items.append([I(f"buffer_load_dword {ar(s.ST + 2 + 2 * ly + (tok[2] == 'U'))}, {vr(DU)}, {sr(srd, 4)}, s{4 + ly} offen{c.pmod}", "vload", grp="PW")])
            elif tok[:2] == "P0":
                nl = int(tok[3:] or 1)
                srd = S_V if tok[2] == "V" else S_U
                items.append([I(f"s_mov_b64 exec, {hex((1 << (11 * nl)) - 1)}", "salu"),
                              I(f"buffer_load_dword {ar(s.ST + (2 if tok[2] == 'V' else 3))}, {vr(t[22])}, {sr(srd, 4)}, {sr(sP[6])} offen{c.pmod}", "vload", grp="PW"),
                              I(f"s_mov_b64 exec, -1", "salu")])
            else:
                for sc, v in s.dma_items(tok):
                    items.append((M0(sc.txt) if sc is not None else []) + [v])
        fill = []
        cur[0] = fill
        V(f"v_mul_u32_u24 {vr(bl)}, 336, {vr(bl)}")
        V(f"v_lshl_add_u32 {vr(bl)}, {vr(q)}, 4, {vr(bl)}")
        V(f"v_add_u32 {vr(bl)}, {Z}, {vr(bl)}")
        S(f"s_mul_i32 {sr(sT0)}, {sr(sW)}, {SLOT}")
        V(f"v_add_u32 {vr(s.BI_AD)}, {sr(sT0)}, {vr(bl)}")
        S(f"s_add_u32 {sr(sT1)}, {sr(sT0)}, {4 * SLOT}")
        S(f"s_cmp_eq_u32 {sr(sW)}, 3")
        S(f"s_cselect_b32 {sr(sT1)}, 2016, {sr(sT1)}")
        V(f"v_add_u32 {vr(s.BI_AD + 1)}, {sr(sT1)}, {vr(bl)}")
        S(f"s_add_u32 {sr(sT1)}, {sr(sT0)}, {SLOT + 2016}")
        V(f"v_add_u32 {vr(s.BI_AD + 2)}, {sr(sT1)}, {vr(bl)}")
        V(f"v_add_u32 {vr(s.BI_AD + 3)}, {5 * SLOT + 2016}, {vr(bl)}")
        for r in (s.BI_QA + 1, s.BI_QA + 3, s.BI_QB + 1, s.BI_QB + 3):
            V(f"v_mov_b32 {vr(r)}, 0")
        S(f"s_lshl_b32 {sr(sUm)}, {sr(sW)}, 12")
        S(f"s_cmp_eq_u32 {sr(sW)}, 3")
        S(f"s_cselect_b32 {sr(sMXs)}, 86016, {sr(sMXs)}")
        S(f"s_cselect_b32 {sr(sMXm)}, 86016, {sr(sMXm)}")
        S(f"s_cselect_b32 {sr(S_M)}, {sr(S_U)}, {sr(S_V)}")
        S(f"s_cselect_b32 {sr(S_M + 1)}, {sr(S_U + 1)}, {sr(S_V + 1)}")
        S(f"s_mov_b32 {sr(S_M + 2)}, {NL * LSTR}")
        S(f"s_mov_b32 {sr(S_M + 3)}, 0x20000")
        S(f"s_mov_b32 {sr(sMask)}, 0")
        S(f"s_mov_b32 {sr(sMask + 1)}, -1")
        S(f"s_mov_b32 {sr(sCnt)}, {c.nlayers - 2}")
        rho = t[13]
        V(f"v_lshrrev_b32 {vr(x)}, 2, {vr(m)}")
        V(f"v_and_b32 {vr(y)}, 3, {vr(m)}")
        V(f"v_lshlrev_b32 {vr(x)}, 2, {vr(x)}")
        V(f"v_add_u32 {vr(x)}, {vr(x)}, {vr(y)}")
        V(f"v_lshlrev_b32 {vr(rho)}, 1, {vr(x)}")
        V(f"v_and_b32 {vr(x)}, 7, {vr(m)}")
        V(f"v_lshrrev_b32 {vr(y)}, 1, {vr(x)}")
        V(f"v_xor_b32 {vr(y)}, {vr(y)}, {vr(g)}")
        V(f"v_lshlrev_b32 {vr(y)}, 4, {vr(y)}")
        V(f"v_lshl_add_u32 {vr(y)}, {vr(x)}, 7, {vr(y)}")
        V(f"v_lshrrev_b32 {vr(x)}, 3, {vr(m)}")
        V(f"v_mul_u32_u24 {vr(x)}, 1088, {vr(x)}")
        V(f"v_add_u32 {vr(y)}, {vr(y)}, {vr(x)}")
        V(f"v_add_u32 {vr(PV)}, {WIN}, {vr(y)}")
        V(f"v_lshrrev_b32 {vr(x)}, 3, {vr(m)}")
        V(f"v_mul_u32_u24 {vr(x)}, 12, {vr(x)}")
        V(f"v_xor_b32 {vr(x)}, {vr(x)}, {vr(m)}")
        V(f"v_mul_u32_u24 {vr(x)}, 832, {vr(x)}")
        V(f"v_lshl_add_u32 {vr(x)}, {vr(g)}, 4, {vr(x)}")
        V(f"v_add_u32 {vr(PV6)}, {T6}, {vr(x)}")
        if c.zrow:
            V(f"v_add_u32 {vr(x)}, 2, {vr(g)}")
            V(f"v_and_b32 {vr(x)}, 3, {vr(x)}")
            V(f"v_lshlrev_b32 {vr(x)}, 4, {vr(x)}")
            V(f"v_add_u32 {vr(x)}, {ZR}, {vr(x)}")
            V(f"v_cmp_gt_u32 vcc, 8, {vr(m)}")
            V(f"v_lshlrev_b32 {vr(y)}, 2, {vr(lane)}")
            S(f"s_lshl_b32 {sr(sT0)}, {sr(sW)}, 8")
            V(f"v_cndmask_b32 {vr(PV6)}, {vr(x)}, {vr(PV6)}, vcc")
            S(f"s_add_u32 {sr(sT0)}, {sr(sT0)}, {ZR}")
            V(f"v_mov_b32 {vr(x)}, 0")
            V(f"v_add_u32 {vr(y)}, {sr(sT0)}, {vr(y)}")
            cur[0].append(I(f"ds_write_b32 {vr(y)}, {vr(x)}", "dsw"))
        V(f"v_mul_u32_u24 {vr(x)}, 208, {vr(rho)}")
        V(f"v_lshl_add_u32 {vr(PU)}, {vr(g)}, 4, {vr(x)}")
        V(f"v_lshl_add_u32 {vr(x)}, {vr(g)}, 3, {vr(x)}")
        V(f"v_add_u32 {vr(x)}, 192, {vr(x)}")
        V(f"v_lshlrev_b32 {vr(y)}, 3, {vr(m)}")
        V(f"v_add_u32 {vr(y)}, {Z}, {vr(y)}")
        V(f"v_cndmask_b32_e64 {vr(PT)}, {vr(x)}, {vr(y)}, {sr(sMask, 2)}")
        V(f"v_mov_b32 {vr(x)}, {WIN}")
        V(f"v_mov_b32 {vr(y)}, 2016")
        V(f"v_cndmask_b32_e64 {vr(D1)}, {vr(x)}, {vr(y)}, {sr(sMask, 2)}")
        V(f"v_mov_b32 {vr(x)}, {(-WIN) & 0xFFFFFFFF}")
        V(f"v_mov_b32 {vr(y)}, {(-1680) & 0xFFFFFFFF}")
        V(f"v_cndmask_b32_e64 {vr(x)}, {vr(x)}, {vr(y)}, {sr(sMask, 2)}")
        V(f"v_accvgpr_write_b32 {ar(s.ST_D2)}, {vr(x)}")
        if c.smix:
            S(f"s_mul_i32 {sr(sT0)}, {sr(sW)}, 6144")
            S(f"s_add_u32 {sr(sT0)}, {sr(sT0)}, 139264")
            V(f"v_lshlrev_b32 {vr(y)}, 4, {vr(lane)}")
            V(f"v_add_u32 {vr(y)}, {sr(sT0)}, {vr(y)}")
            V(f"v_accvgpr_write_b32 a88, {vr(y)}")
        if c.fullst:
            V(f"v_and_b32 {vr(x)}, 1, {vr(lane)}")
            V(f"v_mul_u32_u24 {vr(y)}, 768, {vr(x)}")
            V(f"v_sub_u32 {vr(y)}, {vr(XA)}, {vr(y)}")
            V(f"v_add_u32 {vr(y)}, 768, {vr(y)}")
            V(f"v_accvgpr_write_b32 {ar(s.ST_XA)}, {vr(y)}")
            V(f"v_mul_u32_u24 {vr(y)}, 896, {vr(x)}")
            V(f"v_sub_u32 {vr(y)}, {vr(XA)}, {vr(y)}")
            V(f"v_add_u32 {vr(y)}, 64, {vr(y)}")
            V(f"v_accvgpr_write_b32 {ar(s.ST + 5)}, {vr(y)}")
        elif c.stpat == "lin":
            V(f"v_lshlrev_b32 {vr(x)}, 4, {vr(lane)}")
            V(f"v_accvgpr_write_b32 {ar(s.ST_XA)}, {vr(x)}")
        elif c.stpat == "oct":
            V(f"v_mul_u32_u24 {vr(x)}, 1664, {vr(j)}")
            V(f"v_lshl_add_u32 {vr(x)}, {vr(q)}, 4, {vr(x)}")
            V(f"v_accvgpr_write_b32 {ar(s.ST_XA)}, {vr(x)}")
        else:
            V(f"v_accvgpr_write_b32 {ar(s.ST_XA)}, {vr(XA)}")
        for e in range(0 if c.tail16 else 2 * c.ntr):
            V(f"v_accvgpr_write_b32 {ar(s.TR0 + 4 * e + 2)}, 0")
            V(f"v_accvgpr_write_b32 {ar(s.TR0 + 4 * e + 3)}, 0")
        for i in range(c.xfill):
            V(f"v_mul_f32 {vr(C0 + 20 + i % 80)}, {vr((DV, PV, PU, PV6)[i & 3])}, {vr((PT, DU, D1, PV)[(i >> 2) & 3])}")
        for i in range(20, 104):
            V(f"v_mov_b32 {vr(C0 + i)}, 1.0")
        cur[0] = o
        stamp(0)
        k = 0
        for n, it in enumerate(items):
            want(needs(itok[n]))
            o.extend(it)
            if c.split == n + 1:
                o.append(I(None, "split"))
            if c.p3trim and n + 1 < len(items):
                want(needs(itok[n + 1]))
                if n + 2 < len(items) and n + 2 < c.p3start:
                    want(needs(itok[n + 2]))
            if n + 1 >= c.p3start:
                want(set(G))
                o.extend(fill[k:k + c.p3k]); k += c.p3k
        want(set(G))
        stamp(1)
        o.extend(fill[k:])
        if c.pw1:
            V(f"v_add_u32 {vr(TMP)}, {LSTR}, {vr(t[22])}")
        stamp(2)
        if c.palign:
            o.append(I("s_branch L_p2", "salu")); o.append(I(".p2align 12", "label")); o.append(I("L_p2:", "label"))
        if not c.bias_in:
            w_ = I(None, "wait"); w_.wait = dict(vm=["BI"], lg=False); o.append(w_)
            o.extend(s.bias_ops())
        if c.touch and c.touch_at == "bar0":
            o.extend(s.touch_seq())
        stamp(3)
        w_ = I(None, "wait"); w_.wait = dict(vm=["WA", "WB", "V0", "T6", "T6b", "X0"] + [f"X{f}" for f in range(1, c.x0wait + 1)], lg=False, lg0=True); o.append(w_)
        stamp(4)
        o.append(I("s_barrier", "barrier"))
        if c.delayb:
            S(f"s_mov_b32 s69, {c.delayb}")
            o.append(I("L_dlyb:", "label"))
            for _ in range(8):
                S("s_nop 0")
            S("s_sub_u32 s69, s69, 1")
            S("s_cmp_lg_u32 s69, 0")
            S("s_cbranch_scc1 L_dlyb")
        if c.stamps:
            S(f"s_memtime s[64:65]")
            if c.stamps == "rt":
                S(f"s_memrealtime s[80:81]")
            S("s_waitcnt lgkmcnt(0)")
        for T in range(c.LA):
            o.append(s.slot_desc(T, True)[1])
            if T == s.g1_slot_of(0, 5):
                o.append(I(f"v_subrev_u32 {vr(PV)}, {WIN}, {vr(PV)}", "valu"))
        w_ = I(None, "wait"); w_.wait = dict(vm=[], lg=True); o.append(w_)
        return o

    def bias_ops(s):
        o = []
        for k in range(4):
            r = s.BI_R + 2 * k; A_, B_ = s.BI_QA, s.BI_QB; ad = s.BI_AD + k
            o.append(I(f"v_lshlrev_b32 {vr(A_)}, 16, {vr(r)}", "valu"))
            o.append(I(f"v_lshlrev_b32 {vr(A_ + 2)}, 16, {vr(r + 1)}", "valu"))
            o.append(I(f"v_and_b32 {vr(B_)}, 0xffff0000, {vr(r)}", "valu"))
            o.append(I(f"v_and_b32 {vr(B_ + 2)}, 0xffff0000, {vr(r + 1)}", "valu"))
            o.append(I(f"ds_write_b128 {vr(ad)}, {vr(A_, 4)}", "dsw"))
            o.append(I(f"ds_write_b128 {vr(ad)}, {vr(B_, 4)} offset:208", "dsw"))
        for i in range(20):
            o.append(I(f"v_mov_b32 {vr(C0 + i)}, 1.0", "valu"))
        return o

    def resolve(s, trace, res=None, final=True):
        if res is None:
            res = {}
        vm_idx = []
        lastgrp = {}
        nvm = 0
        nds = 0
        areg_ds = {}
        inst = []
        for pos, x in enumerate(trace):
            if x.kind in ("dma", "vload", "store"):
                nvm += 1
                if x.grp:
                    lastgrp[x.grp] = nvm
            elif x.kind in ("dsr", "dsw"):
                if x.kind == "dsr":
                    areg_ds[x.areg] = nds
                nds += 1
            elif x.kind == "wait":
                vmN = None
                if x.wait["vm"]:
                    need = 0
                    for g in x.wait["vm"]:
                        if g not in lastgrp:
                            continue
                        need = max(need, lastgrp[g])
                    vmN = nvm - need
                inst.append((pos, x, vmN, nds))
            elif x.kind == "mfma":
                x_need = areg_ds.get(x.areg)
                assert x_need is not None, x.txt
                trace_need.append(x_need) if False else None
        need_at = [None] * len(trace)
        areg_ds = {}; nds = 0
        for pos, x in enumerate(trace):
            if x.kind in ("dsr", "dsw"):
                if x.kind == "dsr":
                    areg_ds[x.areg] = nds
                nds += 1
            elif x.kind == "mfma":
                need_at[pos] = areg_ds[x.areg]
        lgw = [(pos, x, vmN, nds_) for (pos, x, vmN, nds_) in inst if x.wait["lg"] or x.wait.get("lg0")]
        lgN = {}
        for k, (pos, x, vmN, nds_) in enumerate(lgw):
            end = lgw[k + 1][0] if k + 1 < len(lgw) else len(trace)
            need = [need_at[p] for p in range(pos, end) if need_at[p] is not None]
            if x.wait.get("lg0"):
                N = 0
            elif need:
                mx = max(need)
                assert mx < nds_, ("read issued after its wait", pos, x.wait)
                N = nds_ - 1 - mx
            else:
                N = None
            lgN[pos] = N
        for (pos, x, vmN, nds_) in inst:
            r = res.setdefault(id(x), dict(x=x, vm=None, lg=None))
            if vmN is not None:
                r["vm"] = vmN if r["vm"] is None else min(r["vm"], vmN)
            N = lgN.get(pos)
            if N is not None:
                r["lg"] = N if r["lg"] is None else min(r["lg"], N)
        if not final:
            return
        for r in res.values():
            x = r["x"]; parts = []
            if r["vm"] is not None:
                assert r["vm"] <= 63
                parts.append(f"vmcnt({r['vm']})")
            if r["lg"] is not None:
                parts.append(f"lgkmcnt({min(r['lg'], 15)})")
            x.txt = ("s_waitcnt " + " ".join(parts)) if parts else None
            x.cmt = ",".join(x.wait["vm"])

    def kernel(s):
        c = s.c
        if c.alt is not None:
            c._hdr = True
        pro = {1: s.prologue, 2: s.prologue2, 3: s.prologue3}[c.pro]()
        g1f = s.lin(s.build("g1first"))
        g2l = s.lin(s.build("g2last"))
        proB = g1fB = None
        if c.alt is not None:
            import copy
            c2 = copy.copy(c)
            for k_, v_ in c.alt.items():
                assert hasattr(c, k_), k_
                setattr(c2, k_, v_)
            gB = Gen(c2)
            proB = gB.prologue3()
            g1fB = gB.lin(gB.build("g1first"))
            assert c.wvloop
        if c.wvloop:
            ncopy = len(c.wshift)
            loops = [s.lin(s.build("loop", wave=w)) for w in range(ncopy)]
            res = {}
            for w in range(ncopy):
                if proB is not None:
                    s.resolve(proB + g1fB + loops[w] * (c.nlayers - 1) + g2l, res, final=False)
                s.resolve(pro + g1f + loops[w] * (c.nlayers - 1) + g2l, res, final=(w == ncopy - 1))
            loop = loops[0]
        else:
            loop = s.lin(s.build("loop"))
            trace = pro + g1f + loop * (c.nlayers - 1) + g2l
            s.resolve(trace)
        L = []
        A = L.append
        hdr = open("standalone__cross_network_dcn_v2__recsys.s.ref").read().split("\n")
        for ln in hdr:
            if ln.startswith("; @launch"):
                A(f"; @launch grid=(256,1,1) block=(256,1,1) lds={163840 if c.smix else LDS + (1024 if c.zrow else 0)}")
            elif ln.startswith(";"):
                A(ln)
            else:
                break
        A('.amdgcn_target "amdgcn-amd-amdhsa--gfx950"')
        A(".text"); A(f".globl {KN}"); A(".p2align 8"); A(f".type {KN},@function"); A(f"{KN}:")

        def emit(lst):
            for x in lst:
                if x.txt is None:
                    continue
                if x.kind == "label":
                    A(x.txt); continue
                A("  " + x.txt + (f"   ; {x.cmt}" if x.cmt else ""))
        if c.delay0:
            if c.dly_bit is not None:
                A(f"  s_bitcmp1_b32 s2, {c.dly_bit}")
                A("  s_cbranch_scc0 L_dly0e")
            A(f"  s_mov_b32 s69, {c.delay0}")
            A("L_dly0:")
            for _ in range(8):
                A("  v_mov_b32 v1, v0")
            A("  s_sub_u32 s69, s69, 1")
            A("  s_cmp_lg_u32 s69, 0")
            A("  s_cbranch_scc1 L_dly0")
            A("L_dly0e:")
        nsplit = 0
        if c.alt is not None:
            A("  s_cmp_ge_u32 s2, 256")
            A("  s_cbranch_scc1 L_end")
            if c.split is None:
                A(f"  s_getpc_b64 {sr(S_M, 2)}")
                A("L_pc:")
            else:
                nsplit = [x.kind for x in pro].index("split")
                assert nsplit == [x.kind for x in proB].index("split")
                assert [x.txt for x in pro[:nsplit]] == [x.txt for x in proB[:nsplit]], "the common part of the two paths differs"
                emit(pro[:nsplit])
            if c.alt_mask:
                A(f"  s_and_b32 s3, s2, {c.alt_mask[0]}")
                A(f"  s_cmp_eq_u32 s3, {c.alt_mask[1]}")
                A(f"  s_cbranch_scc{0 if c.alt_mask[2] else 1} L_alt")
            else:
                A(f"  s_bitcmp1_b32 s2, {c.alt_bit}")
                A("  s_cbranch_scc1 L_alt")
        emit(pro[nsplit:])
        A("; ---- G1 first"); emit(g1f)
        if c.alt is not None:
            A("L_join:")
        if c.delayj:
            A(f"  s_mov_b32 s69, {c.delayj}")
            A("L_dlyj:")
            for _ in range(8):
                A("  s_nop 0")
            A("  s_sub_u32 s69, s69, 1")
            A("  s_cmp_lg_u32 s69, 0")
            A("  s_cbranch_scc1 L_dlyj")
        if c.stamps:
            A("  s_memtime s[74:75]")
            if c.stamps == "rt":
                A("  s_memrealtime s[82:83]")
            A("  s_waitcnt lgkmcnt(0)")
        if "vmwait" in c.drop:
            import re
            for x in loop:
                if x.kind == "wait" and x.txt:
                    x.txt = re.sub(r"vmcnt\(\d+\) ?", "", x.txt)
                    if x.txt.strip() == "s_waitcnt":
                        x.txt = None
        def flt(lst):
            o_ = []; k_ = 0
            if c.smix and ("h" in c.smix or "d" in c.smix):
                import re
                im = -1; prevA = None
                for x in lst:
                    if x.kind == "mfma":
                        im += 1
                        m_ = re.search(r"a\[\d+:\d+\]", x.txt)
                        if im & 1 and prevA and "h" in c.smix:
                            x = I(x.txt.replace(m_.group(0), prevA), "mfma", areg=x.areg)
                        else:
                            prevA = m_.group(0)
                    elif x.kind == "dsr" and x.areg < 88 and im & 1:
                        continue
                    o_.append(x)
                return o_
            for x in lst:
                if x.kind in c.drop:
                    continue
                if c.drophalf and x.kind == "dsr":
                    k_ += 1
                    if k_ % c.drophalf:
                        continue
                o_.append(x)
            return o_
        if c.wvloop:
            if ncopy == 2:
                A(f"  s_and_b32 s3, s{sW}, 1"); A(f"  s_cbranch_scc1 L_loop1")
                if c.lalign:
                    A("  s_branch L_loop0")
            else:
                for w in range(1, 4):
                    A(f"  s_cmp_eq_u32 s{sW}, {w}"); A(f"  s_cbranch_scc1 L_loop{w}")
            for w in range(ncopy):
                if c.lalign:
                    A(".p2align 12"); A(f"L_t{'AB'[w]}:"); A(f"  s_branch @NEXT{'AB'[w]}@")
                A(f"; ---- loop of wave {w}"); A(f"L_loop{w}:")
                if c.itst:
                    A("  s_mov_b32 s91, s90"); A("  s_mov_b32 s90, s89"); A("  s_mov_b32 s89, s88"); A("  s_mov_b32 s88, s86")
                    A("  s_memrealtime s[86:87]")
                emit(flt(loops[w]))
                A(f"  s_cbranch_scc0 L_loop{w}")
                if w < ncopy - 1 or c.lalign:
                    A("  s_branch L_g2l")
            if c.lalign:
                A(".p2align 12"); A("L_tG:"); A("  s_branch @NEXTG@")
            A("L_g2l:")
        else:
            A("; ---- loop"); A("L_loop:"); emit([x for x in loop if x.kind not in c.drop])
            A("  s_cbranch_scc0 L_loop")
        if c.stamps:
            A("  s_memtime s[76:77]")
            if c.stamps == "rt":
                A("  s_memrealtime s[84:85]")
            A("  s_waitcnt lgkmcnt(0)")
        if c.delaym:
            A(f"  s_mov_b32 s69, {c.delaym}")
            A("L_dlym:")
            for _ in range(8):
                A("  s_nop 0")
            A("  s_sub_u32 s69, s69, 1")
            A("  s_cmp_lg_u32 s69, 0")
            A("  s_cbranch_scc1 L_dlym")
        if c.nost_bit == -1:
            A(f"  s_mov_b32 s{S_O + 2}, 0")
        elif c.nost_bit is not None:
            A(f"  s_bitcmp1_b32 s2, {c.nost_bit}")
            A(f"  s_cselect_b32 s{S_O + 2}, 0, s{S_O + 2}")
        A("; ---- G2 last"); emit(g2l)
        if c.delay:
            A(f"  s_mov_b32 s69, {c.delay}")
            A("L_dly:")
            for _ in range(8):
                A("  v_mov_b32 v0, v1")
            A("  s_sub_u32 s69, s69, 1")
            A("  s_cmp_lg_u32 s69, 0")
            A("  s_cbranch_scc1 L_dly")
        if c.stamps:
            A("  s_memtime s[66:67]")
            A("  s_waitcnt vmcnt(0) lgkmcnt(0)")
            A("  s_memtime s[78:79]")
            A("  s_memrealtime s[72:73]")
            A("  s_waitcnt lgkmcnt(0)")
            for k, reg in enumerate((62, 64, 74, 76, 66, 78, 80, 82, 84, 86, 88, 90) + ((89,) if c.itst else ())):
                A(f"  s_sub_u32 s{reg}, s{reg}, " + ("s70" if (c.stamps == "rt" and reg >= 80) else "s60"))
            A(f"  s_mov_b32 s{sDbg + 2}, 0x100000"); A(f"  s_mov_b32 s{sDbg + 3}, 0x20000")
            A(f"  s_lshl_b32 s68, s2, 2"); A(f"  s_add_u32 s68, s68, s{sW}"); A("  s_lshl_b32 s68, s68, 6")
            for k, reg in enumerate((62, 64, 74, 76, 66, 78, 70, 72, 80, 82, 84, 86, 88, 90, 89 if c.itst else 60, 60)):
                A(f"  v_mov_b32 v{k}, s{reg}")
            A("  v_mov_b32 v16, 0")
            if c.dbg:
                A(f"  s_mov_b32 s{sDbg + 2}, 256")
                A("  v_mov_b32 v20, s72"); A("  s_sub_u32 s73, -1, s70"); A("  v_mov_b32 v21, s73")
                A("  s_mov_b64 exec, 1")
                A(f"  buffer_atomic_umax v20, v16, s[{sDbg}:{sDbg + 3}], 0 offen")
                A(f"  buffer_atomic_umax v21, v16, s[{sDbg}:{sDbg + 3}], 0 offen offset:4")
                A("  s_sub_u32 s73, s72, s70"); A("  v_mov_b32 v22, s73")
                A(f"  buffer_atomic_umax v22, v16, s[{sDbg}:{sDbg + 3}], 0 offen offset:8")
                for k, r in enumerate((62, 64, 74, 76, 66, 78, 80, 82, 84)):
                    A(f"  v_mov_b32 v23, s{r}")
                    A(f"  buffer_atomic_umax v23, v16, s[{sDbg}:{sDbg + 3}], 0 offen offset:{12 + 4 * k}")
                    A("  s_nop 1")
                A("  s_mov_b64 exec, -1")
            else:
              for k in range(4):
                A(f"  buffer_store_dwordx4 v[{4 * k}:{4 * k + 3}], v16, s[{sDbg}:{sDbg + 3}], s68 offen offset:{16 * k}")
        if c.lstamps:
            nls = len(c.lstamps)
            mt = "s_memrealtime" if c.lrt else "s_memtime"
            A(f"  {mt} s[{64 + 2 * nls}:{65 + 2 * nls}]")
            A("  s_waitcnt vmcnt(0) lgkmcnt(0)")
            A(f"  {mt} s[{66 + 2 * nls}:{67 + 2 * nls}]")
            A(f"  s_load_dwordx2 s[{sDbg}:{sDbg + 1}], s[0:1], 48")
            A("  s_waitcnt lgkmcnt(0)")
            A(f"  s_mov_b32 s{sDbg + 2}, 0x100000"); A(f"  s_mov_b32 s{sDbg + 3}, 0x20000")
            A(f"  s_lshl_b32 s61, s2, 2"); A(f"  s_add_u32 s61, s61, s{sW}"); A("  s_lshl_b32 s61, s61, 6")
            for k in range(16):
                A(f"  v_mov_b32 v{k}, s{64 + 2 * min(k, len(c.lstamps) + 1)}")
            if nls + 2 < 16:
                A("  s_getpc_b64 s[62:63]"); A("L_pcq:"); A("  v_mov_b32 v15, s62")
            A("  v_mov_b32 v16, 0")
            for k in range(4):
                A(f"  buffer_store_dwordx4 v[{4 * k}:{4 * k + 3}], v16, s[{sDbg}:{sDbg + 3}], s61 offen offset:{16 * k}")
        A("L_end:"); A("  s_endpgm")
        if c.alt is not None:
            A("; ---- second start-up path"); A("L_alt:"); emit(proB[nsplit:])
            A("; ---- G1 first, second path"); emit(g1fB)
            A("  s_branch L_join"); A("L_fin:")
        if c.pad:
            for _ in range(c.pad // 4):
                A("  s_endpgm")
            A("L_pad:")
        A('.section .rodata,"a"'); A(".p2align 6"); A(f".amdhsa_kernel {KN}")
        nv = 256 + s.NA
        A(f"  .amdhsa_next_free_vgpr {nv}"); A("  .amdhsa_next_free_sgpr 102"); A("  .amdhsa_accum_offset 256")
        A("  .amdhsa_group_segment_fixed_size 0"); A("  .amdhsa_kernarg_size 56"); A("  .amdhsa_user_sgpr_count 2")
        A("  .amdhsa_user_sgpr_kernarg_segment_ptr 1"); A("  .amdhsa_system_sgpr_workgroup_id_x 1"); A(".end_amdhsa_kernel")
        s.sizes = dict(pro=len(pro), g1f=len(g1f), loop=len(loop), g2l=len(g2l))
        s.parts = dict(pro=pro, g1f=g1f, loop=loop, g2l=g2l)
        if c.touch or c.lalign:
            L = s.add_touch(L)
        return "\n".join(L) + "\n"


def est_cycles(lst):
    cyc = 0; sc = 0; vc = 0; started = False
    for x in lst:
        if x.txt is None:
            continue
        if x.kind == "mfma":
            if started:
                cyc += 16 + 4 * (max(0, sc - 1) + max(0, vc - 2))
            started = True; sc = 0; vc = 0
        elif x.kind in ("salu", "wait", "barrier"):
            sc += 1
        else:
            vc += 1
    cyc += 16 + 4 * (max(0, sc - 1) + max(0, vc - 2))
    return cyc


if __name__ == "__main__":
    cfg = Cfg()
    out = "standalone__cross_network_dcn_v2__recsys.s"
    for a in sys.argv[1:]:
        if "=" in a:
            k, v = a.split("=", 1)
            if k == "out":
                out = v
            else:
                setattr(cfg, k, eval(v))
    g = Gen(cfg)
    txt = g.kernel()
    open(out, "w").write(txt)
    print("sizes", g.sizes, {k: est_cycles(v) for k, v in g.parts.items() if k != "pro"})
```
